```python
import torch

def _softmax(x, axis=-1):
    return torch.softmax(x, dim=axis)
def _gelu(x):
    return torch.nn.functional.gelu(x, approximate="tanh")
def _silu(x):
    return torch.nn.functional.silu(x)
def _sigmoid(x):
    return torch.sigmoid(x)
def _layernorm(x, axis=-1, eps=1e-5):
    m = x.mean(dim=axis, keepdim=True)
    v = x.var(dim=axis, keepdim=True, unbiased=False)
    return (x - m) / torch.sqrt(v + eps)
def _scatter_add(tgt, idx, src, axis=0):
    return tgt.clone().index_add_(axis, idx, src)
def _segment_sum(src, seg, n):
    out = torch.zeros((n,) + src.shape[1:], dtype=src.dtype)
    return out.index_add_(0, seg, src)
def _pad(x, pw):
    flat = tuple(v for pair in reversed(pw) for v in pair)
    return torch.nn.functional.pad(x, flat)

kernel_name = 'sequential_preLN__linear_kernel_hedgehog__glu_gated_glu__prompt'

def setup_inputs():

    _w = (lambda a: (lambda t: t.to(torch.bfloat16) if t.is_floating_point() else t)(torch.as_tensor(a)))
    def _A_setup():
        B, S, D, H = 1, 2048, 512, 32
        Dh = D // H
        return {
            "x": _w((lambda *s: torch.randn(*s, dtype=torch.bfloat16) * 0.05)(B, S, D)),
            "wqkv": _w((lambda *s: torch.randn(*s, dtype=torch.bfloat16) * 0.2)(D, 3 * D)),
            "w_phi": _w((lambda *s: torch.randn(*s, dtype=torch.bfloat16) * 0.2)(H, Dh, Dh) * (Dh ** -0.5)),
            "wo": _w((lambda *s: torch.randn(*s, dtype=torch.bfloat16) * 0.05)(D, D)),
        }
    _A_in = _A_setup()

    def _B_setup():
        B, S, D, F = 1, 2048, 512, 1792
        return {
            "x": _w((lambda *s: torch.randn(*s, dtype=torch.bfloat16) * 0.05)(B, S, D)),
            "w_gate": _w((lambda *s: torch.randn(*s, dtype=torch.bfloat16) * 0.05)(D, F)),
            "w_up": _w((lambda *s: torch.randn(*s, dtype=torch.bfloat16) * 0.05)(D, F)),
            "w_down": _w((lambda *s: torch.randn(*s, dtype=torch.bfloat16) * 0.05)(F, D)),
        }
    _B_in = _B_setup()

    return {
        "A_x": _A_in["x"],
        "A_wqkv": _A_in["wqkv"],
        "A_w_phi": _A_in["w_phi"],
        "A_wo": _A_in["wo"],
        "B_x": _B_in["x"],
        "B_w_gate": _B_in["w_gate"],
        "B_w_up": _B_in["w_up"],
        "B_w_down": _B_in["w_down"],
    }

def reference(A_x, A_wqkv, A_w_phi, A_wo, B_x, B_w_gate, B_w_up, B_w_down):
    def _A_ref(x, wqkv, w_phi, wo):
        B, S, D = x.shape
        H = 32; Dh = D // H
        qkv = (lambda x, *d: x.permute(*d))((x @ wqkv).reshape(B, S, 3, H, Dh), 2, 0, 3, 1, 4)
        q, k, v = qkv[0], qkv[1], qkv[2]
        pq = torch.einsum("bhsd,hdf->bhsf", q, w_phi)
        pk = torch.einsum("bhsd,hdf->bhsf", k, w_phi)
        phi_q = torch.concatenate([_softmax(pq, axis=-1), _softmax(-pq, axis=-1)], axis=-1)
        phi_k = torch.concatenate([_softmax(pk, axis=-1), _softmax(-pk, axis=-1)], axis=-1)
        kv = torch.einsum("bhsf,bhsd->bhfd", phi_k, v)
        z  = torch.einsum("bhsf->bhf", phi_k)
        num = torch.einsum("bhqf,bhfd->bhqd", phi_q, kv)
        den = torch.einsum("bhqf,bhf->bhq", phi_q, z)[..., None] + 1e-6
        o = num / den
        return (lambda x, *d: x.permute(*d))(o, 0, 2, 1, 3).reshape(B, S, D) @ wo

    def _B_ref(x, w_gate, w_up, w_down):
        g = torch.einsum("bsd,df->bsf", x, w_gate)
        u = torch.einsum("bsd,df->bsf", x, w_up)
        h = _sigmoid(g) * u
        return torch.einsum("bsf,fd->bsd", h, w_down)

    x = A_x
    h = x + _A_ref(_layernorm(x, axis=-1), A_wqkv, A_w_phi, A_wo)
    h2 = h + _B_ref(_layernorm(h, axis=-1), B_w_gate, B_w_up, B_w_down)
    return h2
```

```python
NAME = "sequential_preLN__linear_kernel_hedgehog__glu_gated_glu__prompt"
HEADER = """; Kernarg layout (88 bytes): 0 A_x, 8 A_wqkv, 16 A_w_phi, 24 A_wo, 32 B_x, 40 B_w_gate, 48 B_w_up, 56 B_w_down, 64 d_out, 72 d_debug, 80 d_ws
"""
class Asm:
    def __init__(self):
        self.lines = []
        self.nlab = 0
    def e(self, s):
        self.lines.append("    " + s)
    def c(self, s):
        self.lines.append("    ; " + s)
    def lab(self, name):
        self.lines.append(name + ":")
    def newlab(self, p="L"):
        self.nlab += 1
        return f"{p}_{self.nlab}"
    def raw(self, s):
        self.lines.append(s)
    def text(self):
        return "\n".join(self.lines) + "\n"

def kernel_begin(a, name):
    a.raw(".text")
    a.raw(f".globl {name}")
    a.raw(".p2align 8")
    a.raw(f".type {name},@function")
    a.raw(f"{name}:")

def kernel_desc(a, name, vgpr, sgpr, accum):
    a.raw('.section .rodata,"a"')
    a.raw(".p2align 6")
    a.raw(f".amdhsa_kernel {name}")
    a.raw(f"  .amdhsa_next_free_vgpr {vgpr}")
    a.raw(f"  .amdhsa_next_free_sgpr {sgpr}")
    a.raw(f"  .amdhsa_accum_offset {accum}")
    a.raw("  .amdhsa_group_segment_fixed_size 0")
    a.raw("  .amdhsa_kernarg_size 88")
    a.raw("  .amdhsa_user_sgpr_count 2")
    a.raw("  .amdhsa_user_sgpr_kernarg_segment_ptr 1")
    a.raw("  .amdhsa_system_sgpr_workgroup_id_x 1")
    a.raw("  .amdhsa_float_denorm_mode_32 3")
    a.raw(".end_amdhsa_kernel")

def srd(a, d, base, nbytes):
    a.e(f"s_mov_b32 s{d}, s{base}")
    a.e(f"s_and_b32 s{d+1}, s{base+1}, 0xffff")
    a.e(f"s_mov_b32 s{d+2}, {nbytes}")
    a.e(f"s_mov_b32 s{d+3}, 0x20000")
```

```python
import sys
from asmlib import *

OFF_KV   = 0x000000
OFF_PHIQ = 0x100000
OFF_H    = 0x500000
OFF_ST2  = 0x700000
OFF_HH   = 0x800000
OFF_DBG  = 0x1000000
WS_BYTES = 268435456
LOG2E = 1.4426950408889634

def f2u(x):
    import struct
    return struct.unpack("<I", struct.pack("<f", x))[0]

class VAlloc:
    def __init__(self, start=0, limit=256):
        self.n = start; self.limit = limit; self.hi = start
    def __call__(self, cnt=1, align=1):
        if cnt >= 2: align = max(align, 2)
        self.n = (self.n + align - 1) // align * align
        r = self.n; self.n += cnt; self.hi = max(self.hi, self.n)
        assert self.n <= self.limit, f"out of regs {self.n}"
        return r
    def mark(self): return self.n
    def reset(self, m): self.n = m

def vr(b, n=1):
    return f"v{b}" if n == 1 else f"v[{b}:{b+n-1}]"
def sr(b, n=1):
    return f"s{b}" if n == 1 else f"s[{b}:{b+n-1}]"

MF = "v_mfma_f32_32x32x16_bf16"

class Stamps:
    def __init__(self, a, on, kid=0):
        self.a = a; self.on = on; self.kid = kid
    def __call__(self, i):
        if self.on:
            self.a.e(f"s_memtime s[{64+2*i}:{65+2*i}]")
    def real(self, i):
        if self.on:
            self.a.e(f"s_memrealtime s[{64+2*i}:{65+2*i}]")
    def dump(self, s_ws, s_wave, vt, n=16):
        if not self.on: return
        a = self.a
        a.e("s_waitcnt lgkmcnt(0)")
        a.e(f"s_mov_b32 s96, s{s_ws}"); a.e(f"s_and_b32 s97, s{s_ws+1}, 0xffff"); a.e(f"s_mov_b32 s98, {WS_BYTES}"); a.e("s_mov_b32 s99, 0x20000")
        a.e(f"s_lshl_b32 s100, s2, 3"); a.e(f"s_add_u32 s100, s100, s{s_wave}"); a.e("s_lshl_b32 s100, s100, 6")
        a.e(f"s_add_u32 s100, s100, {OFF_DBG + self.kid*0x40000}")
        a.e(f"v_mov_b32 v{vt}, 0")
        for i in range(n):
            a.e(f"v_mov_b32 v{vt+1}, s{64+2*i}")
            a.e(f"buffer_store_dword v{vt+1}, v{vt}, s[96:99], s100 offen offset:{4*i}")

def gen_k1(a, dbg=False):
    name = "k1_kernel"
    T = Stamps(a, dbg, 0)
    NST = 5; SLOT = 28672; XB = 16384
    STAT = 0; CS = 1024; WPHI = 2560; ZERO = 3584
    RB = 4096
    QX = RB; PHIK = RB + 8192; VV = RB + 24576
    LDS = RB + NST * SLOT
    kernel_begin(a, name)
    S_X, S_W, S_PHI = 4, 6, 8
    S_DBG, S_WS = 12, 14
    SRD_X, SRD_W, SRD_P, SRD_WS, SRD_D = 16, 20, 24, 28, 32
    s_wave, s_rb, s_hp, s_rot = 36, 37, 38, 39
    s_t0, s_t1, s_t2, s_t3 = 40, 41, 42, 43
    s_slot, s_xoff, s_woff, s_xl, s_wl, s_stage = 44, 45, 46, 47, 48, 49
    s_j = 50
    s_role = 51
    s_c0 = 52
    a.e("s_cmp_ge_u32 s2, 256")
    a.e("s_cbranch_scc1 K1_END")
    T.real(15); T(0)
    a.e(f"s_load_dwordx4 s[4:7], s[0:1], 0")
    a.e(f"s_load_dwordx2 s[8:9], s[0:1], 16")
    a.e(f"s_load_dwordx4 s[12:15], s[0:1], 72")
    a.e("v_lshrrev_b32 v1, 6, v0")
    a.e("v_and_b32 v0, 63, v0")
    a.e(f"v_readfirstlane_b32 s{s_wave}, v1")
    a.e(f"s_and_b32 s{s_t0}, s2, 7")
    a.e(f"s_lshr_b32 s{s_t1}, s2, 3")
    a.e(f"s_and_b32 s{s_rb}, s{s_t0}, 3")
    a.e(f"s_lshl_b32 s{s_rb}, s{s_rb}, 2")
    a.e(f"s_and_b32 s{s_t2}, s{s_t1}, 3")
    a.e(f"s_add_u32 s{s_rb}, s{s_rb}, s{s_t2}")
    a.e(f"s_lshr_b32 s{s_hp}, s{s_t0}, 2")
    a.e(f"s_lshl_b32 s{s_hp}, s{s_hp}, 3")
    a.e(f"s_lshr_b32 s{s_t2}, s{s_t1}, 2")
    a.e(f"s_add_u32 s{s_hp}, s{s_hp}, s{s_t2}")
    a.e(f"s_and_b32 s{s_rot}, s{s_t1}, 3")
    a.e(f"s_lshl_b32 s{s_rot}, s{s_rot}, 1")
    a.e(f"s_add_u32 s{s_rot}, s{s_rot}, s{s_t2}")
    a.e(f"s_and_b32 s{s_rot}, s{s_rot}, 7")
    a.e(f"s_and_b32 s{s_j}, s{s_wave}, 3")
    a.e(f"s_cmp_ge_u32 s{s_wave}, 4")
    a.e("s_cbranch_scc0 K1_CONS")

    V = VAlloc(2)
    v_wa = V(8, 4)
    v_x0 = V(8, 4)
    v_p = V(16, 4)
    v_en = V(16, 4)
    v_pk = V(16, 4)
    v_c = V(1)
    v_rstd = V(1)
    v_tmp = V(8, 2)
    common_end = V.mark()

    H = VAlloc(common_end)
    v_xo = H(4); v_wo = H(3)
    v_xa = H(4)
    v_wa_addr = H(1)
    v_xf = H(16, 4)
    v_wf = H(12, 4)
    v_ss = H(2); v_sq = H(2); v_cs = H(3)
    v_one = H(1)
    v_h0 = H(4)
    a.c("---- helper prologue: DMA offsets")
    a.e(f"v_lshrrev_b32 v{v_h0}, 3, v0")
    a.e(f"v_lshlrev_b32 v{v_h0}, 10, v{v_h0}")
    a.e(f"v_and_b32 v{v_h0+1}, 7, v0")
    a.e(f"v_lshrrev_b32 v{v_h0+2}, 4, v0")
    a.e(f"v_xor_b32 v{v_h0+1}, v{v_h0+1}, v{v_h0+2}")
    a.e(f"v_lshl_add_u32 v{v_xo}, v{v_h0+1}, 4, v{v_h0}")
    a.e(f"v_xor_b32 v{v_xo+1}, 64, v{v_xo}")
    a.e(f"v_add_u32 v{v_xo+1}, 8192, v{v_xo+1}")
    a.e(f"v_add_u32 v{v_xo+2}, 16384, v{v_xo}")
    a.e(f"v_add_u32 v{v_xo+3}, 16384, v{v_xo+1}")
    for i in range(3):
        a.e(f"v_add_u32 v{v_h0}, {64*i}, v0")
        a.e(f"v_mul_u32_u24 v{v_h0+1}, 171, v{v_h0}")
        a.e(f"v_lshrrev_b32 v{v_h0+1}, 11, v{v_h0+1}")
        a.e(f"v_mul_u32_u24 v{v_h0+2}, 12, v{v_h0+1}")
        a.e(f"v_sub_u32 v{v_h0}, v{v_h0}, v{v_h0+2}")
        a.e(f"v_lshrrev_b32 v{v_h0+2}, 2, v{v_h0}")
        a.e(f"v_and_b32 v{v_h0}, 3, v{v_h0}")
        a.e(f"v_mul_u32_u24 v{v_h0+1}, 3072, v{v_h0+1}")
        a.e(f"v_lshl_add_u32 v{v_h0+1}, v{v_h0+2}, 10, v{v_h0+1}")
        a.e(f"v_lshl_add_u32 v{v_wo+i}, v{v_h0}, 4, v{v_h0+1}")
    a.e("s_waitcnt lgkmcnt(0)")
    srd(a, SRD_X, S_X, 2048*1024)
    srd(a, SRD_W, S_W, 512*3072)
    srd(a, SRD_P, S_PHI, 32*512)
    s_xb, s_wb = s_t0, s_t1
    a.e(f"s_lshl_b32 s{s_xb}, s{s_rb}, 2")
    a.e(f"s_add_u32 s{s_xb}, s{s_xb}, s{s_j}")
    a.e(f"s_lshl_b32 s{s_xb}, s{s_xb}, 15")
    a.e(f"s_mul_i32 s{s_wb}, s{s_j}, {16*3072}")
    a.e(f"s_lshl_b32 s{s_t2}, s{s_hp}, 6")
    a.e(f"s_add_u32 s{s_wb}, s{s_wb}, s{s_t2}")
    a.e(f"s_lshl_b32 s{s_xl}, s{s_j}, 12")
    a.e(f"s_mul_i32 s{s_wl}, s{s_j}, 3072")
    a.e(f"s_add_u32 s{s_wl}, s{s_wl}, {XB}")
    a.e(f"s_mov_b32 m0, {WPHI}")
    a.e(f"v_lshlrev_b32 v{v_h0}, 4, v0")
    a.e(f"s_lshl_b32 s{s_t2}, s{s_hp}, 10")
    a.e(f"buffer_load_dwordx4 v{v_h0}, s[{SRD_P}:{SRD_P+3}], s{s_t2} offen lds")
    s_kst = s_t3
    a.e(f"s_mov_b32 s{s_kst}, s{s_rot}")
    def issue(slot_expr_sgpr):
        a.e(f"s_lshl_b32 s{s_xoff}, s{s_kst}, 7")
        a.e(f"s_add_u32 s{s_xoff}, s{s_xoff}, s{s_xb}")
        a.e(f"s_mul_i32 s{s_woff}, s{s_kst}, {64*3072}")
        a.e(f"s_add_u32 s{s_woff}, s{s_woff}, s{s_wb}")
        a.e(f"s_add_u32 s{s_c0}, s{slot_expr_sgpr}, s{s_xl}")
        for i in range(4):
            a.e(f"s_add_u32 m0, s{s_c0}, {i*1024}")
            if i == 0:
                a.e(f"s_add_u32 s{s_c0+1}, s{slot_expr_sgpr}, s{s_wl}")
            else:
                a.e("s_nop 0")
            a.e(f"buffer_load_dwordx4 v{v_xo+i}, s[{SRD_X}:{SRD_X+3}], s{s_xoff} offen lds")
        for i in range(3):
            a.e(f"s_add_u32 m0, s{s_c0+1}, {i*1024}")
            if i == 0:
                a.e(f"s_add_u32 s{s_kst}, s{s_kst}, 1")
            elif i == 1:
                a.e(f"s_and_b32 s{s_kst}, s{s_kst}, 7")
            else:
                a.e("s_nop 0")
            a.e(f"buffer_load_dwordx4 v{v_wo+i}, s[{SRD_W}:{SRD_W+3}], s{s_woff} offen lds")
    for s in range(NST):
        a.e(f"s_mov_b32 s{s_slot}, {RB+s*SLOT}")
        issue(s_slot)
    T(1)
    a.e(f"v_and_b32 v{v_h0}, 31, v0")
    a.e(f"v_lshrrev_b32 v{v_h0+1}, 5, v0")
    a.e(f"v_lshrrev_b32 v{v_h0+2}, 1, v{v_h0}")
    a.e(f"v_and_b32 v{v_h0+2}, 7, v{v_h0+2}")
    a.e(f"v_xor_b32 v{v_h0+1}, v{v_h0+1}, v{v_h0+2}")
    a.e(f"v_lshlrev_b32 v{v_h0}, 7, v{v_h0}")
    a.e(f"v_lshl_add_u32 v{v_xa}, v{v_h0+1}, 4, v{v_h0}")
    a.e(f"v_add_u32 v{v_xa}, s{s_xl}, v{v_xa}")
    a.e(f"v_add_u32 v{v_xa}, {RB}, v{v_xa}")
    for t in range(1, 4):
        a.e(f"v_xor_b32 v{v_xa+t}, {t<<5}, v{v_xa}")
    def w_addr(dst, tmp):
        a.e(f"v_lshrrev_b32 v{tmp}, 5, v0")
        a.e(f"v_lshlrev_b32 v{tmp}, 3, v{tmp}")
        a.e(f"v_bfe_u32 v{tmp+1}, v0, 2, 2")
        a.e(f"v_add_u32 v{tmp}, v{tmp}, v{tmp+1}")
        a.e(f"v_mul_u32_u24 v{tmp}, 192, v{tmp}")
        a.e(f"v_and_b32 v{tmp+1}, 1, v0")
        a.e(f"v_lshl_add_u32 v{tmp}, v{tmp+1}, 5, v{tmp}")
        a.e(f"v_bfe_u32 v{tmp+1}, v0, 1, 1")
        a.e(f"v_bfe_u32 v{tmp+2}, v0, 4, 1")
        a.e(f"v_lshl_add_u32 v{tmp+1}, v{tmp+2}, 1, v{tmp+1}")
        a.e(f"v_lshl_add_u32 v{dst}, v{tmp+1}, 3, v{tmp}")
        a.e(f"v_add_u32 v{dst}, {RB+XB}, v{dst}")
    w_addr(v_wa_addr, v_h0)
    a.e(f"s_mul_i32 s{s_t2}, s{s_j}, 3072")
    a.e(f"v_add_u32 v{v_wa_addr}, s{s_t2}, v{v_wa_addr}")
    a.e(f"v_mov_b32 v{v_one}, 0x3f803f80")
    for r in (v_ss, v_ss+1, v_sq, v_sq+1, v_cs, v_cs+1, v_cs+2):
        a.e(f"v_mov_b32 v{r}, 0")
    for s in range(8):
        issued = min(8, NST + max(0, s - 1))
        younger = issued - (s + 1)
        a.e(f"s_waitcnt vmcnt({7*younger}) lgkmcnt(0)")
        a.e("s_barrier")
        T(2+s)
        for t in range(4):
            a.e(f"ds_read_b128 {vr(v_xf+4*t,4)}, v{v_xa+t}")
        for cb in range(3):
            a.e(f"ds_read_b64_tr_b16 {vr(v_wf+4*cb,2)}, v{v_wa_addr} offset:{cb*64}")
            a.e(f"ds_read_b64_tr_b16 {vr(v_wf+4*cb+2,2)}, v{v_wa_addr} offset:{cb*64+768}")
        if s >= 1 and s + NST - 1 < 8:
            a.e(f"s_mov_b32 s{s_slot}, {RB+((s-1)%NST)*SLOT}")
            issue(s_slot)
        delta = SLOT if (s + 1) % NST != 0 else -(NST - 1) * SLOT
        a.e("s_waitcnt lgkmcnt(6)")
        for t in range(4):
            for r in range(4):
                a.e(f"v_dot2_f32_bf16 v{v_ss+(r&1)}, v{v_xf+4*t+r}, v{v_one}, v{v_ss+(r&1)}")
                a.e(f"v_dot2_f32_bf16 v{v_sq+(r&1)}, v{v_xf+4*t+r}, v{v_xf+4*t+r}, v{v_sq+(r&1)}")
        a.e("s_waitcnt lgkmcnt(0)")
        for r in range(4):
            for cb in range(3):
                a.e(f"v_dot2_f32_bf16 v{v_cs+cb}, v{v_wf+4*cb+r}, v{v_one}, v{v_cs+cb}")
        if s < 7:
            for t in range(4):
                a.e(f"v_add_u32 v{v_xa+t}, {delta & 0xffffffff:#x}, v{v_xa+t}")
            a.e(f"v_add_u32 v{v_wa_addr}, {delta & 0xffffffff:#x}, v{v_wa_addr}")
    def xhalf_sum(reg, tmp):
        a.e(f"v_mov_b32 v{tmp}, v{reg}")
        a.e("s_nop 1")
        a.e(f"v_permlane32_swap_b32 v{reg}, v{tmp}")
        a.e("s_nop 1")
        a.e(f"v_add_f32 v{reg}, v{reg}, v{tmp}")
    a.e(f"v_add_f32 v{v_ss}, v{v_ss}, v{v_ss+1}")
    a.e(f"v_add_f32 v{v_sq}, v{v_sq}, v{v_sq+1}")
    xhalf_sum(v_ss, v_h0); xhalf_sum(v_sq, v_h0+1)
    for cb in range(3): xhalf_sum(v_cs+cb, v_h0+2)
    a.e(f"v_mul_f32 v{v_ss}, {f2u(1/512):#x}, v{v_ss}")
    a.e(f"v_mul_f32 v{v_sq}, {f2u(1/512):#x}, v{v_sq}")
    a.e(f"v_fma_f32 v{v_sq}, -v{v_ss}, v{v_ss}, v{v_sq}")
    a.e(f"v_max_f32 v{v_sq}, 0, v{v_sq}")
    a.e(f"v_add_f32 v{v_sq}, {f2u(1e-5):#x}, v{v_sq}")
    a.e(f"v_rsq_f32 v{v_ss+1}, v{v_sq}")
    a.e(f"v_and_b32 v{v_h0}, 31, v0")
    a.e(f"s_lshl_b32 s{s_t2}, s{s_j}, 8")
    a.e(f"v_lshlrev_b32 v{v_h0+1}, 3, v{v_h0}")
    a.e(f"v_add_u32 v{v_h0+1}, s{s_t2}, v{v_h0+1}")
    a.e(f"v_mov_b32 v{v_rstd}, v{v_ss+1}")
    a.e(f"ds_write_b64 v{v_h0+1}, {vr(v_ss,2)} offset:{STAT}")
    a.e(f"s_lshl_b32 s{s_t2}, s{s_j}, 2")
    a.e(f"v_lshlrev_b32 v{v_h0+1}, 4, v{v_h0}")
    a.e(f"v_add_u32 v{v_h0+1}, s{s_t2}, v{v_h0+1}")
    for cb in range(3):
        a.e(f"ds_write_b32 v{v_h0+1}, v{v_cs+cb} offset:{CS + cb*512}")
    a.e(f"v_mul_f32 v{v_c}, {f2u(LOG2E):#x}, v{v_rstd}")
    def wphi_frags(tmp):
        a.e(f"v_lshrrev_b32 v{tmp}, 5, v0")
        a.e(f"v_bfe_u32 v{tmp+1}, v0, 2, 2")
        a.e(f"v_lshlrev_b32 v{tmp+1}, 5, v{tmp+1}")
        a.e(f"v_lshl_add_u32 v{tmp+1}, v{tmp}, 9, v{tmp+1}")
        a.e(f"v_bfe_u32 v{tmp+2}, v0, 1, 1")
        a.e(f"v_bfe_u32 v{tmp+3}, v0, 4, 1")
        a.e(f"v_lshl_add_u32 v{tmp+2}, v{tmp+3}, 1, v{tmp+2}")
        a.e(f"v_lshl_add_u32 v{tmp+1}, v{tmp+2}, 3, v{tmp+1}")
        a.e(f"v_add_u32 v{tmp+1}, {WPHI}, v{tmp+1}")
        a.e(f"v_and_b32 v{tmp+2}, 1, v0")
        a.e(f"v_cmp_eq_u32 vcc, v{tmp+2}, v{tmp}")
        a.e(f"v_mov_b32 v{tmp+3}, {ZERO}")
        a.e("s_nop 0")
        for k in range(4):
            off = (8*(k>>1) + 4*(k&1)) * 32
            a.e(f"v_add_u32 v{tmp+2}, {off}, v{tmp+1}")
            a.e(f"v_cndmask_b32 v{tmp+2}, v{tmp+3}, v{tmp+2}, vcc")
            a.e(f"ds_read_b64_tr_b16 {vr(v_wa+4*(k>>1)+2*(k&1),2)}, v{tmp+2}")
    wphi_frags(v_tmp)
    a.e("s_waitcnt lgkmcnt(0)")
    T(10)
    a.e("s_barrier")
    a.e(f"s_lshl_b32 s{s_t2}, s{s_j}, 11")
    a.e(f"v_lshlrev_b32 v{v_h0}, 4, v0")
    a.e(f"v_add_u32 v{v_h0}, s{s_t2}, v{v_h0}")
    a.e(f"s_mov_b32 s{s_role}, 1")
    a.e("s_barrier")
    T(11)
    a.e(f"ds_read_b128 {vr(v_x0,4)}, v{v_h0} offset:{QX}")
    a.e(f"ds_read_b128 {vr(v_x0+4,4)}, v{v_h0} offset:{QX+1024}")
    a.e("s_waitcnt lgkmcnt(0)")
    a.e("s_branch K1_SOFTMAX")

    a.lab("K1_CONS")
    C = VAlloc(common_end)
    acc = C(48, 4)
    v_xa = C(4)
    v_wad = C(1)
    fx = C(8, 4)
    fw = C(24, 4)
    v_t = C(8, 4)
    aug_x = C(4, 4); aug_w = C(12, 4)
    a.c("---- consumer prologue")
    a.e("s_waitcnt lgkmcnt(0)")
    srd(a, SRD_WS, S_WS, WS_BYTES)
    srd(a, SRD_D, S_DBG, 256)
    a.e(f"v_mov_b32 v{v_t}, 0"); a.e(f"v_mov_b32 v{v_t+1}, 0"); a.e(f"v_mov_b32 v{v_t+2}, 0"); a.e(f"v_mov_b32 v{v_t+3}, 0")
    a.e(f"v_mov_b32 v{v_t+4}, {ZERO}")
    a.e(f"ds_write_b128 v{v_t+4}, {vr(v_t,4)}")
    a.e(f"s_cmp_eq_u32 s{s_wave}, 0")
    a.e("s_cbranch_scc0 K1_NOZERO")
    a.e(f"s_lshl_b32 s{s_t2}, s{s_hp}, 2")
    a.e(f"v_mov_b32 v{v_t+4}, s{s_t2}")
    a.e(f"v_mov_b32 v{v_t+5}, 1")
    a.e(f"v_cmp_eq_u32 vcc, 0, v0")
    a.e(f"s_and_saveexec_b64 s[{s_c0}:{s_c0+1}], vcc")
    a.e(f"buffer_atomic_add v{v_t+5}, v{v_t+4}, s[{SRD_D}:{SRD_D+3}], 0 offen sc0")
    a.e("s_waitcnt vmcnt(0)")
    a.e(f"s_mov_b64 exec, s[{s_c0}:{s_c0+1}]")
    a.e("s_nop 0")
    a.e(f"v_readfirstlane_b32 s{s_t2}, v{v_t+5}")
    a.e("s_nop 3")
    a.e(f"s_cmp_eq_u32 s{s_t2}, 0")
    a.e("s_cbranch_scc0 K1_NOZERO")
    a.e(f"s_mul_i32 s{s_t2}, s{s_hp}, 4352")
    a.e(f"s_add_u32 s{s_t2}, s{s_t2}, {OFF_KV}")
    a.e(f"v_lshlrev_b32 v{v_t+4}, 4, v0")
    for i in range(4):
        a.e(f"buffer_store_dwordx4 {vr(v_t,4)}, v{v_t+4}, s[{SRD_WS}:{SRD_WS+3}], s{s_t2} offen offset:{i*1024} sc1")
    a.e(f"v_cmp_gt_u32 vcc, 16, v0")
    a.e(f"s_and_saveexec_b64 s[{s_c0}:{s_c0+1}], vcc")
    a.e(f"s_add_u32 s{s_t2}, s{s_t2}, 4096")
    a.e(f"buffer_store_dwordx4 {vr(v_t,4)}, v{v_t+4}, s[{SRD_WS}:{SRD_WS+3}], s{s_t2} offen sc1")
    a.e("s_waitcnt vmcnt(0)")
    a.e(f"v_cmp_eq_u32 vcc, 0, v0")
    a.e(f"s_and_b64 exec, exec, vcc")
    a.e(f"s_lshl_b32 s{s_t2}, s{s_hp}, 2")
    a.e(f"v_mov_b32 v{v_t+4}, s{s_t2}")
    a.e(f"v_mov_b32 v{v_t+5}, 1")
    a.e(f"buffer_store_dword v{v_t+5}, v{v_t+4}, s[{SRD_D}:{SRD_D+3}], 0 offen offset:64 sc1")
    a.e(f"s_mov_b64 exec, s[{s_c0}:{s_c0+1}]")
    a.lab("K1_NOZERO")
    a.e(f"v_and_b32 v{v_t}, 31, v0")
    a.e(f"v_lshrrev_b32 v{v_t+1}, 5, v0")
    a.e(f"v_lshrrev_b32 v{v_t+2}, 1, v{v_t}")
    a.e(f"v_and_b32 v{v_t+2}, 7, v{v_t+2}")
    a.e(f"v_xor_b32 v{v_t+1}, v{v_t+1}, v{v_t+2}")
    a.e(f"v_lshlrev_b32 v{v_t}, 7, v{v_t}")
    a.e(f"v_lshl_add_u32 v{v_xa}, v{v_t+1}, 4, v{v_t}")
    a.e(f"s_lshl_b32 s{s_t2}, s{s_j}, 12")
    a.e(f"s_add_u32 s{s_t2}, s{s_t2}, {RB}")
    a.e(f"v_add_u32 v{v_xa}, s{s_t2}, v{v_xa}")
    for t in range(1, 4):
        a.e(f"v_xor_b32 v{v_xa+t}, {t<<5}, v{v_xa}")
    w_addr(v_wad, v_t)
    for i in range(48):
        a.e(f"v_mov_b32 v{acc+i}, 0")
    def rd_frags(t, buf):
        a.e(f"ds_read_b128 {vr(fx+4*buf,4)}, v{v_xa+t}")
        for cb in range(3):
            a.e(f"ds_read_b64_tr_b16 {vr(fw+12*buf+4*cb,2)}, v{v_wad} offset:{t*3072+cb*64}")
            a.e(f"ds_read_b64_tr_b16 {vr(fw+12*buf+4*cb+2,2)}, v{v_wad} offset:{t*3072+cb*64+768}")
    def mfmas(buf):
        for cb in range(3):
            a.e(f"{MF} {vr(acc+16*cb,16)}, {vr(fw+12*buf+4*cb,4)}, {vr(fx+4*buf,4)}, {vr(acc+16*cb,16)}")
    a.e("s_waitcnt lgkmcnt(0)")
    T(1)
    a.e("s_barrier")
    T(2)
    wphi_frags(v_tmp)
    rd_frags(0, 0)
    a.e(f"s_mov_b32 s{s_stage}, 0")
    a.e(f"s_mov_b32 s{s_slot}, 0")
    a.lab("K1_CLOOP")
    for t in range(3):
        rd_frags(t + 1, (t + 1) & 1)
        a.e("s_waitcnt lgkmcnt(7)")
        mfmas(t & 1)
    a.e(f"s_add_u32 s{s_stage}, s{s_stage}, 1")
    a.e(f"s_cmp_eq_u32 s{s_stage}, 8")
    a.e("s_cbranch_scc1 K1_CLAST")
    a.e(f"s_add_u32 s{s_slot}, s{s_slot}, 1")
    a.e(f"s_cmp_eq_u32 s{s_slot}, {NST}")
    a.e(f"s_mov_b32 s{s_t3}, {SLOT}")
    a.e(f"s_cmp_eq_u32 s{s_slot}, {NST}")
    a.e(f"s_cselect_b32 s{s_t2}, {(-(NST-1)*SLOT) & 0xffffffff:#x}, s{s_t3}")
    a.e(f"s_cselect_b32 s{s_slot}, 0, s{s_slot}")
    for t in range(4):
        a.e(f"v_add_u32 v{v_xa+t}, s{s_t2}, v{v_xa+t}")
    a.e(f"v_add_u32 v{v_wad}, s{s_t2}, v{v_wad}")
    a.e("s_waitcnt lgkmcnt(0)")
    a.e("s_barrier")
    rd_frags(0, 0)
    mfmas(1)
    a.e("s_branch K1_CLOOP")
    a.lab("K1_CLAST")
    a.e("s_waitcnt lgkmcnt(0)")
    mfmas(1)
    T(3)
    a.e("s_barrier")
    T(4)
    st = C(2, 2); csr = C(12, 4)
    a.e(f"v_and_b32 v{v_t}, 31, v0")
    a.e(f"s_lshl_b32 s{s_t2}, s{s_j}, 8")
    a.e(f"v_lshlrev_b32 v{v_t+1}, 3, v{v_t}")
    a.e(f"v_add_u32 v{v_t+1}, s{s_t2}, v{v_t+1}")
    a.e(f"ds_read_b64 {vr(st,2)}, v{v_t+1} offset:{STAT}")
    a.e(f"v_lshlrev_b32 v{v_t+1}, 4, v{v_t}")
    for cb in range(3):
        a.e(f"ds_read_b128 {vr(csr+4*cb,4)}, v{v_t+1} offset:{CS+cb*512}")
    a.e(f"v_cmp_gt_u32 vcc, 32, v0")
    a.e(f"v_mov_b32 v{aug_x+2}, 0"); a.e(f"v_mov_b32 v{aug_x+3}, 0")
    for cb in range(3):
        a.e(f"v_mov_b32 v{aug_w+4*cb+2}, 0"); a.e(f"v_mov_b32 v{aug_w+4*cb+3}, 0")
    a.e("s_waitcnt lgkmcnt(3)")
    a.e(f"v_mov_b32 v{v_rstd}, v{st+1}")
    a.e(f"v_cndmask_b32 v{v_t}, 0, v{st}, vcc")
    a.e(f"v_sub_f32 v{v_t}, 0, v{v_t}")
    a.e(f"v_cvt_pk_bf16_f32 v{aug_x}, v{v_t}, v{v_t}")
    a.e(f"v_lshlrev_b32 v{v_t+1}, 16, v{aug_x}")
    a.e(f"v_sub_f32 v{v_t+1}, v{v_t}, v{v_t+1}")
    a.e(f"v_cvt_pk_bf16_f32 v{aug_x+1}, v{v_t+1}, 0")
    a.e(f"v_mul_f32 v{v_c}, {f2u(LOG2E):#x}, v{v_rstd}")
    a.e("s_waitcnt lgkmcnt(0)")
    for cb in range(3):
        b = csr + 4*cb
        a.e(f"v_add_f32 v{b}, v{b}, v{b+1}")
        a.e(f"v_add_f32 v{b+2}, v{b+2}, v{b+3}")
        a.e(f"v_add_f32 v{b}, v{b}, v{b+2}")
        a.e(f"v_cndmask_b32 v{b}, 0, v{b}, vcc")
        a.e(f"v_cvt_pk_bf16_f32 v{aug_w+4*cb+1}, v{b}, 0")
        a.e(f"v_lshlrev_b32 v{b+1}, 16, v{aug_w+4*cb+1}")
        a.e(f"v_sub_f32 v{b+1}, v{b}, v{b+1}")
        a.e(f"v_cvt_pk_bf16_f32 v{aug_w+4*cb}, v{b}, v{b+1}")
    a.e("s_nop 1")
    for cb in range(3):
        a.e(f"{MF} {vr(acc+16*cb,16)}, {vr(aug_w+4*cb,4)}, {vr(aug_x,4)}, {vr(acc+16*cb,16)}")
    a.e(f"s_lshl_b32 s{s_t2}, s{s_j}, 11")
    a.e(f"v_lshlrev_b32 v{v_t}, 4, v0")
    a.e(f"v_add_u32 v{v_t}, s{s_t2}, v{v_t}")
    a.e("s_nop 7"); a.e("s_nop 1")
    for i in range(8):
        a.e(f"v_cvt_pk_bf16_f32 v{v_x0+i}, v{acc+2*i}, v{acc+2*i+1}")
    a.e(f"ds_write_b128 v{v_t}, {vr(v_x0,4)} offset:{QX}")
    a.e(f"ds_write_b128 v{v_t}, {vr(v_x0+4,4)} offset:{QX+1024}")
    a.e("s_waitcnt lgkmcnt(0)")
    T(5)
    a.e("s_barrier")
    T(6)
    for i in range(8):
        a.e(f"v_cvt_pk_bf16_f32 v{v_x0+i}, v{acc+16+2*i}, v{acc+16+2*i+1}")
    for i in range(16):
        a.e(f"v_mul_f32 v{acc+32+i}, v{v_rstd}, v{acc+32+i}")
    for i in range(8):
        a.e(f"v_cvt_pk_bf16_f32 v{acc+32+i}, v{acc+32+2*i}, v{acc+32+2*i+1}")
    a.e(f"v_and_b32 v{v_t}, 31, v0")
    a.e(f"v_lshrrev_b32 v{v_t+1}, 5, v0")
    a.e(f"v_lshlrev_b32 v{v_t}, 7, v{v_t}")
    a.e(f"s_lshl_b32 s{s_t2}, s{s_j}, 12")
    a.e(f"v_add_u32 v{v_t}, s{s_t2}, v{v_t}")
    a.e(f"v_lshl_add_u32 v{v_t+2}, v{v_t+1}, 5, v{v_t}")
    a.e(f"ds_write_b128 v{v_t+2}, {vr(acc+32,4)} offset:{VV}")
    a.e(f"ds_write_b128 v{v_t+2}, {vr(acc+36,4)} offset:{VV+16}")
    a.e(f"v_lshl_add_u32 v{v_t+2}, v{v_t+1}, 4, v{v_t}")
    for i in range(4):
        a.e(f"v_mov_b32 v{v_t+4+i}, 0x3f803f80")
    a.e(f"ds_write_b128 v{v_t+2}, {vr(v_t+4,4)} offset:{VV+64}")
    a.e(f"s_mov_b32 s{s_role}, 0")

    a.lab("K1_SOFTMAX")
    a.e("s_nop 1")
    a.e(f"{MF} {vr(v_p,16)}, {vr(v_wa,4)}, {vr(v_x0,4)}, 0")
    a.e(f"{MF} {vr(v_p,16)}, {vr(v_wa+4,4)}, {vr(v_x0+4,4)}, {vr(v_p,16)}")
    a.e("s_nop 15")
    mx, mn = v_tmp, v_tmp + 1
    a.e(f"v_max3_f32 v{mx}, v{v_p}, v{v_p+1}, v{v_p+2}")
    a.e(f"v_min3_f32 v{mn}, v{v_p}, v{v_p+1}, v{v_p+2}")
    for i in range(3, 15, 2):
        a.e(f"v_max3_f32 v{mx}, v{mx}, v{v_p+i}, v{v_p+i+1}")
        a.e(f"v_min3_f32 v{mn}, v{mn}, v{v_p+i}, v{v_p+i+1}")
    a.e(f"v_max_f32 v{mx}, v{mx}, v{v_p+15}")
    a.e(f"v_min_f32 v{mn}, v{mn}, v{v_p+15}")
    a.e(f"v_mul_f32 v{mx}, v{mx}, v{v_c}")
    a.e(f"v_mul_f32 v{mn}, v{mn}, v{v_c}")
    for i in range(16):
        a.e(f"v_fma_f32 v{v_en+i}, -v{v_p+i}, v{v_c}, v{mn}")
        a.e(f"v_fma_f32 v{v_p+i}, v{v_p+i}, v{v_c}, -v{mx}")
    for i in range(16):
        a.e(f"v_exp_f32 v{v_p+i}, v{v_p+i}")
        a.e(f"v_exp_f32 v{v_en+i}, v{v_en+i}")
    sp, sn = v_tmp + 2, v_tmp + 4
    a.e(f"v_pk_add_f32 {vr(sp,2)}, {vr(v_p,2)}, {vr(v_p+2,2)}")
    a.e(f"v_pk_add_f32 {vr(sn,2)}, {vr(v_en,2)}, {vr(v_en+2,2)}")
    for i in range(4, 16, 2):
        a.e(f"v_pk_add_f32 {vr(sp,2)}, {vr(sp,2)}, {vr(v_p+i,2)}")
        a.e(f"v_pk_add_f32 {vr(sn,2)}, {vr(sn,2)}, {vr(v_en+i,2)}")
    a.e(f"v_add_f32 v{sp}, v{sp}, v{sp+1}")
    a.e(f"v_add_f32 v{sn}, v{sn}, v{sn+1}")
    a.e(f"v_rcp_f32 v{sp}, v{sp}")
    a.e(f"v_rcp_f32 v{sn}, v{sn}")
    a.e("s_nop 0")
    for i in range(0, 16, 2):
        a.e(f"v_pk_mul_f32 {vr(v_p+i,2)}, {vr(v_p+i,2)}, {vr(sp,2)} op_sel_hi:[1,0]")
        a.e(f"v_pk_mul_f32 {vr(v_en+i,2)}, {vr(v_en+i,2)}, {vr(sn,2)} op_sel_hi:[1,0]")
    for i in range(8):
        a.e(f"v_cvt_pk_bf16_f32 v{v_pk+i}, v{v_p+2*i}, v{v_p+2*i+1}")
        a.e(f"v_cvt_pk_bf16_f32 v{v_pk+8+i}, v{v_en+2*i}, v{v_en+2*i+1}")
    a.e(f"s_cmp_eq_u32 s{s_role}, 0")
    a.e("s_cbranch_scc1 K1_CONS2")
    srd(a, SRD_WS, S_WS, WS_BYTES)
    a.e(f"s_lshl_b32 s{s_t0}, s{s_rb}, 2")
    a.e(f"s_add_u32 s{s_t0}, s{s_t0}, s{s_j}")
    a.e(f"s_lshl_b32 s{s_t0}, s{s_t0}, 5")
    a.e(f"s_lshl_b32 s{s_t1}, s{s_hp}, 1")
    a.e(f"s_add_u32 s{s_t0}, s{s_t0}, s{s_t1}")
    a.e(f"s_lshl_b32 s{s_t0}, s{s_t0}, 11")
    a.e(f"s_add_u32 s{s_t0}, s{s_t0}, {OFF_PHIQ}")
    a.e(f"v_and_b32 v{v_tmp}, 31, v0")
    a.e(f"v_lshrrev_b32 v{v_tmp+1}, 5, v0")
    a.e(f"v_lshlrev_b32 v{v_tmp}, 4, v{v_tmp}")
    a.e(f"v_lshl_add_u32 v{v_tmp}, v{v_tmp+1}, 11, v{v_tmp}")
    for i in range(4):
        a.e(f"buffer_store_dwordx4 {vr(v_pk+4*i,4)}, v{v_tmp}, s[{SRD_WS}:{SRD_WS+3}], s{s_t0} offen offset:{(i>>1)*1024+(i&1)*512}")
    T(12)
    a.e("s_barrier")
    T(13)
    T.real(14)
    T.dump(S_WS, s_wave, v_tmp)
    a.e("s_endpgm")
    a.lab("K1_CONS2")
    t0 = v_tmp
    a.e(f"v_and_b32 v{t0}, 31, v0")
    a.e(f"v_bfe_u32 v{t0+1}, v0, 1, 1")
    a.e(f"v_lshlrev_b32 v{t0+1}, 2, v{t0+1}")
    a.e(f"v_bfe_u32 v{t0+2}, v0, 2, 1")
    a.e(f"v_lshl_or_b32 v{t0+1}, v{t0+2}, 1, v{t0+1}")
    a.e(f"v_and_b32 v{t0+2}, 1, v0")
    a.e(f"v_or_b32 v{t0+1}, v{t0+1}, v{t0+2}")
    a.e(f"v_lshrrev_b32 v{t0+2}, 5, v0")
    a.e(f"v_lshlrev_b32 v{t0+2}, 2, v{t0+2}")
    a.e(f"v_xor_b32 v{t0+1}, v{t0+1}, v{t0+2}")
    a.e(f"v_lshlrev_b32 v{t0}, 7, v{t0}")
    a.e(f"v_lshl_add_u32 v{t0}, v{t0+1}, 4, v{t0}")
    a.e(f"s_lshl_b32 s{s_t2}, s{s_j}, 12")
    a.e(f"v_add_u32 v{t0}, s{s_t2}, v{t0}")
    for i in range(4):
        if i:
            a.e(f"v_xor_b32 v{t0+1}, {i<<4}, v{t0}")
        a.e(f"ds_write_b128 v{t0 if i == 0 else t0+1}, {vr(v_pk+4*i,4)} offset:{PHIK}")
    a.e("s_waitcnt lgkmcnt(0)")
    T(7)
    a.e("s_barrier")
    T(8)
    a.e(f"s_cmp_ge_u32 s{s_j}, 2")
    a.e("s_cbranch_scc1 K1_END")
    kvacc = v_p
    fa = v_en; fb = v_en + 8
    a.e(f"v_lshrrev_b32 v{t0}, 5, v0")
    a.e(f"v_lshlrev_b32 v{t0}, 3, v{t0}")
    a.e(f"v_bfe_u32 v{t0+1}, v0, 2, 2")
    a.e(f"v_add_u32 v{t0}, v{t0}, v{t0+1}")
    a.e(f"v_lshlrev_b32 v{t0}, 7, v{t0}")
    a.e(f"v_and_b32 v{t0+2}, 3, v0")
    a.e(f"v_lshl_add_u32 v{t0+3}, v{t0+2}, 3, v{t0}")
    a.e(f"s_lshl_b32 s{s_t2}, s{s_j}, 5")
    a.e(f"v_mov_b32 v{t0+4}, s{s_t2}")
    a.e(f"v_bfe_u32 v{t0+5}, v0, 4, 1")
    a.e(f"v_cmp_eq_u32 vcc, 1, v{t0+5}")
    a.e("s_nop 1")
    a.e(f"v_cndmask_b32 v{t0+4}, v{t0+4}, 64, vcc")
    a.e(f"v_add_u32 v{t0+3}, v{t0+3}, v{t0+4}")
    a.e(f"v_lshrrev_b32 v{t0+4}, 1, v{t0+2}")
    a.e(f"v_lshl_add_u32 v{t0+4}, v{t0+5}, 1, v{t0+4}")
    a.e(f"s_lshl_b32 s{s_t2}, s{s_j}, 2")
    a.e(f"v_add_u32 v{t0+4}, s{s_t2}, v{t0+4}")
    a.e(f"v_bfe_u32 v{t0+5}, v{t0+1}, 1, 1")
    a.e(f"v_lshlrev_b32 v{t0+5}, 2, v{t0+5}")
    a.e(f"v_and_b32 v{t0+6}, 1, v{t0+1}")
    a.e(f"v_or_b32 v{t0+5}, v{t0+5}, v{t0+6}")
    a.e(f"v_xor_b32 v{t0+4}, v{t0+4}, v{t0+5}")
    a.e(f"v_lshl_add_u32 v{t0+4}, v{t0+4}, 4, v{t0}")
    a.e(f"v_and_b32 v{t0+5}, 1, v{t0+2}")
    a.e(f"v_lshl_add_u32 v{t0+4}, v{t0+5}, 3, v{t0+4}")
    a.e(f"v_xor_b32 v{t0+5}, 32, v{t0+4}")
    def kv_rd(u, buf):
        a.e(f"ds_read_b64_tr_b16 {vr(fa+4*buf,2)}, v{t0+3} offset:{VV+u*2048}")
        a.e(f"ds_read_b64_tr_b16 {vr(fa+4*buf+2,2)}, v{t0+3} offset:{VV+u*2048+512}")
        a.e(f"ds_read_b64_tr_b16 {vr(fb+4*buf,2)}, v{t0+4} offset:{PHIK+u*2048}")
        a.e(f"ds_read_b64_tr_b16 {vr(fb+4*buf+2,2)}, v{t0+5} offset:{PHIK+u*2048+512}")
    kv_rd(0, 0)
    for u in range(8):
        if u < 7:
            kv_rd(u + 1, (u + 1) & 1)
            a.e("s_waitcnt lgkmcnt(4)")
        else:
            a.e("s_waitcnt lgkmcnt(0)")
        a.e(f"{MF} {vr(kvacc,16)}, {vr(fa+4*(u&1),4)}, {vr(fb+4*(u&1),4)}, {'0' if u == 0 else vr(kvacc,16)}")
    T(9)
    a.e(f"s_lshl_b32 s{s_t2}, s{s_hp}, 2")
    a.e(f"v_mov_b32 v{t0}, s{s_t2}")
    a.lab("K1_POLL")
    a.e(f"buffer_load_dword v{t0+1}, v{t0}, s[{SRD_D}:{SRD_D+3}], 0 offen offset:64 sc1")
    a.e("s_waitcnt vmcnt(0)")
    a.e(f"v_readfirstlane_b32 s{s_t2}, v{t0+1}")
    a.e("s_nop 3")
    a.e(f"s_cmp_eq_u32 s{s_t2}, 0")
    a.e("s_cbranch_scc1 K1_POLL")
    T(10)
    a.e(f"s_lshl_b32 s{s_t2}, s{s_hp}, 1")
    a.e(f"s_add_u32 s{s_t2}, s{s_t2}, s{s_j}")
    a.e(f"s_mul_i32 s{s_t2}, s{s_t2}, {17*128}")
    a.e(f"s_add_u32 s{s_t2}, s{s_t2}, {OFF_KV}")
    a.e(f"v_and_b32 v{t0}, 31, v0")
    a.e(f"v_lshlrev_b32 v{t0}, 2, v{t0}")
    a.e(f"v_lshrrev_b32 v{t0+1}, 5, v0")
    a.e(f"v_lshl_add_u32 v{t0+2}, v{t0+1}, 9, v{t0}")
    for r in range(8):
        a.e(f"buffer_atomic_add_f32 v{kvacc+r}, v{t0+2}, s[{SRD_WS}:{SRD_WS+3}], s{s_t2} offen offset:{((r&3)+8*(r>>2))*128}")
    a.e(f"v_cmp_gt_u32 vcc, 32, v0")
    a.e(f"s_and_saveexec_b64 s[{s_c0}:{s_c0+1}], vcc")
    a.e(f"buffer_atomic_add_f32 v{kvacc+8}, v{t0}, s[{SRD_WS}:{SRD_WS+3}], s{s_t2} offen offset:{16*128}")
    if dbg:
        a.e(f"s_mov_b64 exec, -1")
        T(11)
        a.e("s_waitcnt vmcnt(0)")
        T(12)
        T.real(14)
        T.dump(S_WS, s_wave, v_tmp)
    a.lab("K1_END")
    a.e("s_endpgm")
    nv = max(H.hi, C.hi)
    kernel_desc(a, name, nv, 102 if dbg else 64, (nv + 3) // 4 * 4)
    return ("k1_kernel", 256, 512, LDS)

def build(kernels):
    a = Asm()
    body = Asm()
    body.raw('.amdgcn_target "amdgcn-amd-amdhsa--gfx950"')
    launches = []
    for g in kernels:
        launches.append(g(body))
    a.raw(HEADER.rstrip("\n"))
    for (n, grid, blk, lds) in launches:
        a.raw(f"; @launch kernel={n} grid=({grid},1,1) block=({blk},1,1) lds={lds}")
    return a.text() + body.text()

if __name__ == "__main__":
    out = sys.argv[1] if len(sys.argv) > 1 else "out.s"
    dbg = len(sys.argv) > 2 and sys.argv[2] == "dbg"
    open(out, "w").write(build([lambda b: gen_k1(b, dbg)]))
```

```python
from asmlib import *
import struct

OFF_KV   = 0x000000
OFF_PHIQ = 0x100000
OFF_H    = 0x500000
OFF_ST2  = 0x700000
OFF_HH   = 0x800000
OFF_DBG  = 0x1000000
WS_BYTES = 268435456
LOG2E = 1.4426950408889634
MF = "v_mfma_f32_32x32x16_bf16"

def f2u(x): return struct.unpack("<I", struct.pack("<f", x))[0]
def fx(x): return f"{f2u(x):#x}"

class VAlloc:
    def __init__(self, start=0, limit=256):
        self.n = start; self.limit = limit; self.hi = start
    def __call__(self, cnt=1, align=1):
        if cnt >= 2: align = max(align, 2)
        self.n = (self.n + align - 1) // align * align
        r = self.n; self.n += cnt; self.hi = max(self.hi, self.n)
        assert self.n <= self.limit, f"out of regs {self.n}"
        return r
    def mark(self): return self.n
    def reset(self, m): self.n = m

def vr(b, n=1): return f"v{b}" if n == 1 else f"v[{b}:{b+n-1}]"
def ar(b, n=1): return f"a{b}" if n == 1 else f"a[{b}:{b+n-1}]"
def sr(b, n=1): return f"s{b}" if n == 1 else f"s[{b}:{b+n-1}]"

class Cnt:
    def __init__(self, a, name, maxv):
        self.a = a; self.name = name; self.maxv = maxv
        self.q = []
    def op(self, instr, tag=None):
        self.a.e(instr); self.q.append(tag)
    def need(self, *tags):
        idx = -1
        for i, t in enumerate(self.q):
            if t in tags: idx = i
        if idx < 0: return
        n = len(self.q) - 1 - idx
        if n > self.maxv: n = self.maxv
        self.a.e(f"s_waitcnt {self.name}({n})")
        self.q = self.q[len(self.q) - n:] if n > 0 else []
    def drain(self):
        self.a.e(f"s_waitcnt {self.name}(0)"); self.q = []
    def forget(self): self.q = []

class Stamps:
    def __init__(self, a, on, kid=0):
        self.a = a; self.on = on; self.kid = kid
    def __call__(self, i):
        if self.on: self.a.e(f"s_memtime s[{64+2*i}:{65+2*i}]")
    def real(self, i):
        if self.on: self.a.e(f"s_memrealtime s[{64+2*i}:{65+2*i}]")
    def dump(self, s_ws, s_wave, vt, n=16):
        if not self.on: return
        a = self.a
        a.e("s_mov_b64 exec, -1")
        a.e("s_waitcnt lgkmcnt(0)")
        a.e(f"s_mov_b32 s96, s{s_ws}"); a.e(f"s_and_b32 s97, s{s_ws+1}, 0xffff"); a.e(f"s_mov_b32 s98, {WS_BYTES}"); a.e("s_mov_b32 s99, 0x20000")
        a.e(f"s_lshl_b32 s100, s2, 3"); a.e(f"s_add_u32 s100, s100, s{s_wave}"); a.e("s_lshl_b32 s100, s100, 6")
        a.e(f"s_add_u32 s100, s100, {OFF_DBG + self.kid*0x40000}")
        a.e(f"v_mov_b32 v{vt}, 0")
        for i in range(n):
            a.e(f"v_mov_b32 v{vt+1}, s{64+2*i}")
            a.e(f"buffer_store_dword v{vt+1}, v{vt}, s[96:99], s100 offen offset:{4*i}")

def xhalf_sum(a, reg, tmp):
    a.e(f"v_mov_b32 v{tmp}, v{reg}")
    a.e("s_nop 1")
    a.e(f"v_permlane32_swap_b32 v{reg}, v{tmp}")
    a.e("s_nop 1")
    a.e(f"v_add_f32 v{reg}, v{reg}, v{tmp}")

def split_aug_w(a, cs, dst, tmp):
    a.e(f"v_cvt_pk_bf16_f32 v{dst+1}, v{cs}, 0")
    a.e(f"v_lshlrev_b32 v{tmp}, 16, v{dst+1}")
    a.e(f"v_sub_f32 v{tmp}, v{cs}, v{tmp}")
    a.e(f"v_cvt_pk_bf16_f32 v{dst}, v{cs}, v{tmp}")

def split_aug_x(a, nm, dst, tmp):
    a.e(f"v_cvt_pk_bf16_f32 v{dst}, v{nm}, v{nm}")
    a.e(f"v_lshlrev_b32 v{tmp}, 16, v{dst}")
    a.e(f"v_sub_f32 v{tmp}, v{nm}, v{tmp}")
    a.e(f"v_cvt_pk_bf16_f32 v{dst+1}, v{tmp}, 0")

def interleave(a, mf, fill):
    n = len(mf); k = 0
    for i, m in enumerate(mf):
        m()
        upto = (len(fill) * (i + 1) + n - 1) // n
        while k < upto:
            fill[k](); k += 1

def conflicts_b128(addrs):
    groups = [list(range(0,4))+list(range(12,16))+list(range(20,28)), list(range(4,12))+list(range(16,20))+list(range(28,32))]
    groups += [[l+32 for l in g] for g in groups]
    worst = 1
    for g in groups:
        banks = {}
        for l in g:
            for d in range(4):
                b = ((addrs[l] // 4) + d) % 64
                banks.setdefault(b, set()).add(addrs[l] // 4 + d)
        worst = max(worst, max(len(x) for x in banks.values()))
    return worst
def conflicts_b64(addrs):
    worst = 1
    for g in (range(0,32), range(32,64)):
        banks = {}
        for l in g:
            for d in range(2):
                b = ((addrs[l] // 4) + d) % 64
                banks.setdefault(b, set()).add(addrs[l] // 4 + d)
        worst = max(worst, max(len(x) for x in banks.values()))
    return worst
```

```python
from glib import *

def gen_k2(a, dbg=False):
    name = "k2_kernel"
    T = Stamps(a, dbg, 1)
    WO = 0; KVB = 65536; RED = 0
    LDS = KVB + 4 * 8704
    kernel_begin(a, name)
    S_X, S_WO, S_DBG, S_WS = 4, 6, 12, 14
    SRD_X, SRD_WO, SRD_WS = 16, 20, 28
    s_w, s_rb, s_cb = 36, 37, 38
    s_t0, s_t1, s_t2, s_t3 = 40, 41, 42, 43
    a.e("s_cmp_ge_u32 s2, 256")
    a.e("s_cbranch_scc1 K2_END")
    T.real(15); T(0)
    a.e("s_load_dwordx2 s[4:5], s[0:1], 0")
    a.e("s_load_dwordx2 s[6:7], s[0:1], 24")
    a.e("s_load_dwordx2 s[14:15], s[0:1], 80")
    a.e("v_lshrrev_b32 v1, 6, v0")
    a.e("v_and_b32 v0, 63, v0")
    a.e(f"v_readfirstlane_b32 s{s_w}, v1")
    a.e(f"s_and_b32 s{s_t0}, s2, 7"); a.e(f"s_lshr_b32 s{s_t1}, s2, 3")
    a.e(f"s_lshl_b32 s{s_rb}, s{s_t0}, 2"); a.e(f"s_and_b32 s{s_t2}, s{s_t1}, 3"); a.e(f"s_add_u32 s{s_rb}, s{s_rb}, s{s_t2}")
    a.e(f"s_lshr_b32 s{s_cb}, s{s_t1}, 2")
    V = VAlloc(2)
    v_l16 = V(1); v_dma = V(1); v_kw = V(1); v_ka = V(1); v_wa0 = V(1); v_wa1 = V(1); v_t = V(8, 2)
    v_xr = V(8, 4)
    acc = V(64, 4)
    v_kv = V(68, 4)
    D = v_kv
    kA = V(16, 4)
    wA = V(16, 4)
    oF = V(8, 4)
    NV = V.hi
    PHI = 0
    a.e(f"v_lshlrev_b32 v{v_l16}, 4, v0")
    a.e(f"v_lshrrev_b32 v{v_t}, 3, v0"); a.e(f"v_lshlrev_b32 v{v_t}, 10, v{v_t}")
    a.e(f"v_bfe_u32 v{v_t+1}, v0, 4, 1"); a.e(f"v_lshlrev_b32 v{v_t+1}, 2, v{v_t+1}")
    a.e(f"v_and_b32 v{v_t+2}, 7, v0"); a.e(f"v_xor_b32 v{v_t+1}, v{v_t+1}, v{v_t+2}")
    a.e(f"v_lshl_add_u32 v{v_dma}, v{v_t+1}, 4, v{v_t}")
    a.e("s_waitcnt lgkmcnt(0)")
    srd(a, SRD_WS, S_WS, WS_BYTES); srd(a, SRD_WO, S_WO, 512*1024); srd(a, SRD_X, S_X, 2048*1024)
    VM = Cnt(a, "vmcnt", 63); LG = Cnt(a, "lgkmcnt", 15)
    a.e(f"s_mul_i32 s{s_t0}, s{s_w}, 17408"); a.e(f"s_add_u32 s{s_t0}, s{s_t0}, {OFF_KV}")
    for i in range(17):
        if i and i % 4 == 0: a.e(f"s_add_u32 s{s_t0}, s{s_t0}, 4096")
        VM.op(f"buffer_load_dwordx4 {vr(v_kv+4*i,4)}, v{v_l16}, s[{SRD_WS}:{SRD_WS+3}], s{s_t0} offen offset:{(i%4)*1024}", "kv")
    s_p0, s_p1, s_wo, s_m = s_t0, s_t1, s_t2, s_t3
    a.e(f"s_lshl_b32 s{s_p0}, s{s_rb}, 1"); a.e(f"s_lshl_b32 s{s_p0}, s{s_p0}, 5")
    a.e(f"s_lshl_b32 s44, s{s_w}, 3"); a.e(f"s_add_u32 s{s_p0}, s{s_p0}, s44")
    a.e(f"s_lshl_b32 s{s_p0}, s{s_p0}, 11"); a.e(f"s_add_u32 s{s_p0}, s{s_p0}, {OFF_PHIQ}")
    a.e(f"s_add_u32 s{s_p1}, s{s_p0}, {32*2048}")
    a.e(f"s_lshl_b32 s{s_wo}, s{s_w}, 17"); a.e(f"s_lshl_b32 s44, s{s_cb}, 7"); a.e(f"s_add_u32 s{s_wo}, s{s_wo}, s44")
    a.e(f"s_lshl_b32 s{s_m}, s{s_w}, 14")
    for hd in range(8):
        for tb in range(2):
            for s in range(2):
                sp = s_p0 if tb == 0 else s_p1
                VM.op(f"buffer_load_dwordx4 {ar(PHI+(hd*4+tb*2+s)*4,4)}, v{v_l16}, s[{SRD_WS}:{SRD_WS+3}], s{sp} offen offset:{(hd&1)*2048+s*1024}", ("phi", hd))
        if hd & 1:
            a.e(f"s_add_u32 s{s_p0}, s{s_p0}, 4096"); a.e(f"s_add_u32 s{s_p1}, s{s_p1}, 4096")
        for i in range(2):
            a.e(f"s_add_u32 m0, s{s_m}, {WO + (hd*2+i)*1024}")
            a.e("s_nop 0")
            VM.op(f"buffer_load_dwordx4 v{v_dma}, s[{SRD_WO}:{SRD_WO+3}], s{s_wo} offen lds", ("wo", hd))
            a.e(f"s_add_u32 s{s_wo}, s{s_wo}, 8192")
    T(1)
    a.e(f"v_and_b32 v{v_t}, 31, v0"); a.e(f"v_lshlrev_b32 v{v_t}, 10, v{v_t}")
    a.e(f"v_lshrrev_b32 v{v_t+1}, 5, v0"); a.e(f"v_lshl_add_u32 v{v_t}, v{v_t+1}, 4, v{v_t}")
    a.e(f"s_and_b32 s44, s{s_w}, 1"); a.e(f"s_lshl_b32 s45, s{s_rb}, 1"); a.e(f"s_add_u32 s45, s45, s44")
    a.e(f"s_lshl_b32 s46, s45, 15")
    a.e(f"s_lshr_b32 s47, s{s_w}, 1")
    a.e(f"s_lshl_b32 s48, s{s_cb}, 1"); a.e(f"s_add_u32 s48, s48, s47")
    a.e(f"s_lshl_b32 s49, s48, 6"); a.e(f"s_add_u32 s46, s46, s49")
    for i in range(2):
        VM.op(f"buffer_load_dwordx4 {vr(v_xr+4*i,4)}, v{v_t}, s[{SRD_X}:{SRD_X+3}], s46 offen offset:{32*i}", "x")
    a.e(f"s_mul_i32 s{s_t0}, s{s_w}, 8704"); a.e(f"s_add_u32 s{s_t0}, s{s_t0}, {KVB}")
    a.e(f"v_lshlrev_b32 v{v_kw}, 3, v0"); a.e(f"v_add_u32 v{v_kw}, s{s_t0}, v{v_kw}")
    a.e(f"v_and_b32 v{v_t+2}, 31, v0"); a.e(f"v_min_u32 v{v_t+2}, 16, v{v_t+2}"); a.e(f"v_lshlrev_b32 v{v_t+2}, 6, v{v_t+2}")
    a.e(f"v_lshrrev_b32 v{v_t+3}, 5, v0"); a.e(f"v_lshl_add_u32 v{v_t+2}, v{v_t+3}, 4, v{v_t+2}")
    a.e(f"v_add_u32 v{v_ka}, s{s_t0}, v{v_t+2}")
    a.e(f"v_lshrrev_b32 v{v_t+2}, 5, v0"); a.e(f"v_lshlrev_b32 v{v_t+2}, 2, v{v_t+2}")
    a.e(f"v_bfe_u32 v{v_t+3}, v0, 2, 2"); a.e(f"v_add_u32 v{v_t+2}, v{v_t+2}, v{v_t+3}")
    a.e(f"v_lshlrev_b32 v{v_t+2}, 7, v{v_t+2}")
    a.e(f"v_bfe_u32 v{v_t+3}, v0, 3, 1"); a.e(f"v_lshl_add_u32 v{v_t+2}, v{v_t+3}, 6, v{v_t+2}")
    a.e(f"v_bfe_u32 v{v_t+3}, v0, 4, 1"); a.e(f"v_lshl_add_u32 v{v_t+2}, v{v_t+3}, 5, v{v_t+2}")
    a.e(f"v_and_b32 v{v_t+3}, 1, v0"); a.e(f"v_lshl_add_u32 v{v_t+2}, v{v_t+3}, 4, v{v_t+2}")
    a.e(f"v_bfe_u32 v{v_t+3}, v0, 1, 1"); a.e(f"v_lshl_add_u32 v{v_t+2}, v{v_t+3}, 3, v{v_t+2}")
    a.e(f"s_lshl_b32 s{s_t0}, s{s_w}, 14")
    a.e(f"v_add_u32 v{v_wa0}, s{s_t0}, v{v_t+2}"); a.e(f"v_xor_b32 v{v_wa1}, 64, v{v_wa0}")
    for i in range(64): a.e(f"v_mov_b32 v{acc+i}, 0")
    VM.need("kv")
    T(2)
    for i in range(17):
        b = v_kv + 4*i
        a.e(f"v_cvt_pk_bf16_f32 v{b}, v{b}, v{b+1}"); a.e(f"v_cvt_pk_bf16_f32 v{b+1}, v{b+2}, v{b+3}")
        LG.op(f"ds_write_b64 v{v_kw}, {vr(b,2)} offset:{i*512}", "kw")
    LG.drain()
    def rd_k(hd):
        p = hd & 1
        for s in range(2):
            LG.op(f"ds_read_b128 {vr(kA+8*p+4*s,4)}, v{v_ka} offset:{hd*1088+s*32}", ("k", hd))
    def rd_w(hd):
        p = hd & 1
        VM.need(("wo", hd))
        for nb in range(2):
            va = v_wa0 if nb == 0 else v_wa1
            LG.op(f"ds_read_b64_tr_b16 {vr(wA+8*p+4*nb,2)}, v{va} offset:{WO+hd*2048}", ("w", hd))
            LG.op(f"ds_read_b64_tr_b16 {vr(wA+8*p+4*nb+2,2)}, v{va} offset:{WO+hd*2048+1024}", ("w", hd))
    def num(hd):
        p = hd & 1
        VM.need(("phi", hd)); LG.need(("k", hd))
        for s in range(2):
            for tb in range(2):
                d = D + 32*p + 16*tb
                a.e(f"{MF} {vr(d,16)}, {vr(kA+8*p+4*s,4)}, {ar(PHI+(hd*4+tb*2+s)*4,4)}, {'0' if s == 0 else vr(d,16)}")
    def fin(hd):
        p = hd & 1
        for tb in range(2):
            d = D + 32*p + 16*tb
            a.e(f"v_add_f32 v{d+8}, {fx(1e-6)}, v{d+8}")
            a.e(f"v_rcp_f32 v{d+8}, v{d+8}")
        a.e("s_nop 0")
        for tb in range(2):
            d = D + 32*p + 16*tb
            for i in range(0, 8, 2):
                a.e(f"v_pk_mul_f32 {vr(d+i,2)}, {vr(d+i,2)}, {vr(d+8,2)} op_sel_hi:[1,0]")
        for tb in range(2):
            d = D + 32*p + 16*tb
            for i in range(4):
                a.e(f"v_cvt_pk_bf16_f32 v{oF+4*tb+i}, v{d+2*i}, v{d+2*i+1}")
        LG.need(("w", hd))
        a.e("s_nop 1")
        for nb in range(2):
            for tb in range(2):
                ti = tb + 2*nb
                a.e(f"{MF} {vr(acc+16*ti,16)}, {vr(wA+8*p+4*nb,4)}, {vr(oF+4*tb,4)}, {vr(acc+16*ti,16)}")
    rd_k(0)
    for hd in range(8):
        if hd < 7: rd_k(hd + 1) if False else None
        num(hd)
        if hd < 7: rd_k(hd + 1)
        rd_w(hd)
        if hd >= 1: fin(hd - 1)
    a.e("s_nop 7"); a.e("s_nop 3")
    fin(7)
    T(3)
    a.e("s_barrier")
    a.e(f"s_lshl_b32 s{s_t0}, s{s_w}, 12")
    a.e(f"v_add_u32 v{v_t}, s{s_t0}, v{v_l16}")
    a.e("s_nop 7"); a.e("s_nop 3")
    for ti in range(4):
        for q in range(4):
            a.e(f"ds_write_b128 v{v_t}, {vr(acc+16*ti+4*q,4)} offset:{RED+ti*16384+q*1024}")
    a.e("s_waitcnt lgkmcnt(0)")
    a.e("s_barrier")
    T(4)
    a.e(f"s_lshl_b32 s{s_t0}, s{s_w}, 14")
    a.e(f"v_add_u32 v{v_t}, s{s_t0}, v{v_l16}")
    for sw in range(4):
        for q in range(4):
            a.e(f"ds_read_b128 {vr(acc+16*sw+4*q,4)}, v{v_t} offset:{RED+sw*4096+q*1024}")
    a.e("s_waitcnt vmcnt(0) lgkmcnt(0)")
    for i in range(0, 16, 2):
        a.e(f"v_pk_add_f32 {vr(acc+i,2)}, {vr(acc+i,2)}, {vr(acc+16+i,2)}")
        a.e(f"v_pk_add_f32 {vr(acc+32+i,2)}, {vr(acc+32+i,2)}, {vr(acc+48+i,2)}")
    for i in range(0, 16, 2):
        a.e(f"v_pk_add_f32 {vr(acc+i,2)}, {vr(acc+i,2)}, {vr(acc+32+i,2)}")
    for i in range(8):
        a.e(f"v_lshlrev_b32 v{v_t+2}, 16, v{v_xr+i}")
        a.e(f"v_and_b32 v{v_t+3}, 0xffff0000, v{v_xr+i}")
        a.e(f"v_add_f32 v{acc+2*i}, v{acc+2*i}, v{v_t+2}")
        a.e(f"v_add_f32 v{acc+2*i+1}, v{acc+2*i+1}, v{v_t+3}")
        a.e(f"v_cvt_pk_bf16_f32 v{v_xr+i}, v{acc+2*i}, v{acc+2*i+1}")
    a.e(f"s_lshl_b32 s{s_t0}, s45, 5"); a.e(f"s_lshl_b32 s{s_t1}, s48, 1"); a.e(f"s_add_u32 s{s_t0}, s{s_t0}, s{s_t1}")
    a.e(f"s_lshl_b32 s{s_t0}, s{s_t0}, 10"); a.e(f"s_add_u32 s{s_t0}, s{s_t0}, {OFF_H}")
    for i in range(2):
        a.e(f"buffer_store_dwordx4 {vr(v_xr+4*i,4)}, v{v_l16}, s[{SRD_WS}:{SRD_WS+3}], s{s_t0} offen offset:{i*1024}")
    a.e(f"v_mov_b32 v{v_t}, 0"); a.e(f"v_mov_b32 v{v_t+1}, 0"); a.e(f"v_mov_b32 v{v_t+2}, 0x3f803f80")
    for i in range(8):
        a.e(f"v_dot2_f32_bf16 v{v_t}, v{v_xr+i}, v{v_t+2}, v{v_t}")
        a.e(f"v_dot2_f32_bf16 v{v_t+1}, v{v_xr+i}, v{v_xr+i}, v{v_t+1}")
    xhalf_sum(a, v_t, v_t+3); xhalf_sum(a, v_t+1, v_t+4)
    a.e(f"s_lshl_b32 s{s_t0}, s45, 12"); a.e(f"s_lshl_b32 s{s_t1}, s48, 3"); a.e(f"s_add_u32 s{s_t0}, s{s_t0}, s{s_t1}")
    a.e(f"s_add_u32 s{s_t0}, s{s_t0}, {OFF_ST2}")
    a.e(f"v_and_b32 v{v_t+2}, 31, v0"); a.e(f"v_lshlrev_b32 v{v_t+2}, 7, v{v_t+2}")
    a.e("v_cmp_gt_u32 vcc, 32, v0")
    a.e("s_and_saveexec_b64 s[50:51], vcc")
    a.e(f"buffer_store_dwordx2 {vr(v_t,2)}, v{v_t+2}, s[{SRD_WS}:{SRD_WS+3}], s{s_t0} offen")
    if dbg:
        T(5); T.real(14); T.dump(S_WS, s_w, v_t+4)
    a.lab("K2_END")
    a.e("s_endpgm")
    accum = (NV + 3) // 4 * 4
    kernel_desc(a, name, accum + 128, 102 if dbg else 64, accum)
    return (name, 256, 256, LDS)
```

```python
import sys
import k1, k2
from asmlib import *
def build(kernels):
    a = Asm(); body = Asm()
    body.raw('.amdgcn_target "amdgcn-amd-amdhsa--gfx950"')
    launches = [g(body) for g in kernels]
    a.raw(HEADER.rstrip("\n"))
    for (n, grid, blk, lds) in launches:
        a.raw(f"; @launch kernel={n} grid=({grid},1,1) block=({blk},1,1) lds={lds}")
    return a.text() + body.text()
if __name__ == "__main__":
    out = sys.argv[1]; dbg = "dbg" in sys.argv
    ks = [lambda b: k1.gen_k1(b, dbg), lambda b: k2.gen_k2(b, dbg)]
    for extra in ("k3", "k4"):
        try:
            m = __import__(extra); ks.append((lambda mm: (lambda b: getattr(mm, "gen_" + mm.__name__)(b, dbg)))(m))
        except ImportError: pass
    open(out, "w").write(build(ks))
```

```python
from asmlib import *
import struct

OFF_KV   = 0x000000
OFF_PHIQ = 0x100000
OFF_H    = 0x500000
OFF_ST2  = 0x700000
OFF_CS   = 0x780000
OFF_HH   = 0x800000
OFF_DBG  = 0x1000000
WS_BYTES = 268435456
LOG2E = 1.4426950408889634
MF = "v_mfma_f32_32x32x16_bf16"

def f2u(x): return struct.unpack("<I", struct.pack("<f", x))[0]
def fx(x): return f"{f2u(x):#x}"

class VAlloc:
    def __init__(self, start=0, limit=256):
        self.n = start; self.limit = limit; self.hi = start
    def __call__(self, cnt=1, align=1):
        if cnt >= 2: align = max(align, 2)
        self.n = (self.n + align - 1) // align * align
        r = self.n; self.n += cnt; self.hi = max(self.hi, self.n)
        assert self.n <= self.limit, f"out of regs {self.n}"
        return r
    def mark(self): return self.n
    def reset(self, m): self.n = m

def vr(b, n=1): return f"v{b}" if n == 1 else f"v[{b}:{b+n-1}]"
def ar(b, n=1): return f"a{b}" if n == 1 else f"a[{b}:{b+n-1}]"
def sr(b, n=1): return f"s{b}" if n == 1 else f"s[{b}:{b+n-1}]"

class Cnt:
    def __init__(self, a, name, maxv):
        self.a = a; self.name = name; self.maxv = maxv
        self.q = []
    def op(self, instr, tag=None):
        self.a.e(instr); self.q.append(tag)
    def need(self, *tags):
        idx = -1
        for i, t in enumerate(self.q):
            if t in tags: idx = i
        if idx < 0: return
        n = len(self.q) - 1 - idx
        if n > self.maxv: n = self.maxv
        self.a.e(f"s_waitcnt {self.name}({n})")
        self.q = self.q[len(self.q) - n:] if n > 0 else []
    def drain(self):
        self.a.e(f"s_waitcnt {self.name}(0)"); self.q = []
    def forget(self): self.q = []

class Stamps:
    def __init__(self, a, on, kid=0):
        self.a = a; self.on = on; self.kid = kid
    def __call__(self, i):
        if self.on: self.a.e(f"s_memtime s[{64+2*i}:{65+2*i}]")
    def real(self, i):
        if self.on: self.a.e(f"s_memrealtime s[{64+2*i}:{65+2*i}]")
    def dump(self, s_ws, s_wave, vt, n=16):
        if not self.on: return
        a = self.a
        a.e("s_mov_b64 exec, -1")
        a.e("s_waitcnt lgkmcnt(0)")
        a.e(f"s_mov_b32 s96, s{s_ws}"); a.e(f"s_and_b32 s97, s{s_ws+1}, 0xffff"); a.e(f"s_mov_b32 s98, {WS_BYTES}"); a.e("s_mov_b32 s99, 0x20000")
        a.e(f"s_lshl_b32 s100, s2, 3"); a.e(f"s_add_u32 s100, s100, s{s_wave}"); a.e("s_lshl_b32 s100, s100, 6")
        a.e(f"s_add_u32 s100, s100, {OFF_DBG + self.kid*0x40000}")
        a.e(f"v_mov_b32 v{vt}, 0")
        for i in range(n):
            a.e(f"v_mov_b32 v{vt+1}, s{64+2*i}")
            a.e(f"buffer_store_dword v{vt+1}, v{vt}, s[96:99], s100 offen offset:{4*i}")

def xhalf_sum(a, reg, tmp):
    a.e(f"v_mov_b32 v{tmp}, v{reg}")
    a.e("s_nop 1")
    a.e(f"v_permlane32_swap_b32 v{reg}, v{tmp}")
    a.e("s_nop 1")
    a.e(f"v_add_f32 v{reg}, v{reg}, v{tmp}")

def split_aug_w(a, cs, dst, tmp):
    a.e(f"v_cvt_pk_bf16_f32 v{dst+1}, v{cs}, 0")
    a.e(f"v_lshlrev_b32 v{tmp}, 16, v{dst+1}")
    a.e(f"v_sub_f32 v{tmp}, v{cs}, v{tmp}")
    a.e(f"v_cvt_pk_bf16_f32 v{dst}, v{cs}, v{tmp}")

def split_aug_x(a, nm, dst, tmp):
    a.e(f"v_cvt_pk_bf16_f32 v{dst}, v{nm}, v{nm}")
    a.e(f"v_lshlrev_b32 v{tmp}, 16, v{dst}")
    a.e(f"v_sub_f32 v{tmp}, v{nm}, v{tmp}")
    a.e(f"v_cvt_pk_bf16_f32 v{dst+1}, v{tmp}, 0")

def interleave(a, mf, fill):
    n = len(mf); k = 0
    for i, m in enumerate(mf):
        m()
        upto = (len(fill) * (i + 1) + n - 1) // n
        while k < upto:
            fill[k](); k += 1

def conflicts_b128(addrs):
    groups = [list(range(0,4))+list(range(12,16))+list(range(20,28)), list(range(4,12))+list(range(16,20))+list(range(28,32))]
    groups += [[l+32 for l in g] for g in groups]
    worst = 1
    for g in groups:
        banks = {}
        for l in g:
            for d in range(4):
                b = ((addrs[l] // 4) + d) % 64
                banks.setdefault(b, set()).add(addrs[l] // 4 + d)
        worst = max(worst, max(len(x) for x in banks.values()))
    return worst
def conflicts_b64(addrs):
    worst = 1
    for g in (range(0,32), range(32,64)):
        banks = {}
        for l in g:
            for d in range(2):
                b = ((addrs[l] // 4) + d) % 64
                banks.setdefault(b, set()).add(addrs[l] // 4 + d)
        worst = max(worst, max(len(x) for x in banks.values()))
    return worst

def touch_contig(a, srd, base, nlines, s_i, v_l128, v_dummy, s_tmp, cnt=None, tag="pf"):
    a.e(f"s_mul_i32 s{s_tmp}, s{s_i}, {nlines*128}")
    if isinstance(base, tuple): a.e(f"s_add_u32 s{s_tmp}, s{s_tmp}, s{base[1]}")
    elif base: a.e(f"s_add_u32 s{s_tmp}, s{s_tmp}, {base}")
    n = (nlines + 63) // 64
    for k in range(n):
        ins = f"buffer_load_dword v{v_dummy}, v{v_l128}, s[{srd}:{srd+3}], s{s_tmp} offen"
        if cnt: cnt.op(ins, tag)
        else: a.e(ins)
        if k + 1 < n: a.e(f"s_add_u32 s{s_tmp}, s{s_tmp}, 8192")
    return n
```

```python
from glib import *

def gen_k1(a, dbg=False, prefetch=True, TOUCH=False):
    name = "k1_kernel"
    T = Stamps(a, dbg, 0)
    WPHI = 0; ZERO = 2048
    XR = 4096
    WR = XR + 65536; WSLOT = 24576; NST = 3; NSTG = 8
    LDS = WR + NST * WSLOT
    QX = XR; PHIK = XR + 8192; VV = XR + 8192 + 16384
    kernel_begin(a, name)
    S_X, S_W, S_PHI, S_DBG, S_WS = 4, 6, 8, 12, 14
    SRD_X, SRD_W, SRD_P, SRD_WS, SRD_D = 16, 20, 24, 28, 32
    s_w, s_rb, s_hq, s_rot, s_j, s_role = 36, 37, 38, 39, 50, 51
    s_t0, s_t1, s_t2, s_t3, s_c0 = 40, 41, 42, 43, 52
    a.e("s_cmp_ge_u32 s2, 256")
    a.e("s_cbranch_scc1 K1_END")
    T.real(15); T(0)
    a.e("s_load_dwordx4 s[4:7], s[0:1], 0")
    a.e("s_load_dwordx2 s[8:9], s[0:1], 16")
    a.e("s_load_dwordx4 s[12:15], s[0:1], 72")
    a.e("v_lshrrev_b32 v1, 6, v0")
    a.e("v_and_b32 v0, 63, v0")
    a.e(f"v_readfirstlane_b32 s{s_w}, v1")
    a.e(f"s_and_b32 s{s_t0}, s2, 7"); a.e(f"s_lshr_b32 s{s_t1}, s2, 3")
    a.e(f"s_and_b32 s{s_rb}, s{s_t0}, 3"); a.e(f"s_lshl_b32 s{s_rb}, s{s_rb}, 3"); a.e(f"s_and_b32 s{s_t2}, s{s_t1}, 7"); a.e(f"s_add_u32 s{s_rb}, s{s_rb}, s{s_t2}")
    a.e(f"s_lshr_b32 s{s_hq}, s{s_t0}, 2"); a.e(f"s_lshl_b32 s{s_hq}, s{s_hq}, 2"); a.e(f"s_lshr_b32 s{s_t3}, s{s_t1}, 3"); a.e(f"s_add_u32 s{s_hq}, s{s_hq}, s{s_t3}")
    a.e(f"s_mov_b32 s{s_rot}, s{s_t2}")
    a.e(f"s_and_b32 s{s_j}, s{s_w}, 3")
    V = VAlloc(2)
    v_dum = V(2, 2); v_wa = V(8, 4); v_x0 = V(8, 4); v_p = V(16, 4); v_en = V(16, 4); v_pk = V(16, 4); v_tmp = V(8, 2)
    common_end = V.mark()
    L = VAlloc(common_end)
    v_xl = L(32, 4); v_xu = L(64, 4); v_s = L(2, 2); v_q = L(2, 2); v_lt = L(6, 2)
    ln_end = L.mark()
    a.e(f"v_lshrrev_b32 v{v_lt}, 3, v0"); a.e(f"v_lshlrev_b32 v{v_lt}, 10, v{v_lt}")
    a.e(f"v_and_b32 v{v_lt+1}, 7, v0"); a.e(f"v_lshl_add_u32 v{v_lt}, v{v_lt+1}, 4, v{v_lt}")
    a.e(f"s_lshl_b32 s{s_t0}, s{s_rb}, 3"); a.e(f"s_add_u32 s{s_t0}, s{s_t0}, s{s_w}"); a.e(f"s_lshl_b32 s{s_t0}, s{s_t0}, 13")
    a.e("s_waitcnt lgkmcnt(0)")
    srd(a, SRD_X, S_X, 2048*1024)
    VM = Cnt(a, "vmcnt", 63)
    if TOUCH:
        a.e(f"v_lshlrev_b32 v{v_dum+1}, 7, v0")
        a.e(f"s_and_b32 s{s_t1}, s2, 3"); a.e(f"s_lshl_b32 s{s_t1}, s{s_t1}, 19")
        a.e(f"s_lshr_b32 s{s_t2}, s2, 3"); a.e(f"s_lshl_b32 s{s_t2}, s{s_t2}, 3"); a.e(f"s_add_u32 s{s_t2}, s{s_t2}, s{s_w}")
        a.e(f"s_lshl_b32 s{s_t2}, s{s_t2}, 11"); a.e(f"s_add_u32 s{s_t1}, s{s_t1}, s{s_t2}")
        a.e("v_cmp_gt_u32 vcc, 16, v0"); a.e(f"s_and_saveexec_b64 s[{s_c0}:{s_c0+1}], vcc")
        a.e(f"buffer_load_dword v{v_dum}, v{v_dum+1}, s[{SRD_X}:{SRD_X+3}], s{s_t1} offen")
        a.e(f"s_mov_b64 exec, s[{s_c0}:{s_c0+1}]")
    for s in range(8):
        VM.op(f"buffer_load_dwordx4 {vr(v_xl+4*s,4)}, v{v_lt}, s[{SRD_X}:{SRD_X+3}], s{s_t0} offen offset:{s*128}", "x")
    srd(a, SRD_W, S_W, 512*3072)
    srd(a, SRD_WS, S_WS, WS_BYTES)
    a.e(f"s_cmp_ge_u32 s{s_w}, 4")
    a.e("s_cbranch_scc0 K1_CPRO")
    H = VAlloc(ln_end)
    v_wo = H(3); v_h0 = H(4)
    srd(a, SRD_P, S_PHI, 32*512)
    for i in range(3):
        a.e(f"v_lshrrev_b32 v{v_h0}, 3, v0"); a.e(f"v_add_u32 v{v_h0}, {8*i}, v{v_h0}")
        a.e(f"v_mul_u32_u24 v{v_h0+1}, 43, v{v_h0}"); a.e(f"v_lshrrev_b32 v{v_h0+1}, 7, v{v_h0+1}")
        a.e(f"v_mul_u32_u24 v{v_h0+2}, 3, v{v_h0+1}"); a.e(f"v_sub_u32 v{v_h0}, v{v_h0}, v{v_h0+2}")
        a.e(f"v_bfe_u32 v{v_h0+2}, v{v_h0+1}, 1, 1"); a.e(f"v_lshlrev_b32 v{v_h0+2}, 2, v{v_h0+2}")
        a.e(f"v_and_b32 v{v_h0+3}, 7, v0"); a.e(f"v_xor_b32 v{v_h0+2}, v{v_h0+2}, v{v_h0+3}")
        a.e(f"v_mul_u32_u24 v{v_h0+1}, 3072, v{v_h0+1}")
        a.e(f"v_lshl_add_u32 v{v_h0+1}, v{v_h0}, 10, v{v_h0+1}")
        a.e(f"v_lshl_add_u32 v{v_wo+i}, v{v_h0+2}, 4, v{v_h0+1}")
    s_wb, s_wl, s_kst, s_wo = 44, 45, 46, 47
    a.e(f"s_mul_i32 s{s_wb}, s{s_j}, {16*3072}"); a.e(f"s_lshl_b32 s{s_t2}, s{s_hq}, 7"); a.e(f"s_add_u32 s{s_wb}, s{s_wb}, s{s_t2}")
    a.e(f"s_mul_i32 s{s_wl}, s{s_j}, 6144"); a.e(f"s_add_u32 s{s_wl}, s{s_wl}, {WR}")
    a.e(f"s_mov_b32 s{s_kst}, s{s_rot}")
    def issue(st):
        slot = st % NST
        a.e(f"s_mul_i32 s{s_wo}, s{s_kst}, {64*3072}"); a.e(f"s_add_u32 s{s_wo}, s{s_wo}, s{s_wb}")
        a.e(f"s_add_u32 s{s_kst}, s{s_kst}, 1"); a.e(f"s_and_b32 s{s_kst}, s{s_kst}, 7")
        for i in range(6):
            a.e(f"s_add_u32 m0, s{s_wl}, {slot*WSLOT+i*1024}")
            if i == 3: a.e(f"s_add_u32 s{s_wo}, s{s_wo}, {8*3072}")
            else: a.e("s_nop 0")
            VM.op(f"buffer_load_dwordx4 v{v_wo+i%3}, s[{SRD_W}:{SRD_W+3}], s{s_wo} offen lds", ("st", st))
    a.e(f"s_and_b32 s{s_t2}, s{s_j}, 1"); a.e(f"s_lshl_b32 s{s_t2}, s{s_t2}, 10")
    a.e(f"s_add_u32 m0, s{s_t2}, {WPHI}")
    a.e(f"v_lshlrev_b32 v{v_h0}, 4, v0")
    a.e(f"s_lshl_b32 s{s_t3}, s{s_hq}, 11"); a.e(f"s_add_u32 s{s_t2}, s{s_t2}, s{s_t3}")
    VM.op(f"buffer_load_dwordx4 v{v_h0}, s[{SRD_P}:{SRD_P+3}], s{s_t2} offen lds", "wphi")
    issue(0); nxt = 1
    a.e("s_branch K1_LNH")
    a.lab("K1_CPRO")
    srd(a, SRD_D, S_DBG, 256)
    Cp = VAlloc(ln_end)
    v_t = Cp(8, 4)
    for i in range(4): a.e(f"v_mov_b32 v{v_t+i}, 0")
    a.e(f"v_mov_b32 v{v_t+4}, {ZERO}")
    a.e(f"ds_write_b128 v{v_t+4}, {vr(v_t,4)}")
    if TOUCH:
        a.e(f"s_lshl_b32 s{s_t2}, s{s_w}, 6"); a.e(f"v_add_u32 v{v_t+5}, s{s_t2}, v0")
        a.e(f"v_mul_u32_u24 v{v_t+6}, 171, v{v_t+5}"); a.e(f"v_lshrrev_b32 v{v_t+6}, 11, v{v_t+6}")
        a.e(f"v_mul_u32_u24 v{v_t+7}, 12, v{v_t+6}"); a.e(f"v_sub_u32 v{v_t+5}, v{v_t+5}, v{v_t+7}")
        a.e(f"v_mul_u32_u24 v{v_t+6}, 3072, v{v_t+6}")
        a.e(f"v_lshrrev_b32 v{v_t+7}, 2, v{v_t+5}"); a.e(f"v_lshl_add_u32 v{v_t+6}, v{v_t+7}, 10, v{v_t+6}")
        a.e(f"v_and_b32 v{v_t+5}, 3, v{v_t+5}"); a.e(f"v_lshl_add_u32 v{v_t+6}, v{v_t+5}, 7, v{v_t+6}")
        a.e(f"s_lshr_b32 s{s_t2}, s2, 3"); a.e(f"s_mul_i32 s{s_t2}, s{s_t2}, {16*3072}")
        a.e(f"s_bfe_u32 s{s_t3}, s2, 0x10002"); a.e(f"s_lshl_b32 s{s_t3}, s{s_t3}, 9"); a.e(f"s_add_u32 s{s_t2}, s{s_t2}, s{s_t3}")
        a.e(f"buffer_load_dword v{v_dum}, v{v_t+6}, s[{SRD_W}:{SRD_W+3}], s{s_t2} offen")
    a.e(f"s_cmp_eq_u32 s{s_w}, 0")
    a.e("s_cbranch_scc0 K1_LN")
    a.e(f"s_lshl_b32 s{s_t2}, s{s_hq}, 2")
    a.e(f"v_mov_b32 v{v_t+4}, s{s_t2}"); a.e(f"v_mov_b32 v{v_t+5}, 1")
    a.e("v_cmp_eq_u32 vcc, 0, v0")
    a.e(f"s_and_saveexec_b64 s[{s_c0}:{s_c0+1}], vcc")
    a.e(f"buffer_atomic_add v{v_t+5}, v{v_t+4}, s[{SRD_D}:{SRD_D+3}], 0 offen sc0")
    a.e("s_waitcnt vmcnt(0)")
    a.e(f"s_mov_b64 exec, s[{s_c0}:{s_c0+1}]")
    a.e("s_nop 0")
    a.e(f"v_readfirstlane_b32 s{s_t2}, v{v_t+5}")
    a.e("s_nop 3")
    a.e(f"s_cmp_eq_u32 s{s_t2}, 0")
    a.e("s_cbranch_scc0 K1_LN")
    a.e(f"s_mul_i32 s{s_t2}, s{s_hq}, 8704"); a.e(f"s_add_u32 s{s_t2}, s{s_t2}, {OFF_KV}")
    a.e(f"v_lshlrev_b32 v{v_t+4}, 4, v0")
    for i in range(8):
        if i == 4: a.e(f"s_add_u32 s{s_t2}, s{s_t2}, 4096")
        a.e(f"buffer_store_dwordx4 {vr(v_t,4)}, v{v_t+4}, s[{SRD_WS}:{SRD_WS+3}], s{s_t2} offen offset:{(i%4)*1024} sc1")
    a.e("v_cmp_gt_u32 vcc, 32, v0")
    a.e(f"s_and_saveexec_b64 s[{s_c0}:{s_c0+1}], vcc")
    a.e(f"s_add_u32 s{s_t2}, s{s_t2}, 4096")
    a.e(f"buffer_store_dwordx4 {vr(v_t,4)}, v{v_t+4}, s[{SRD_WS}:{SRD_WS+3}], s{s_t2} offen sc1")
    a.e("s_waitcnt vmcnt(0)")
    a.e("v_cmp_eq_u32 vcc, 0, v0")
    a.e("s_and_b64 exec, exec, vcc")
    a.e(f"s_lshl_b32 s{s_t2}, s{s_hq}, 2")
    a.e(f"v_mov_b32 v{v_t+4}, s{s_t2}"); a.e(f"v_mov_b32 v{v_t+5}, 1")
    a.e(f"buffer_store_dword v{v_t+5}, v{v_t+4}, s[{SRD_D}:{SRD_D+3}], 0 offen offset:64 sc1")
    a.e(f"s_mov_b64 exec, s[{s_c0}:{s_c0+1}]")
    def layernorm(fill):
        fill = list(fill)
        def tick():
            if fill: fill.pop(0)()
        for i in range(32):
            a.e(f"v_lshlrev_b32 v{v_xu+2*i}, 16, v{v_xl+i}")
            a.e(f"v_and_b32 v{v_xu+2*i+1}, 0xffff0000, v{v_xl+i}")
            if i == 0:
                a.e(f"v_pk_mul_f32 {vr(v_q,2)}, {vr(v_xu,2)}, {vr(v_xu,2)}")
                a.e(f"v_mov_b32 v{v_s}, v{v_xu}"); a.e(f"v_mov_b32 v{v_s+1}, v{v_xu+1}")
            else:
                a.e(f"v_pk_add_f32 {vr(v_s,2)}, {vr(v_s,2)}, {vr(v_xu+2*i,2)}")
                a.e(f"v_pk_fma_f32 {vr(v_q,2)}, {vr(v_xu+2*i,2)}, {vr(v_xu+2*i,2)}, {vr(v_q,2)}")
            if i % 4 == 3: tick()
        a.e(f"v_add_f32 v{v_s}, v{v_s}, v{v_s+1}"); a.e(f"v_add_f32 v{v_q}, v{v_q}, v{v_q+1}")
        for ctl in ("quad_perm:[1,0,3,2]", "quad_perm:[2,3,0,1]", "row_half_mirror"):
            a.e("s_nop 1")
            a.e(f"v_add_f32_dpp v{v_s}, v{v_s}, v{v_s} {ctl} row_mask:0xf bank_mask:0xf")
            a.e(f"v_add_f32_dpp v{v_q}, v{v_q}, v{v_q} {ctl} row_mask:0xf bank_mask:0xf")
        a.e(f"v_mul_f32 v{v_s}, {fx(1/512)}, v{v_s}"); a.e(f"v_mul_f32 v{v_q}, {fx(1/512)}, v{v_q}")
        a.e(f"v_fma_f32 v{v_q}, -v{v_s}, v{v_s}, v{v_q}")
        a.e(f"v_max_f32 v{v_q}, 0, v{v_q}"); a.e(f"v_add_f32 v{v_q}, {fx(1e-5)}, v{v_q}")
        a.e(f"v_rsq_f32 v{v_q}, v{v_q}")
        a.e(f"v_lshrrev_b32 v{v_lt}, 4, v0"); a.e(f"s_lshl_b32 s{s_t0}, s{s_w}, 2"); a.e(f"v_add_u32 v{v_lt}, s{s_t0}, v{v_lt}")
        a.e(f"v_mul_f32 v{v_s}, v{v_s}, v{v_q}"); a.e(f"v_sub_f32 v{v_s}, 0, v{v_s}")
        a.e(f"v_xor_b32 v{v_lt}, v{v_lt}, v0"); a.e(f"v_and_b32 v{v_lt}, 7, v{v_lt}")
        a.e(f"v_lshrrev_b32 v{v_lt+1}, 3, v0"); a.e(f"v_lshlrev_b32 v{v_lt+1}, 7, v{v_lt+1}")
        a.e(f"v_lshl_add_u32 v{v_lt}, v{v_lt}, 4, v{v_lt+1}")
        a.e(f"s_lshl_b32 s{s_t0}, s{s_w}, 10"); a.e(f"s_add_u32 s{s_t0}, s{s_t0}, {XR}"); a.e(f"v_add_u32 v{v_lt}, s{s_t0}, v{v_lt}")
        for s in range(8):
            for r in range(4):
                i = 4*s + r
                a.e(f"v_pk_fma_f32 {vr(v_xu+2*i,2)}, {vr(v_xu+2*i,2)}, {vr(v_q,2)}, {vr(v_s,2)} op_sel_hi:[1,0,0]")
                a.e(f"v_cvt_pk_bf16_f32 v{v_xl+i}, v{v_xu+2*i}, v{v_xu+2*i+1}")
            a.e(f"ds_write_b128 v{v_lt}, {vr(v_xl+4*s,4)} offset:{s*8192}")
            tick()
        while fill: tick()
    a.lab("K1_LN")
    T(1)
    a.e("s_waitcnt vmcnt(1)" if TOUCH else "s_waitcnt vmcnt(0)")
    T(2)
    layernorm([])
    T(3)
    a.e("s_branch K1_CONS")
    a.lab("K1_LNH")
    T(1)
    a.e("s_waitcnt vmcnt(7)")
    T(2)
    def one(st, i):
        def f():
            slot = st % NST
            if i == 0:
                a.e(f"s_mul_i32 s{s_wo}, s{s_kst}, {64*3072}"); a.e(f"s_add_u32 s{s_wo}, s{s_wo}, s{s_wb}")
                a.e(f"s_add_u32 s{s_kst}, s{s_kst}, 1"); a.e(f"s_and_b32 s{s_kst}, s{s_kst}, 7")
            a.e(f"s_add_u32 m0, s{s_wl}, {slot*WSLOT+i*1024}")
            if i == 3: a.e(f"s_add_u32 s{s_wo}, s{s_wo}, {8*3072}")
            else: a.e("s_nop 0")
            a.e(f"buffer_load_dwordx4 v{v_wo+i%3}, s[{SRD_W}:{SRD_W+3}], s{s_wo} offen lds")
        return f
    layernorm([one(st, i) for st in (1, 2) for i in range(6)])
    nxt = 3
    T(3)
    def wphi_frags(tmp):
        a.e(f"v_lshrrev_b32 v{tmp}, 5, v0")
        a.e(f"v_bfe_u32 v{tmp+1}, v0, 2, 2"); a.e(f"v_lshlrev_b32 v{tmp+1}, 5, v{tmp+1}")
        a.e(f"v_lshl_add_u32 v{tmp+1}, v{tmp}, 9, v{tmp+1}")
        a.e(f"v_bfe_u32 v{tmp+2}, v0, 1, 1"); a.e(f"v_bfe_u32 v{tmp+3}, v0, 4, 1")
        a.e(f"v_lshl_add_u32 v{tmp+2}, v{tmp+3}, 1, v{tmp+2}")
        a.e(f"v_lshl_add_u32 v{tmp+1}, v{tmp+2}, 3, v{tmp+1}")
        a.e(f"s_lshr_b32 s{s_t2}, s{s_j}, 1"); a.e(f"s_lshl_b32 s{s_t2}, s{s_t2}, 10"); a.e(f"s_add_u32 s{s_t2}, s{s_t2}, {WPHI}")
        a.e(f"v_add_u32 v{tmp+1}, s{s_t2}, v{tmp+1}")
        a.e(f"v_and_b32 v{tmp+2}, 1, v0")
        a.e(f"v_cmp_eq_u32 vcc, v{tmp+2}, v{tmp}")
        a.e(f"v_mov_b32 v{tmp+3}, {ZERO}")
        a.e("s_nop 0")
        for k in range(4):
            off = (8*(k>>1) + 4*(k&1)) * 32
            a.e(f"v_add_u32 v{tmp+2}, {off}, v{tmp+1}")
            a.e(f"v_cndmask_b32 v{tmp+2}, v{tmp+3}, v{tmp+2}, vcc")
            a.e(f"ds_read_b64_tr_b16 {vr(v_wa+4*(k>>1)+2*(k&1),2)}, v{tmp+2}")
    def prefetch_weights():
        a.e("s_load_dwordx2 s[54:55], s[0:1], 24"); a.e("s_load_dwordx4 s[56:59], s[0:1], 40"); a.e("s_load_dwordx2 s[60:61], s[0:1], 56")
        a.e("s_waitcnt lgkmcnt(0)")
        a.e(f"s_lshr_b32 s{s_t3}, s2, 3")
        a.e(f"s_cmp_eq_u32 s{s_j}, 0"); a.e("s_cbranch_scc0 K1_PF1")
        srd(a, SRD_P, 54, 524288)
        a.e(f"v_lshlrev_b32 v{v_h0}, 7, v0")
        touch_contig(a, SRD_P, 0, 128, s_t3, v_h0, v_dum, s_t2)
        for _ in range(2): a.e(f"buffer_load_dword v{v_dum}, v{v_h0}, s[{SRD_P}:{SRD_P+3}], s{s_t2} offen")
        a.e("s_branch K1_PFE")
        a.lab("K1_PF1")
        a.e(f"s_cmp_eq_u32 s{s_j}, 3"); a.e("s_cbranch_scc1 K1_PF3")
        a.e(f"s_cmp_eq_u32 s{s_j}, 1"); a.e(f"s_cselect_b32 s54, s56, s58"); a.e(f"s_cselect_b32 s55, s57, s59")
        srd(a, SRD_P, 54, 512*3584)
        a.e(f"s_mul_i32 s{s_t2}, s{s_t3}, {16*3584}"); a.e(f"s_bfe_u32 s{s_t3}, s2, 0x10002"); a.e(f"s_mul_i32 s{s_t3}, s{s_t3}, 1792"); a.e(f"s_add_u32 s{s_t2}, s{s_t2}, s{s_t3}")
        for k in range(4):
            a.e(f"v_add_u32 v{v_h0}, {64*k}, v0"); a.e(f"v_mul_u32_u24 v{v_h0+1}, 2341, v{v_h0}"); a.e(f"v_lshrrev_b32 v{v_h0+1}, 15, v{v_h0+1}")
            a.e(f"v_mul_u32_u24 v{v_h0+2}, 14, v{v_h0+1}"); a.e(f"v_sub_u32 v{v_h0}, v{v_h0}, v{v_h0+2}")
            a.e(f"v_mul_u32_u24 v{v_h0+1}, 3584, v{v_h0+1}"); a.e(f"v_lshl_add_u32 v{v_h0}, v{v_h0}, 7, v{v_h0+1}")
            a.e(f"buffer_load_dword v{v_dum}, v{v_h0}, s[{SRD_P}:{SRD_P+3}], s{s_t2} offen")
        a.e("s_branch K1_PFE")
        a.lab("K1_PF3")
        srd(a, SRD_P, 60, 1792*1024)
        a.e(f"v_lshlrev_b32 v{v_h0}, 7, v0")
        a.e(f"s_mov_b32 s{s_t3}, s2")
        touch_contig(a, SRD_P, 0, 56, s_t3, v_h0, v_dum, s_t2)
        for _ in range(3): a.e(f"buffer_load_dword v{v_dum}, v{v_h0}, s[{SRD_P}:{SRD_P+3}], s{s_t2} offen")
        a.lab("K1_PFE")
        pass
        pass
    VM.q = ["wphi"] + [("st", s) for s in range(NST) for _ in range(6)]
    for s in range(NSTG):
        VM.need(("st", s), "wphi")
        if s == 0: a.e("s_waitcnt lgkmcnt(0)")
        a.e("s_barrier")
        T(4 + min(s, 7) // 2) if s % 2 == 0 else None
        lim = min(NSTG - 1, s - 1 + NST)
        while nxt <= lim:
            issue(nxt); nxt += 1
        if s == 0: wphi_frags(v_tmp)
        if s == NSTG - NST and prefetch:
            prefetch_weights(); VM.q += ["pf"] * 4
    T(8)
    a.e(f"s_lshl_b32 s{s_t2}, s{s_j}, 11")
    a.e(f"v_lshlrev_b32 v{v_h0}, 4, v0"); a.e(f"v_add_u32 v{v_h0}, s{s_t2}, v{v_h0}")
    a.e(f"s_mov_b32 s{s_role}, 1")
    a.e("s_barrier")
    a.e("s_barrier")
    T(9)
    a.e(f"ds_read_b128 {vr(v_x0,4)}, v{v_h0} offset:{QX}")
    a.e(f"ds_read_b128 {vr(v_x0+4,4)}, v{v_h0} offset:{QX+1024}")
    a.e("s_waitcnt lgkmcnt(0)")
    a.e("s_branch K1_SOFTMAX")
    a.lab("K1_CONS")
    C = VAlloc(common_end)
    acc = C(48, 4); v_xa = C(4); v_xb = C(4); v_wad = C(1); fx_ = C(8, 4); fw = C(24, 4); v_t = C(8, 4)
    s_tb, s_hp, s_blk = 44, 45, 46
    a.e(f"s_and_b32 s{s_tb}, s{s_w}, 1"); a.e(f"s_lshr_b32 s{s_hp}, s{s_w}, 1")
    a.e(f"v_and_b32 v{v_t}, 31, v0"); a.e(f"v_lshrrev_b32 v{v_t+1}, 5, v0")
    a.e(f"v_lshrrev_b32 v{v_t+2}, 1, v{v_t}"); a.e(f"v_and_b32 v{v_t+2}, 7, v{v_t+2}"); a.e(f"v_xor_b32 v{v_t+1}, v{v_t+1}, v{v_t+2}")
    a.e(f"v_lshlrev_b32 v{v_t}, 7, v{v_t}"); a.e(f"v_lshl_add_u32 v{v_xb}, v{v_t+1}, 4, v{v_t}")
    a.e(f"s_lshl_b32 s{s_t2}, s{s_tb}, 12"); a.e(f"s_add_u32 s{s_t2}, s{s_t2}, {XR}"); a.e(f"v_add_u32 v{v_xb}, s{s_t2}, v{v_xb}")
    for t in range(1, 4): a.e(f"v_xor_b32 v{v_xb+t}, {t<<5}, v{v_xb}")
    a.e(f"s_mov_b32 s{s_blk}, s{s_rot}")
    def set_xblk():
        a.e(f"s_lshl_b32 s{s_t2}, s{s_blk}, 13")
        for t in range(4): a.e(f"v_add_u32 v{v_xa+t}, s{s_t2}, v{v_xb+t}")
        a.e(f"s_add_u32 s{s_blk}, s{s_blk}, 1"); a.e(f"s_and_b32 s{s_blk}, s{s_blk}, 7")
    set_xblk()
    a.e(f"v_lshrrev_b32 v{v_t}, 5, v0"); a.e(f"v_lshlrev_b32 v{v_t}, 3, v{v_t}")
    a.e(f"v_bfe_u32 v{v_t+1}, v0, 2, 2"); a.e(f"v_add_u32 v{v_t}, v{v_t}, v{v_t+1}"); a.e(f"v_mul_u32_u24 v{v_t}, 384, v{v_t}")
    a.e(f"v_bfe_u32 v{v_t+1}, v0, 3, 1"); a.e(f"v_xor_b32 v{v_t+1}, s{s_hp}, v{v_t+1}"); a.e(f"v_lshl_add_u32 v{v_t}, v{v_t+1}, 6, v{v_t}")
    a.e(f"v_and_b32 v{v_t+1}, 1, v0"); a.e(f"v_lshl_add_u32 v{v_t}, v{v_t+1}, 5, v{v_t}")
    a.e(f"v_bfe_u32 v{v_t+1}, v0, 1, 1"); a.e(f"v_bfe_u32 v{v_t+2}, v0, 4, 1"); a.e(f"v_lshl_add_u32 v{v_t+1}, v{v_t+2}, 1, v{v_t+1}")
    a.e(f"v_lshl_add_u32 v{v_wad}, v{v_t+1}, 3, v{v_t}"); a.e(f"v_add_u32 v{v_wad}, {WR}, v{v_wad}")
    for i in range(48): a.e(f"v_mov_b32 v{acc+i}, 0")
    LG = Cnt(a, "lgkmcnt", 15)
    def reads(s, t):
        p = t & 1; o = []
        o.append(lambda: LG.op(f"ds_read_b128 {vr(fx_+4*p,4)}, v{v_xa+t}", ("x", s, t)))
        for cb in range(3):
            for k in range(2):
                o.append(lambda cb=cb, k=k: LG.op(f"ds_read_b64_tr_b16 {vr(fw+12*p+4*cb+2*k,2)}, v{v_wad} offset:{t*6144+cb*128+k*1536}", ("w", s, t, cb)))
        return o
    def step(s, t, nxt_):
        p = t & 1
        def m(cb):
            LG.need(("x", s, t), ("w", s, t, cb))
            a.e(f"{MF} {vr(acc+16*cb,16)}, {vr(fw+12*p+4*cb,4)}, {vr(fx_+4*p,4)}, {vr(acc+16*cb,16)}")
        if t < 3:
            f = nxt_
            m(0); f[0](); f[1](); f[2](); m(1); f[3](); f[4](); m(2); f[5](); f[6]()
        else:
            m(0)
            if nxt_ is not None:
                LG.drain()
                a.e("s_barrier")
                delta = WSLOT if (s + 1) % NST != 0 else -(NST - 1) * WSLOT
                a.e(f"v_add_u32 v{v_wad}, {delta & 0xffffffff:#x}, v{v_wad}")
                set_xblk()
                f = nxt_
                f[0](); f[1](); f[2](); m(1); f[3](); f[4](); m(2); f[5](); f[6]()
            else:
                m(1); m(2)
    a.e("s_waitcnt lgkmcnt(0)")
    a.e("s_barrier")
    T(4)
    for f in reads(0, 0): f()
    wphi_frags(v_tmp)
    LG.q += [("wa", k) for k in range(4)]
    for s in range(NSTG):
        for t in range(4):
            nx = reads(s, t + 1) if t < 3 else (reads(s + 1, 0) if s + 1 < NSTG else None)
            step(s, t, nx)
    T(5)
    a.e("s_barrier")
    a.e(f"s_lshl_b32 s{s_t2}, s{s_j}, 11")
    a.e(f"v_lshlrev_b32 v{v_t}, 4, v0"); a.e(f"v_add_u32 v{v_t}, s{s_t2}, v{v_t}")
    a.e("s_nop 7")
    for i in range(8): a.e(f"v_cvt_pk_bf16_f32 v{v_x0+i}, v{acc+2*i}, v{acc+2*i+1}")
    a.e(f"ds_write_b128 v{v_t}, {vr(v_x0,4)} offset:{QX}")
    a.e(f"ds_write_b128 v{v_t}, {vr(v_x0+4,4)} offset:{QX+1024}")
    a.e("s_waitcnt lgkmcnt(0)")
    a.e("s_barrier")
    T(6)
    a.e(f"s_lshl_b32 s{s_t2}, s{s_hq}, 2"); a.e(f"v_mov_b32 v{v_t+6}, s{s_t2}")
    a.e(f"buffer_load_dword v{v_t+7}, v{v_t+6}, s[{SRD_D}:{SRD_D+3}], 0 offen offset:64 sc1")
    for i in range(8): a.e(f"v_cvt_pk_bf16_f32 v{v_x0+i}, v{acc+16+2*i}, v{acc+16+2*i+1}")
    for i in range(8): a.e(f"v_cvt_pk_bf16_f32 v{acc+32+i}, v{acc+32+2*i}, v{acc+32+2*i+1}")
    a.e(f"v_and_b32 v{v_t}, 31, v0"); a.e(f"s_lshl_b32 s{s_t2}, s{s_tb}, 5"); a.e(f"v_add_u32 v{v_t}, s{s_t2}, v{v_t}")
    a.e(f"v_mul_u32_u24 v{v_t}, 160, v{v_t}")
    a.e(f"v_lshrrev_b32 v{v_t+1}, 5, v0"); a.e(f"s_lshl_b32 s{s_t2}, s{s_hp}, 6")
    a.e(f"v_lshl_add_u32 v{v_t+2}, v{v_t+1}, 5, v{v_t}"); a.e(f"v_add_u32 v{v_t+2}, s{s_t2}, v{v_t+2}")
    a.e(f"ds_write_b128 v{v_t+2}, {vr(acc+32,4)} offset:{VV}")
    a.e(f"ds_write_b128 v{v_t+2}, {vr(acc+36,4)} offset:{VV+16}")
    a.e(f"v_lshl_add_u32 v{v_t+2}, v{v_t+1}, 4, v{v_t}")
    for i in range(4): a.e(f"v_mov_b32 v{v_t+8-8+0+ (i if False else 0)}, v{v_t}") if False else None
    for i in range(4): a.e(f"v_mov_b32 v{acc+40+i}, 0x3f803f80")
    a.e(f"ds_write_b128 v{v_t+2}, {vr(acc+40,4)} offset:{VV+128}")
    a.e(f"s_mov_b32 s{s_role}, 0")
    a.lab("K1_SOFTMAX")
    a.e("s_nop 1")
    a.e(f"{MF} {vr(v_p,16)}, {vr(v_wa,4)}, {vr(v_x0,4)}, 0")
    a.e(f"{MF} {vr(v_p,16)}, {vr(v_wa+4,4)}, {vr(v_x0+4,4)}, {vr(v_p,16)}")
    a.e(f"s_mov_b32 s{s_t3}, {fx(LOG2E)}")
    a.e("s_nop 15")
    mx, mn = v_tmp, v_tmp + 1
    a.e(f"v_max3_f32 v{mx}, v{v_p}, v{v_p+1}, v{v_p+2}"); a.e(f"v_min3_f32 v{mn}, v{v_p}, v{v_p+1}, v{v_p+2}")
    for i in range(3, 15, 2):
        a.e(f"v_max3_f32 v{mx}, v{mx}, v{v_p+i}, v{v_p+i+1}"); a.e(f"v_min3_f32 v{mn}, v{mn}, v{v_p+i}, v{v_p+i+1}")
    a.e(f"v_max_f32 v{mx}, v{mx}, v{v_p+15}"); a.e(f"v_min_f32 v{mn}, v{mn}, v{v_p+15}")
    a.e(f"v_mul_f32 v{mx}, s{s_t3}, v{mx}"); a.e(f"v_mul_f32 v{mn}, s{s_t3}, v{mn}")
    for i in range(16):
        a.e(f"v_fma_f32 v{v_en+i}, -v{v_p+i}, s{s_t3}, v{mn}")
        a.e(f"v_fma_f32 v{v_p+i}, v{v_p+i}, s{s_t3}, -v{mx}")
    for i in range(16):
        a.e(f"v_exp_f32 v{v_p+i}, v{v_p+i}"); a.e(f"v_exp_f32 v{v_en+i}, v{v_en+i}")
    sp, sn = v_tmp + 2, v_tmp + 4
    a.e(f"v_pk_add_f32 {vr(sp,2)}, {vr(v_p,2)}, {vr(v_p+2,2)}"); a.e(f"v_pk_add_f32 {vr(sn,2)}, {vr(v_en,2)}, {vr(v_en+2,2)}")
    for i in range(4, 16, 2):
        a.e(f"v_pk_add_f32 {vr(sp,2)}, {vr(sp,2)}, {vr(v_p+i,2)}"); a.e(f"v_pk_add_f32 {vr(sn,2)}, {vr(sn,2)}, {vr(v_en+i,2)}")
    a.e(f"v_add_f32 v{sp}, v{sp}, v{sp+1}"); a.e(f"v_add_f32 v{sn}, v{sn}, v{sn+1}")
    a.e(f"v_rcp_f32 v{sp}, v{sp}"); a.e(f"v_rcp_f32 v{sn}, v{sn}")
    a.e("s_nop 0")
    for i in range(0, 16, 2):
        a.e(f"v_pk_mul_f32 {vr(v_p+i,2)}, {vr(v_p+i,2)}, {vr(sp,2)} op_sel_hi:[1,0]")
        a.e(f"v_pk_mul_f32 {vr(v_en+i,2)}, {vr(v_en+i,2)}, {vr(sn,2)} op_sel_hi:[1,0]")
    for i in range(8):
        a.e(f"v_cvt_pk_bf16_f32 v{v_pk+i}, v{v_p+2*i}, v{v_p+2*i+1}"); a.e(f"v_cvt_pk_bf16_f32 v{v_pk+8+i}, v{v_en+2*i}, v{v_en+2*i+1}")
    a.e(f"s_cmp_eq_u32 s{s_role}, 0")
    a.e("s_cbranch_scc1 K1_CONS2")
    a.e(f"s_lshl_b32 s{s_t0}, s{s_rb}, 1"); a.e(f"s_and_b32 s{s_t1}, s{s_j}, 1"); a.e(f"s_add_u32 s{s_t0}, s{s_t0}, s{s_t1}")
    a.e(f"s_lshl_b32 s{s_t0}, s{s_t0}, 5"); a.e(f"s_lshl_b32 s{s_t1}, s{s_hq}, 2"); a.e(f"s_add_u32 s{s_t0}, s{s_t0}, s{s_t1}")
    a.e(f"s_lshr_b32 s{s_t1}, s{s_j}, 1"); a.e(f"s_lshl_b32 s{s_t1}, s{s_t1}, 1"); a.e(f"s_add_u32 s{s_t0}, s{s_t0}, s{s_t1}")
    a.e(f"s_lshl_b32 s{s_t0}, s{s_t0}, 11"); a.e(f"s_add_u32 s{s_t0}, s{s_t0}, {OFF_PHIQ}")
    a.e(f"v_and_b32 v{v_tmp}, 31, v0"); a.e(f"v_lshrrev_b32 v{v_tmp+1}, 5, v0")
    a.e(f"v_lshlrev_b32 v{v_tmp}, 4, v{v_tmp}"); a.e(f"v_lshl_add_u32 v{v_tmp}, v{v_tmp+1}, 11, v{v_tmp}")
    for i in range(4):
        a.e(f"buffer_store_dwordx4 {vr(v_pk+4*i,4)}, v{v_tmp}, s[{SRD_WS}:{SRD_WS+3}], s{s_t0} offen offset:{(i>>1)*1024+(i&1)*512}")
    T(10)
    a.e("s_barrier")
    T.real(14); T.dump(S_WS, s_w, v_tmp)
    a.e("s_endpgm")
    a.lab("K1_CONS2")
    t0 = v_tmp
    a.e(f"v_and_b32 v{t0}, 3, v0"); a.e(f"v_lshlrev_b32 v{t0}, 2, v{t0}")
    a.e(f"v_and_b32 v{t0+1}, 2, v0"); a.e(f"v_or_b32 v{t0}, v{t0}, v{t0+1}")
    a.e(f"v_bfe_u32 v{t0+1}, v0, 2, 1"); a.e(f"v_or_b32 v{t0}, v{t0}, v{t0+1}")
    a.e(f"v_lshrrev_b32 v{t0+1}, 5, v0"); a.e(f"s_lshl_b32 s{s_t2}, s{s_hp}, 1"); a.e(f"v_add_u32 v{t0+1}, s{s_t2}, v{t0+1}")
    a.e(f"v_lshlrev_b32 v{t0+1}, 2, v{t0+1}"); a.e(f"v_xor_b32 v{t0}, v{t0}, v{t0+1}")
    a.e(f"v_and_b32 v{t0+1}, 31, v0"); a.e(f"s_lshl_b32 s{s_t2}, s{s_tb}, 5"); a.e(f"v_add_u32 v{t0+1}, s{s_t2}, v{t0+1}")
    a.e(f"v_lshlrev_b32 v{t0+1}, 8, v{t0+1}"); a.e(f"v_lshl_add_u32 v{t0}, v{t0}, 4, v{t0+1}")
    for i in range(4):
        if i: a.e(f"v_xor_b32 v{t0+1}, {i<<4}, v{t0}")
        a.e(f"ds_write_b128 v{t0 if i == 0 else t0+1}, {vr(v_pk+4*i,4)} offset:{PHIK}")
    a.e("s_waitcnt lgkmcnt(0)")
    T(7)
    a.e("s_barrier")
    T(8)
    kvacc = v_p; fa = v_en; fb = v_en + 8
    a.e(f"v_lshrrev_b32 v{t0}, 5, v0"); a.e(f"v_lshlrev_b32 v{t0}, 3, v{t0}")
    a.e(f"v_bfe_u32 v{t0+1}, v0, 2, 2"); a.e(f"v_add_u32 v{t0}, v{t0}, v{t0+1}")
    a.e(f"v_and_b32 v{t0+2}, 3, v0")
    a.e(f"v_mul_u32_u24 v{t0+3}, 160, v{t0}"); a.e(f"v_lshl_add_u32 v{t0+3}, v{t0+2}, 3, v{t0+3}")
    a.e(f"s_lshl_b32 s{s_t2}, s{s_w}, 5"); a.e(f"v_mov_b32 v{t0+4}, s{s_t2}")
    a.e(f"v_bfe_u32 v{t0+5}, v0, 4, 1"); a.e(f"v_cmp_eq_u32 vcc, 1, v{t0+5}")
    a.e(f"v_mov_b32 v{t0+6}, 128")
    a.e("s_nop 0")
    a.e(f"v_cndmask_b32 v{t0+4}, v{t0+4}, v{t0+6}, vcc"); a.e(f"v_add_u32 v{t0+3}, v{t0+3}, v{t0+4}")
    a.e(f"v_lshrrev_b32 v{t0+4}, 1, v{t0+2}"); a.e(f"v_lshl_add_u32 v{t0+4}, v{t0+5}, 1, v{t0+4}")
    a.e(f"s_lshl_b32 s{s_t2}, s{s_w}, 2"); a.e(f"v_add_u32 v{t0+4}, s{s_t2}, v{t0+4}")
    a.e(f"v_lshlrev_b32 v{t0+5}, 2, v{t0+1}"); a.e(f"v_and_b32 v{t0+6}, 2, v{t0+1}"); a.e(f"v_or_b32 v{t0+5}, v{t0+5}, v{t0+6}")
    a.e(f"v_xor_b32 v{t0+4}, v{t0+4}, v{t0+5}")
    a.e(f"v_lshlrev_b32 v{t0+4}, 4, v{t0+4}"); a.e(f"v_lshl_add_u32 v{t0+4}, v{t0}, 8, v{t0+4}")
    a.e(f"v_and_b32 v{t0+5}, 1, v{t0+2}"); a.e(f"v_lshl_add_u32 v{t0+4}, v{t0+5}, 3, v{t0+4}")
    a.e(f"v_xor_b32 v{t0+5}, 16, v{t0+4}")
    def kv_rd(u, buf):
        a.e(f"ds_read_b64_tr_b16 {vr(fa+4*buf,2)}, v{t0+3} offset:{VV+u*2560}")
        a.e(f"ds_read_b64_tr_b16 {vr(fa+4*buf+2,2)}, v{t0+3} offset:{VV+u*2560+640}")
        a.e(f"ds_read_b64_tr_b16 {vr(fb+4*buf,2)}, v{t0+4} offset:{PHIK+u*4096}")
        a.e(f"ds_read_b64_tr_b16 {vr(fb+4*buf+2,2)}, v{t0+5} offset:{PHIK+u*4096+1024}")
    kv_rd(0, 0)
    for u in range(4):
        if u < 3:
            kv_rd(u + 1, (u + 1) & 1); a.e("s_waitcnt lgkmcnt(4)")
        else: a.e("s_waitcnt lgkmcnt(0)")
        a.e(f"{MF} {vr(kvacc,16)}, {vr(fa+4*(u&1),4)}, {vr(fb+4*(u&1),4)}, {'0' if u == 0 else vr(kvacc,16)}")
    T(9)
    a.e("s_waitcnt vmcnt(0)")
    a.lab("K1_POLL")
    a.e(f"v_readfirstlane_b32 s{s_t2}, v{v_t+7}")
    a.e("s_nop 3")
    a.e(f"s_cmp_lg_u32 s{s_t2}, 0")
    a.e("s_cbranch_scc1 K1_GO")
    a.e(f"buffer_load_dword v{v_t+7}, v{v_t+6}, s[{SRD_D}:{SRD_D+3}], 0 offen offset:64 sc1")
    a.e("s_waitcnt vmcnt(0)")
    a.e("s_branch K1_POLL")
    a.lab("K1_GO")
    a.e(f"s_lshl_b32 s{s_t2}, s{s_hq}, 2"); a.e(f"s_add_u32 s{s_t2}, s{s_t2}, s{s_w}")
    a.e(f"s_mul_i32 s{s_t2}, s{s_t2}, {17*128}"); a.e(f"s_add_u32 s{s_t2}, s{s_t2}, {OFF_KV}")
    a.e(f"v_and_b32 v{t0}, 31, v0"); a.e(f"v_lshlrev_b32 v{t0}, 2, v{t0}")
    a.e(f"v_lshrrev_b32 v{t0+1}, 5, v0"); a.e(f"v_lshl_add_u32 v{t0+2}, v{t0+1}, 9, v{t0}")
    a.e("s_nop 7")
    for r in range(8):
        a.e(f"buffer_atomic_add_f32 v{kvacc+r}, v{t0+2}, s[{SRD_WS}:{SRD_WS+3}], s{s_t2} offen offset:{((r&3)+8*(r>>2))*128}")
    a.e("v_cmp_gt_u32 vcc, 32, v0")
    a.e(f"s_and_saveexec_b64 s[{s_c0}:{s_c0+1}], vcc")
    a.e(f"buffer_atomic_add_f32 v{kvacc+8}, v{t0}, s[{SRD_WS}:{SRD_WS+3}], s{s_t2} offen offset:{16*128}")
    if dbg:
        T(10); a.e("s_waitcnt vmcnt(0)"); T(11); T.real(14); T.dump(S_WS, s_w, v_tmp)
    a.lab("K1_END")
    a.e("s_endpgm")
    nv = max(H.hi, C.hi, Cp.hi, L.hi)
    kernel_desc(a, name, nv, 102 if dbg else 64, (nv + 3) // 4 * 4)
    return (name, 256, 512, LDS)
```

```python
from glib import *

def gen_k2(a, dbg=False, TOUCH=False):
    name = "k2_kernel"
    T = Stamps(a, dbg, 1)
    WO = 0; KVB = 65536; RED = 0
    LDS = KVB + 4 * 8704
    kernel_begin(a, name)
    S_X, S_WO, S_DBG, S_WS = 4, 6, 12, 14
    SRD_X, SRD_WO, SRD_WS = 16, 20, 28
    s_w, s_rb, s_cb = 36, 37, 38
    s_t0, s_t1, s_t2, s_t3 = 40, 41, 42, 43
    a.e("s_cmp_ge_u32 s2, 256")
    a.e("s_cbranch_scc1 K2_END")
    T.real(15); T(0)
    a.e("s_load_dwordx2 s[4:5], s[0:1], 0")
    a.e("s_load_dwordx2 s[6:7], s[0:1], 24")
    a.e("s_load_dwordx2 s[14:15], s[0:1], 80")
    a.e("v_lshrrev_b32 v1, 6, v0")
    a.e("v_and_b32 v0, 63, v0")
    a.e(f"v_readfirstlane_b32 s{s_w}, v1")
    a.e(f"s_and_b32 s{s_t0}, s2, 7"); a.e(f"s_lshr_b32 s{s_t1}, s2, 3")
    a.e(f"s_lshl_b32 s{s_rb}, s{s_t0}, 2"); a.e(f"s_and_b32 s{s_t2}, s{s_t1}, 3"); a.e(f"s_add_u32 s{s_rb}, s{s_rb}, s{s_t2}")
    a.e(f"s_lshr_b32 s{s_cb}, s{s_t1}, 2")
    V = VAlloc(2)
    v_dum = V(1); v_l128 = V(1); v_l16 = V(1); v_dma = V(1); v_kw = V(1); v_ka = V(1); v_wa0 = V(1); v_wa1 = V(1); v_t = V(8, 2)
    v_xr = V(8, 4)
    acc = V(64, 4)
    v_kv = V(68, 4)
    D = v_kv
    kA = V(16, 4)
    wA = V(16, 4)
    oF = V(8, 4)
    NV = V.hi
    PHI = 0
    a.e(f"v_lshlrev_b32 v{v_l16}, 4, v0")
    a.e(f"v_lshrrev_b32 v{v_t}, 3, v0"); a.e(f"v_lshlrev_b32 v{v_t}, 10, v{v_t}")
    a.e(f"v_bfe_u32 v{v_t+1}, v0, 4, 1"); a.e(f"v_lshlrev_b32 v{v_t+1}, 2, v{v_t+1}")
    a.e(f"v_and_b32 v{v_t+2}, 7, v0"); a.e(f"v_xor_b32 v{v_t+1}, v{v_t+1}, v{v_t+2}")
    a.e(f"v_lshl_add_u32 v{v_dma}, v{v_t+1}, 4, v{v_t}")
    a.e("s_waitcnt lgkmcnt(0)")
    srd(a, SRD_WS, S_WS, WS_BYTES); srd(a, SRD_WO, S_WO, 512*1024); srd(a, SRD_X, S_X, 2048*1024)
    VM = Cnt(a, "vmcnt", 63); LG = Cnt(a, "lgkmcnt", 15)
    if TOUCH:
        a.e(f"v_lshlrev_b32 v{v_l128}, 7, v0")
        a.e(f"s_and_b32 s{s_t0}, s2, 7"); a.e(f"s_lshl_b32 s{s_t0}, s{s_t0}, 19"); a.e(f"s_add_u32 s{s_t0}, s{s_t0}, {OFF_PHIQ}")
        a.e(f"s_lshr_b32 s{s_t1}, s2, 3"); a.e(f"s_lshl_b32 s{s_t1}, s{s_t1}, 2"); a.e(f"s_add_u32 s{s_t1}, s{s_t1}, s{s_w}")
        touch_contig(a, SRD_WS, ('s', s_t0), 32, s_t1, v_l128, v_dum, s_t2, VM)
    s_cs = 58
    a.e("s_load_dwordx4 s[60:63], s[0:1], 40")
    a.e(f"s_lshr_b32 s{s_t1}, s2, 3")
    a.e(f"s_cmp_ge_u32 s{s_t1}, 14"); a.e(f"s_cselect_b32 s{s_t2}, 14, 0"); a.e(f"s_cselect_b32 s{s_cs+1}, 1, 0")
    a.e(f"s_sub_u32 s{s_t2}, s{s_t1}, s{s_t2}")
    a.e("s_waitcnt lgkmcnt(0)")
    a.e(f"s_cmp_eq_u32 s{s_cs+1}, 1"); a.e("s_cselect_b32 s60, s62, s60"); a.e("s_cselect_b32 s61, s63, s61")
    srd(a, 24, 60, 512*3584)
    a.e(f"s_bfe_u32 s{s_t3}, s2, 0x10002"); a.e(f"s_mul_i32 s{s_t3}, s{s_t3}, 14"); a.e(f"s_add_u32 s{s_t2}, s{s_t2}, s{s_t3}")
    a.e(f"s_and_b32 s{s_t3}, s2, 3"); a.e(f"s_lshl_b32 s{s_t3}, s{s_t3}, 2"); a.e(f"s_add_u32 s{s_t3}, s{s_t3}, s{s_w}")
    a.e(f"s_mul_i32 s{s_cs}, s{s_t3}, 3584"); a.e(f"s_mul_i32 s{s_cs+1}, s{s_cs+1}, 1792"); a.e(f"s_add_u32 s{s_cs}, s{s_cs}, s{s_cs+1}")
    a.e(f"s_lshl_b32 s{s_cs+1}, s{s_t2}, 6"); a.e(f"s_add_u32 s{s_cs}, s{s_cs}, s{s_cs+1}"); a.e(f"s_lshl_b32 s{s_cs}, s{s_cs}, 2"); a.e(f"s_add_u32 s{s_cs}, s{s_cs}, {OFF_CS}")
    a.e(f"s_mul_i32 s{s_t3}, s{s_t3}, {32*3584}"); a.e(f"s_lshl_b32 s{s_t2}, s{s_t2}, 7"); a.e(f"s_add_u32 s{s_t3}, s{s_t3}, s{s_t2}")
    a.e(f"v_lshrrev_b32 v{v_t}, 3, v0"); a.e(f"v_mul_u32_u24 v{v_t}, 3584, v{v_t}"); a.e(f"v_and_b32 v{v_t+1}, 7, v0"); a.e(f"v_lshl_add_u32 v{v_t}, v{v_t+1}, 4, v{v_t}")
    a.e(f"s_cmp_ge_u32 s{s_t1}, 28"); a.e(f"s_cselect_b32 s{s_cs+1}, 1, 0")
    a.e(f"s_cselect_b32 s{s_t3}, 0x7f000000, s{s_t3}")
    for k in range(4):
        VM.op(f"buffer_load_dwordx4 {vr(acc+4*k,4)}, v{v_t}, s[24:27], s{s_t3} offen", "cs")
        if k < 3: a.e(f"s_add_u32 s{s_t3}, s{s_t3}, {8*3584}")
    a.e(f"s_mul_i32 s{s_t0}, s{s_w}, 17408"); a.e(f"s_add_u32 s{s_t0}, s{s_t0}, {OFF_KV}")
    for i in range(17):
        if i and i % 4 == 0: a.e(f"s_add_u32 s{s_t0}, s{s_t0}, 4096")
        VM.op(f"buffer_load_dwordx4 {vr(v_kv+4*i,4)}, v{v_l16}, s[{SRD_WS}:{SRD_WS+3}], s{s_t0} offen offset:{(i%4)*1024}", "kv")
    s_pb, s_wb, s_m, s_ph, s_a, s_b = 52, 53, 54, 55, 56, 57
    a.e(f"s_lshl_b32 s{s_pb}, s{s_rb}, 6")
    a.e(f"s_lshl_b32 s44, s{s_w}, 3"); a.e(f"s_add_u32 s{s_pb}, s{s_pb}, s44")
    a.e(f"s_lshl_b32 s{s_pb}, s{s_pb}, 11"); a.e(f"s_add_u32 s{s_pb}, s{s_pb}, {OFF_PHIQ}")
    a.e(f"s_lshl_b32 s{s_wb}, s{s_w}, 17"); a.e(f"s_lshl_b32 s44, s{s_cb}, 7"); a.e(f"s_add_u32 s{s_wb}, s{s_wb}, s44")
    a.e(f"s_lshl_b32 s{s_m}, s{s_w}, 14")
    def issue_head(hd):
        a.e(f"s_add_u32 s{s_ph}, s{s_cb}, {hd}"); a.e(f"s_and_b32 s{s_ph}, s{s_ph}, 7")
        a.e(f"s_lshl_b32 s{s_a}, s{s_ph}, 11"); a.e(f"s_add_u32 s{s_a}, s{s_a}, s{s_pb}")
        a.e(f"s_add_u32 s{s_b}, s{s_a}, {32*2048}")
        for tb in range(2):
            for s in range(2):
                sp = s_a if tb == 0 else s_b
                VM.op(f"buffer_load_dwordx4 {ar(PHI+(hd*4+tb*2+s)*4,4)}, v{v_l16}, s[{SRD_WS}:{SRD_WS+3}], s{sp} offen offset:{s*1024}", ("phi", hd))
        a.e(f"s_lshl_b32 s{s_a}, s{s_ph}, 14"); a.e(f"s_add_u32 s{s_a}, s{s_a}, s{s_wb}")
        for i in range(2):
            a.e(f"s_add_u32 m0, s{s_m}, {WO + (hd*2+i)*1024}")
            if i: a.e(f"s_add_u32 s{s_a}, s{s_a}, 8192")
            else: a.e("s_nop 0")
            VM.op(f"buffer_load_dwordx4 v{v_dma}, s[{SRD_WO}:{SRD_WO+3}], s{s_a} offen lds", ("wo", hd))
    AH = 3
    for hd in range(AH): issue_head(hd)
    T(1)
    a.e(f"v_and_b32 v{v_t}, 31, v0"); a.e(f"v_lshlrev_b32 v{v_t}, 10, v{v_t}")
    a.e(f"v_lshrrev_b32 v{v_t+1}, 5, v0"); a.e(f"v_lshl_add_u32 v{v_t}, v{v_t+1}, 4, v{v_t}")
    a.e(f"s_and_b32 s44, s{s_w}, 1"); a.e(f"s_lshl_b32 s45, s{s_rb}, 1"); a.e(f"s_add_u32 s45, s45, s44")
    a.e(f"s_lshl_b32 s46, s45, 15")
    a.e(f"s_lshr_b32 s47, s{s_w}, 1")
    a.e(f"s_lshl_b32 s48, s{s_cb}, 1"); a.e(f"s_add_u32 s48, s48, s47")
    a.e(f"s_lshl_b32 s49, s48, 6"); a.e(f"s_add_u32 s46, s46, s49")
    for i in range(2):
        VM.op(f"buffer_load_dwordx4 {vr(v_xr+4*i,4)}, v{v_t}, s[{SRD_X}:{SRD_X+3}], s46 offen offset:{32*i}", "x")
    a.e(f"s_mul_i32 s{s_t0}, s{s_w}, 8704"); a.e(f"s_add_u32 s{s_t0}, s{s_t0}, {KVB}")
    a.e(f"v_lshlrev_b32 v{v_kw}, 3, v0"); a.e(f"v_add_u32 v{v_kw}, s{s_t0}, v{v_kw}")
    a.e(f"v_and_b32 v{v_t+2}, 31, v0"); a.e(f"v_min_u32 v{v_t+2}, 16, v{v_t+2}"); a.e(f"v_lshlrev_b32 v{v_t+2}, 6, v{v_t+2}")
    a.e(f"v_lshrrev_b32 v{v_t+3}, 5, v0"); a.e(f"v_lshl_add_u32 v{v_t+2}, v{v_t+3}, 4, v{v_t+2}")
    a.e(f"v_add_u32 v{v_ka}, s{s_t0}, v{v_t+2}")
    a.e(f"v_lshrrev_b32 v{v_t+2}, 5, v0"); a.e(f"v_lshlrev_b32 v{v_t+2}, 2, v{v_t+2}")
    a.e(f"v_bfe_u32 v{v_t+3}, v0, 2, 2"); a.e(f"v_add_u32 v{v_t+2}, v{v_t+2}, v{v_t+3}")
    a.e(f"v_lshlrev_b32 v{v_t+2}, 7, v{v_t+2}")
    a.e(f"v_bfe_u32 v{v_t+3}, v0, 3, 1"); a.e(f"v_lshl_add_u32 v{v_t+2}, v{v_t+3}, 6, v{v_t+2}")
    a.e(f"v_bfe_u32 v{v_t+3}, v0, 4, 1"); a.e(f"v_lshl_add_u32 v{v_t+2}, v{v_t+3}, 5, v{v_t+2}")
    a.e(f"v_and_b32 v{v_t+3}, 1, v0"); a.e(f"v_lshl_add_u32 v{v_t+2}, v{v_t+3}, 4, v{v_t+2}")
    a.e(f"v_bfe_u32 v{v_t+3}, v0, 1, 1"); a.e(f"v_lshl_add_u32 v{v_t+2}, v{v_t+3}, 3, v{v_t+2}")
    a.e(f"s_lshl_b32 s{s_t0}, s{s_w}, 14")
    a.e(f"v_add_u32 v{v_wa0}, s{s_t0}, v{v_t+2}"); a.e(f"v_xor_b32 v{v_wa1}, 64, v{v_wa0}")
    VM.need("cs")
    cs = acc + 16
    for k in range(4):
        for r in range(4):
            x = acc + 4*k + r
            a.e(f"v_lshlrev_b32 v{acc+32}, 16, v{x}"); a.e(f"v_and_b32 v{acc+33}, 0xffff0000, v{x}")
            if k == 0:
                a.e(f"v_mov_b32 v{cs+2*r}, v{acc+32}"); a.e(f"v_mov_b32 v{cs+2*r+1}, v{acc+33}")
            else:
                a.e(f"v_pk_add_f32 {vr(cs+2*r,2)}, {vr(cs+2*r,2)}, {vr(acc+32,2)}")
    a.e("s_nop 1")
    for j in range(8): a.e(f"v_add_f32_dpp v{cs+j}, v{cs+j}, v{cs+j} row_ror:8 row_mask:0xf bank_mask:0xf")
    for op in ("v_permlane16_swap_b32", "v_permlane32_swap_b32"):
        for j in range(8): a.e(f"v_mov_b32 v{acc+32+j}, v{cs+j}")
        a.e("s_nop 1")
        for j in range(8): a.e(f"{op} v{cs+j}, v{acc+32+j}")
        a.e("s_nop 1")
        for j in range(8): a.e(f"v_add_f32 v{cs+j}, v{cs+j}, v{acc+32+j}")
    a.e(f"s_cmp_eq_u32 s{s_cs+1}, 1"); a.e(f"s_cselect_b32 s{s_cs}, 0x7f000000, s{s_cs}")
    a.e(f"v_lshlrev_b32 v{acc+32}, 5, v0")
    a.e("v_cmp_gt_u32 vcc, 8, v0"); a.e("s_and_saveexec_b64 s[50:51], vcc")
    for q in range(2):
        VM.op(f"buffer_store_dwordx4 {vr(cs+4*q,4)}, v{acc+32}, s[{SRD_WS}:{SRD_WS+3}], s{s_cs} offen offset:{16*q}", "csst")
    a.e("s_mov_b64 exec, s[50:51]")
    a.e("s_nop 1")
    for i in range(64): a.e(f"v_mov_b32 v{acc+i}, 0")
    VM.need("kv")
    T(2)
    for i in range(17):
        b = v_kv + 4*i
        a.e(f"v_cvt_pk_bf16_f32 v{b}, v{b}, v{b+1}"); a.e(f"v_cvt_pk_bf16_f32 v{b+1}, v{b+2}, v{b+3}")
        LG.op(f"ds_write_b64 v{v_kw}, {vr(b,2)} offset:{i*512}", "kw")
    LG.drain()
    def rd_k(hd):
        p = hd & 1
        a.e(f"s_add_u32 s{s_ph}, s{s_cb}, {hd}"); a.e(f"s_and_b32 s{s_ph}, s{s_ph}, 7"); a.e(f"s_mul_i32 s{s_ph}, s{s_ph}, 1088")
        a.e(f"v_add_u32 v{v_t+6}, s{s_ph}, v{v_ka}")
        for s in range(2):
            LG.op(f"ds_read_b128 {vr(kA+8*p+4*s,4)}, v{v_t+6} offset:{s*32}", ("k", hd))
    def rd_w(hd):
        p = hd & 1
        VM.need(("wo", hd))
        for nb in range(2):
            va = v_wa0 if nb == 0 else v_wa1
            LG.op(f"ds_read_b64_tr_b16 {vr(wA+8*p+4*nb,2)}, v{va} offset:{WO+hd*2048}", ("w", hd))
            LG.op(f"ds_read_b64_tr_b16 {vr(wA+8*p+4*nb+2,2)}, v{va} offset:{WO+hd*2048+1024}", ("w", hd))
    def num(hd):
        p = hd & 1
        VM.need(("phi", hd)); LG.need(("k", hd))
        for s in range(2):
            for tb in range(2):
                d = D + 32*p + 16*tb
                a.e(f"{MF} {vr(d,16)}, {vr(kA+8*p+4*s,4)}, {ar(PHI+(hd*4+tb*2+s)*4,4)}, {'0' if s == 0 else vr(d,16)}")
    def fin(hd):
        p = hd & 1
        for tb in range(2):
            d = D + 32*p + 16*tb
            a.e(f"v_add_f32 v{d+8}, {fx(1e-6)}, v{d+8}")
            a.e(f"v_rcp_f32 v{d+8}, v{d+8}")
        a.e("s_nop 0")
        for tb in range(2):
            d = D + 32*p + 16*tb
            for i in range(0, 8, 2):
                a.e(f"v_pk_mul_f32 {vr(d+i,2)}, {vr(d+i,2)}, {vr(d+8,2)} op_sel_hi:[1,0]")
        for tb in range(2):
            d = D + 32*p + 16*tb
            for i in range(4):
                a.e(f"v_cvt_pk_bf16_f32 v{oF+4*tb+i}, v{d+2*i}, v{d+2*i+1}")
        LG.need(("w", hd))
        a.e("s_nop 1")
        for nb in range(2):
            for tb in range(2):
                ti = tb + 2*nb
                a.e(f"{MF} {vr(acc+16*ti,16)}, {vr(wA+8*p+4*nb,4)}, {vr(oF+4*tb,4)}, {vr(acc+16*ti,16)}")
    rd_k(0)
    for hd in range(8):
        if hd + AH < 8: issue_head(hd + AH)
        num(hd)
        if hd < 7: rd_k(hd + 1)
        rd_w(hd)
        if hd >= 1: fin(hd - 1)
    a.e("s_nop 7"); a.e("s_nop 3")
    fin(7)
    T(3)
    a.e("s_barrier")
    a.e(f"s_lshl_b32 s{s_t0}, s{s_w}, 12")
    a.e(f"v_add_u32 v{v_t}, s{s_t0}, v{v_l16}")
    a.e("s_nop 7"); a.e("s_nop 3")
    for ti in range(4):
        for q in range(4):
            a.e(f"ds_write_b128 v{v_t}, {vr(acc+16*ti+4*q,4)} offset:{RED+ti*16384+q*1024}")
    a.e("s_waitcnt lgkmcnt(0)")
    a.e("s_barrier")
    T(4)
    a.e(f"s_lshl_b32 s{s_t0}, s{s_w}, 14")
    a.e(f"v_add_u32 v{v_t}, s{s_t0}, v{v_l16}")
    for sw in range(4):
        for q in range(4):
            a.e(f"ds_read_b128 {vr(acc+16*sw+4*q,4)}, v{v_t} offset:{RED+sw*4096+q*1024}")
    a.e("s_waitcnt vmcnt(0) lgkmcnt(0)")
    for i in range(0, 16, 2):
        a.e(f"v_pk_add_f32 {vr(acc+i,2)}, {vr(acc+i,2)}, {vr(acc+16+i,2)}")
        a.e(f"v_pk_add_f32 {vr(acc+32+i,2)}, {vr(acc+32+i,2)}, {vr(acc+48+i,2)}")
    for i in range(0, 16, 2):
        a.e(f"v_pk_add_f32 {vr(acc+i,2)}, {vr(acc+i,2)}, {vr(acc+32+i,2)}")
    for i in range(8):
        a.e(f"v_lshlrev_b32 v{v_t+2}, 16, v{v_xr+i}")
        a.e(f"v_and_b32 v{v_t+3}, 0xffff0000, v{v_xr+i}")
        a.e(f"v_add_f32 v{acc+2*i}, v{acc+2*i}, v{v_t+2}")
        a.e(f"v_add_f32 v{acc+2*i+1}, v{acc+2*i+1}, v{v_t+3}")
        a.e(f"v_cvt_pk_bf16_f32 v{v_xr+i}, v{acc+2*i}, v{acc+2*i+1}")
    a.e(f"s_lshl_b32 s{s_t0}, s45, 5"); a.e(f"s_lshl_b32 s{s_t1}, s48, 1"); a.e(f"s_add_u32 s{s_t0}, s{s_t0}, s{s_t1}")
    a.e(f"s_lshl_b32 s{s_t0}, s{s_t0}, 10"); a.e(f"s_add_u32 s{s_t0}, s{s_t0}, {OFF_H}")
    for i in range(2):
        a.e(f"buffer_store_dwordx4 {vr(v_xr+4*i,4)}, v{v_l16}, s[{SRD_WS}:{SRD_WS+3}], s{s_t0} offen offset:{i*1024}")
    a.e(f"v_mov_b32 v{v_t}, 0"); a.e(f"v_mov_b32 v{v_t+1}, 0"); a.e(f"v_mov_b32 v{v_t+2}, 0x3f803f80")
    for i in range(8):
        a.e(f"v_dot2_f32_bf16 v{v_t}, v{v_xr+i}, v{v_t+2}, v{v_t}")
        a.e(f"v_dot2_f32_bf16 v{v_t+1}, v{v_xr+i}, v{v_xr+i}, v{v_t+1}")
    xhalf_sum(a, v_t, v_t+3); xhalf_sum(a, v_t+1, v_t+4)
    a.e(f"s_lshl_b32 s{s_t0}, s45, 12"); a.e(f"s_lshl_b32 s{s_t1}, s48, 3"); a.e(f"s_add_u32 s{s_t0}, s{s_t0}, s{s_t1}")
    a.e(f"s_add_u32 s{s_t0}, s{s_t0}, {OFF_ST2}")
    a.e(f"v_and_b32 v{v_t+2}, 31, v0"); a.e(f"v_lshlrev_b32 v{v_t+2}, 7, v{v_t+2}")
    a.e("v_cmp_gt_u32 vcc, 32, v0")
    a.e("s_and_saveexec_b64 s[50:51], vcc")
    a.e(f"buffer_store_dwordx2 {vr(v_t,2)}, v{v_t+2}, s[{SRD_WS}:{SRD_WS+3}], s{s_t0} offen")
    if dbg:
        T(5); T.real(14); T.dump(S_WS, s_w, v_t+4)
    a.lab("K2_END")
    a.e("s_endpgm")
    accum = (NV + 3) // 4 * 4
    kernel_desc(a, name, accum + 128, 102 if dbg else 64, accum)
    return (name, 256, 256, LDS)
```

```python
from glib import *

def gen_k1(a, dbg=False, prefetch=True, TOUCH=False, CODEPF=11):
    name = "k1_kernel"
    T = Stamps(a, dbg, 0)
    WPHI = 0; ZERO = 2048
    XR = 4096
    WR = XR + 65536; WSLOT = 24576; NST = 3; NSTG = 8
    LDS = WR + NST * WSLOT
    QX = XR; PHIK = XR + 8192; VV = XR + 8192 + 16384
    kernel_begin(a, name)
    S_X, S_W, S_PHI, S_DBG, S_WS = 4, 6, 8, 12, 14
    SRD_X, SRD_W, SRD_P, SRD_WS, SRD_D = 16, 20, 24, 28, 32
    s_w, s_rb, s_hq, s_rot, s_j, s_role = 36, 37, 38, 39, 50, 51
    s_t0, s_t1, s_t2, s_t3, s_c0 = 40, 41, 42, 43, 52
    a.e("s_cmp_ge_u32 s2, 256")
    a.e("s_cbranch_scc1 K1_END")
    T.real(15); T(0)
    a.e("s_load_dwordx4 s[4:7], s[0:1], 0")
    a.e("s_load_dwordx2 s[8:9], s[0:1], 16")
    a.e("s_load_dwordx4 s[12:15], s[0:1], 72")
    a.e("v_lshrrev_b32 v1, 6, v0")
    a.e("v_and_b32 v0, 63, v0")
    a.e(f"v_readfirstlane_b32 s{s_w}, v1")
    a.e(f"s_and_b32 s{s_t0}, s2, 7"); a.e(f"s_lshr_b32 s{s_t1}, s2, 3")
    a.e(f"s_and_b32 s{s_rb}, s{s_t0}, 3"); a.e(f"s_lshl_b32 s{s_rb}, s{s_rb}, 3"); a.e(f"s_and_b32 s{s_t2}, s{s_t1}, 7"); a.e(f"s_add_u32 s{s_rb}, s{s_rb}, s{s_t2}")
    a.e(f"s_lshr_b32 s{s_hq}, s{s_t0}, 2"); a.e(f"s_lshl_b32 s{s_hq}, s{s_hq}, 2"); a.e(f"s_lshr_b32 s{s_t3}, s{s_t1}, 3"); a.e(f"s_add_u32 s{s_hq}, s{s_hq}, s{s_t3}")
    a.e(f"s_mov_b32 s{s_rot}, s{s_t2}")
    a.e(f"s_and_b32 s{s_j}, s{s_w}, 3")
    V = VAlloc(2)
    v_dum = V(2, 2); v_wa = V(8, 4); v_x0 = V(8, 4); v_p = V(16, 4); v_en = V(16, 4); v_pk = V(16, 4); v_tmp = V(8, 2)
    common_end = V.mark()
    L = VAlloc(common_end)
    v_xl = L(64, 4); v_xu = L(64, 4); v_s = L(2, 2); v_q = L(2, 2); v_lt = L(6, 2)
    ln_end = L.mark()
    a.e(f"v_lshrrev_b32 v{v_lt}, 3, v0"); a.e(f"v_lshlrev_b32 v{v_lt}, 10, v{v_lt}")
    a.e(f"v_and_b32 v{v_lt+1}, 7, v0"); a.e(f"v_lshl_add_u32 v{v_lt}, v{v_lt+1}, 4, v{v_lt}")
    a.e(f"s_lshl_b32 s{s_t0}, s{s_rb}, 2"); a.e(f"s_add_u32 s{s_t0}, s{s_t0}, s{s_j}"); a.e(f"s_lshl_b32 s{s_t0}, s{s_t0}, 14")
    a.e("s_waitcnt lgkmcnt(0)")
    srd(a, SRD_X, S_X, 2048*1024)
    VM = Cnt(a, "vmcnt", 63)
    a.e(f"s_cmp_ge_u32 s{s_w}, 4")
    a.e("s_cbranch_scc1 K1_HPRO")
    for g in range(2):
        for s in range(8):
            a.e(f"buffer_load_dwordx4 {vr(v_xl+32*g+4*s,4)}, v{v_lt}, s[{SRD_X}:{SRD_X+3}], s{s_t0} offen offset:{s*128}")
        if g == 0: a.e(f"s_add_u32 s{s_t0}, s{s_t0}, 8192")
    a.lab("K1_HPRO")
    if CODEPF:
        a.e(f"s_cmp_eq_u32 s{s_w}, 4"); a.e("s_cbranch_scc0 K1_NOCPF")
        a.e("s_getpc_b64 s[54:55]")
        a.lab("K1_PC")
        a.e("s_sub_u32 s54, s54, K1_PC-k1_kernel"); a.e("s_subb_u32 s55, s55, 0")
        a.e(f"s_lshr_b32 s{s_t2}, s2, 3"); a.e(f"s_mul_i32 s{s_t2}, s{s_t2}, {CODEPF}"); a.e(f"v_add_u32 v{v_dum+1}, s{s_t2}, v0"); a.e(f"v_lshlrev_b32 v{v_dum+1}, 7, v{v_dum+1}")
        a.e(f"v_cmp_gt_u32 vcc, {CODEPF}, v0"); a.e(f"s_and_saveexec_b64 s[{s_c0}:{s_c0+1}], vcc")
        a.e(f"s_mov_b32 s{s_t2}, ALL_END-k1_kernel")
        a.e(f"v_cmp_gt_u32 vcc, s{s_t2}, v{v_dum+1}"); a.e("s_and_b64 exec, exec, vcc")
        a.e("s_cbranch_execz K1_CPFX")
        a.e(f"global_load_dword v{v_dum}, v{v_dum+1}, s[54:55]")
        a.lab("K1_CPFX")
        a.e(f"s_mov_b64 exec, s[{s_c0}:{s_c0+1}]")
        a.lab("K1_NOCPF")
    a.e("s_barrier")
    srd(a, SRD_W, S_W, 512*3072)
    srd(a, SRD_WS, S_WS, WS_BYTES)
    a.e(f"s_cmp_ge_u32 s{s_w}, 4")
    a.e("s_cbranch_scc0 K1_CPRO")
    H = VAlloc(ln_end)
    v_wo = H(3); v_h0 = H(4)
    srd(a, SRD_P, S_PHI, 32*512)
    for i in range(3):
        a.e(f"v_lshrrev_b32 v{v_h0}, 3, v0"); a.e(f"v_add_u32 v{v_h0}, {8*i}, v{v_h0}")
        a.e(f"v_mul_u32_u24 v{v_h0+1}, 43, v{v_h0}"); a.e(f"v_lshrrev_b32 v{v_h0+1}, 7, v{v_h0+1}")
        a.e(f"v_mul_u32_u24 v{v_h0+2}, 3, v{v_h0+1}"); a.e(f"v_sub_u32 v{v_h0}, v{v_h0}, v{v_h0+2}")
        a.e(f"v_bfe_u32 v{v_h0+2}, v{v_h0+1}, 1, 1"); a.e(f"v_lshlrev_b32 v{v_h0+2}, 2, v{v_h0+2}")
        a.e(f"v_and_b32 v{v_h0+3}, 7, v0"); a.e(f"v_xor_b32 v{v_h0+2}, v{v_h0+2}, v{v_h0+3}")
        a.e(f"v_mul_u32_u24 v{v_h0+1}, 3072, v{v_h0+1}")
        a.e(f"v_lshl_add_u32 v{v_h0+1}, v{v_h0}, 10, v{v_h0+1}")
        a.e(f"v_lshl_add_u32 v{v_wo+i}, v{v_h0+2}, 4, v{v_h0+1}")
    s_wb, s_wl, s_kst, s_wo = 44, 45, 46, 47
    a.e(f"s_mul_i32 s{s_wb}, s{s_j}, {16*3072}"); a.e(f"s_lshl_b32 s{s_t2}, s{s_hq}, 7"); a.e(f"s_add_u32 s{s_wb}, s{s_wb}, s{s_t2}")
    a.e(f"s_mul_i32 s{s_wl}, s{s_j}, 6144"); a.e(f"s_add_u32 s{s_wl}, s{s_wl}, {WR}")
    a.e(f"s_mov_b32 s{s_kst}, s{s_rot}")
    def issue(st):
        slot = st % NST
        a.e(f"s_mul_i32 s{s_wo}, s{s_kst}, {64*3072}"); a.e(f"s_add_u32 s{s_wo}, s{s_wo}, s{s_wb}")
        a.e(f"s_add_u32 s{s_kst}, s{s_kst}, 1"); a.e(f"s_and_b32 s{s_kst}, s{s_kst}, 7")
        for i in range(6):
            a.e(f"s_add_u32 m0, s{s_wl}, {slot*WSLOT+i*1024}")
            if i == 3: a.e(f"s_add_u32 s{s_wo}, s{s_wo}, {8*3072}")
            else: a.e("s_nop 0")
            VM.op(f"buffer_load_dwordx4 v{v_wo+i%3}, s[{SRD_W}:{SRD_W+3}], s{s_wo} offen lds", ("st", st))
    a.e(f"s_and_b32 s{s_t2}, s{s_j}, 1"); a.e(f"s_lshl_b32 s{s_t2}, s{s_t2}, 10")
    a.e(f"s_add_u32 m0, s{s_t2}, {WPHI}")
    a.e(f"v_lshlrev_b32 v{v_h0}, 4, v0")
    a.e(f"s_lshl_b32 s{s_t3}, s{s_hq}, 11"); a.e(f"s_add_u32 s{s_t2}, s{s_t2}, s{s_t3}")
    VM.op(f"buffer_load_dwordx4 v{v_h0}, s[{SRD_P}:{SRD_P+3}], s{s_t2} offen lds", "wphi")
    nxt = 0
    for _ in range(NST):
        issue(nxt); nxt += 1
    a.e("s_branch K1_HMAIN")
    a.lab("K1_CPRO")
    srd(a, SRD_D, S_DBG, 256)
    Cp = VAlloc(ln_end)
    v_t = Cp(8, 4)
    for i in range(4): a.e(f"v_mov_b32 v{v_t+i}, 0")
    a.e(f"v_mov_b32 v{v_t+4}, {ZERO}")
    a.e(f"ds_write_b128 v{v_t+4}, {vr(v_t,4)}")
    a.e(f"ds_write_b32 v{v_t+4}, v{v_t} offset:16")
    if TOUCH:
        a.e(f"s_lshl_b32 s{s_t2}, s{s_w}, 6"); a.e(f"v_add_u32 v{v_t+5}, s{s_t2}, v0")
        a.e(f"v_mul_u32_u24 v{v_t+6}, 171, v{v_t+5}"); a.e(f"v_lshrrev_b32 v{v_t+6}, 11, v{v_t+6}")
        a.e(f"v_mul_u32_u24 v{v_t+7}, 12, v{v_t+6}"); a.e(f"v_sub_u32 v{v_t+5}, v{v_t+5}, v{v_t+7}")
        a.e(f"v_mul_u32_u24 v{v_t+6}, 3072, v{v_t+6}")
        a.e(f"v_lshrrev_b32 v{v_t+7}, 2, v{v_t+5}"); a.e(f"v_lshl_add_u32 v{v_t+6}, v{v_t+7}, 10, v{v_t+6}")
        a.e(f"v_and_b32 v{v_t+5}, 3, v{v_t+5}"); a.e(f"v_lshl_add_u32 v{v_t+6}, v{v_t+5}, 7, v{v_t+6}")
        a.e(f"s_lshr_b32 s{s_t2}, s2, 3"); a.e(f"s_mul_i32 s{s_t2}, s{s_t2}, {16*3072}")
        a.e(f"s_bfe_u32 s{s_t3}, s2, 0x10002"); a.e(f"s_lshl_b32 s{s_t3}, s{s_t3}, 9"); a.e(f"s_add_u32 s{s_t2}, s{s_t2}, s{s_t3}")
        a.e(f"buffer_load_dword v{v_dum}, v{v_t+6}, s[{SRD_W}:{SRD_W+3}], s{s_t2} offen")
    a.e(f"s_cmp_eq_u32 s{s_w}, 0")
    a.e("s_cbranch_scc0 K1_LN")
    a.e(f"s_lshl_b32 s{s_t2}, s{s_hq}, 2")
    a.e(f"v_mov_b32 v{v_t+4}, s{s_t2}"); a.e(f"v_mov_b32 v{v_t+5}, 1")
    a.e("v_cmp_eq_u32 vcc, 0, v0")
    a.e(f"s_and_saveexec_b64 s[{s_c0}:{s_c0+1}], vcc")
    a.e(f"buffer_atomic_add v{v_t+5}, v{v_t+4}, s[{SRD_D}:{SRD_D+3}], 0 offen sc0")
    a.e("s_waitcnt vmcnt(0)")
    a.e(f"s_mov_b64 exec, s[{s_c0}:{s_c0+1}]")
    a.e("s_nop 0")
    a.e(f"v_readfirstlane_b32 s{s_t2}, v{v_t+5}")
    a.e("s_nop 3")
    a.e(f"s_cmp_eq_u32 s{s_t2}, 0")
    a.e("s_cbranch_scc0 K1_LN")
    a.e(f"s_mul_i32 s{s_t2}, s{s_hq}, 8704"); a.e(f"s_add_u32 s{s_t2}, s{s_t2}, {OFF_KV}")
    a.e(f"v_lshlrev_b32 v{v_t+4}, 4, v0")
    for i in range(8):
        if i == 4: a.e(f"s_add_u32 s{s_t2}, s{s_t2}, 4096")
        a.e(f"buffer_store_dwordx4 {vr(v_t,4)}, v{v_t+4}, s[{SRD_WS}:{SRD_WS+3}], s{s_t2} offen offset:{(i%4)*1024} sc1")
    a.e("v_cmp_gt_u32 vcc, 32, v0")
    a.e(f"s_and_saveexec_b64 s[{s_c0}:{s_c0+1}], vcc")
    a.e(f"s_add_u32 s{s_t2}, s{s_t2}, 4096")
    a.e(f"buffer_store_dwordx4 {vr(v_t,4)}, v{v_t+4}, s[{SRD_WS}:{SRD_WS+3}], s{s_t2} offen sc1")
    a.e("s_waitcnt vmcnt(0)")
    a.e("v_cmp_eq_u32 vcc, 0, v0")
    a.e("s_and_b64 exec, exec, vcc")
    a.e(f"s_lshl_b32 s{s_t2}, s{s_hq}, 2")
    a.e(f"v_mov_b32 v{v_t+4}, s{s_t2}"); a.e(f"v_mov_b32 v{v_t+5}, 1")
    a.e(f"buffer_store_dword v{v_t+5}, v{v_t+4}, s[{SRD_D}:{SRD_D+3}], 0 offen offset:64 sc1")
    a.e(f"s_mov_b64 exec, s[{s_c0}:{s_c0+1}]")
    v_xl0 = v_xl
    def layernorm(g):
        v_xl = v_xl0 + 32*g
        def tick(): pass
        fill = []
        for i in range(32):
            a.e(f"v_lshlrev_b32 v{v_xu+2*i}, 16, v{v_xl+i}")
            a.e(f"v_and_b32 v{v_xu+2*i+1}, 0xffff0000, v{v_xl+i}")
            if i == 0:
                a.e(f"v_pk_mul_f32 {vr(v_q,2)}, {vr(v_xu,2)}, {vr(v_xu,2)}")
                a.e(f"v_mov_b32 v{v_s}, v{v_xu}"); a.e(f"v_mov_b32 v{v_s+1}, v{v_xu+1}")
            else:
                a.e(f"v_pk_add_f32 {vr(v_s,2)}, {vr(v_s,2)}, {vr(v_xu+2*i,2)}")
                a.e(f"v_pk_fma_f32 {vr(v_q,2)}, {vr(v_xu+2*i,2)}, {vr(v_xu+2*i,2)}, {vr(v_q,2)}")
            if i % 4 == 3: tick()
        a.e(f"v_add_f32 v{v_s}, v{v_s}, v{v_s+1}"); a.e(f"v_add_f32 v{v_q}, v{v_q}, v{v_q+1}")
        for ctl in ("quad_perm:[1,0,3,2]", "quad_perm:[2,3,0,1]", "row_half_mirror"):
            a.e("s_nop 1")
            a.e(f"v_add_f32_dpp v{v_s}, v{v_s}, v{v_s} {ctl} row_mask:0xf bank_mask:0xf")
            a.e(f"v_add_f32_dpp v{v_q}, v{v_q}, v{v_q} {ctl} row_mask:0xf bank_mask:0xf")
        a.e(f"v_mul_f32 v{v_s}, {fx(1/512)}, v{v_s}"); a.e(f"v_mul_f32 v{v_q}, {fx(1/512)}, v{v_q}")
        a.e(f"v_fma_f32 v{v_q}, -v{v_s}, v{v_s}, v{v_q}")
        a.e(f"v_max_f32 v{v_q}, 0, v{v_q}"); a.e(f"v_add_f32 v{v_q}, {fx(1e-5)}, v{v_q}")
        a.e(f"v_rsq_f32 v{v_q}, v{v_q}")
        a.e(f"v_lshrrev_b32 v{v_lt}, 4, v0"); a.e(f"v_add_u32 v{v_lt}, {4*g}, v{v_lt}")
        a.e(f"v_mul_f32 v{v_s}, v{v_s}, v{v_q}"); a.e(f"v_sub_f32 v{v_s}, 0, v{v_s}")
        a.e(f"v_xor_b32 v{v_lt}, v{v_lt}, v0"); a.e(f"v_and_b32 v{v_lt}, 7, v{v_lt}")
        a.e(f"v_lshrrev_b32 v{v_lt+1}, 3, v0"); a.e(f"v_lshlrev_b32 v{v_lt+1}, 7, v{v_lt+1}")
        a.e(f"v_lshl_add_u32 v{v_lt}, v{v_lt}, 4, v{v_lt+1}")
        a.e(f"s_lshl_b32 s{s_t0}, s{s_j}, 11"); a.e(f"s_add_u32 s{s_t0}, s{s_t0}, {XR}+{1024}*{0}") if False else None
        a.e(f"s_lshl_b32 s{s_t0}, s{s_j}, 11"); a.e(f"s_add_u32 s{s_t0}, s{s_t0}, {XR + 1024*g}"); a.e(f"v_add_u32 v{v_lt}, s{s_t0}, v{v_lt}")
        for s in range(8):
            for r in range(4):
                i = 4*s + r
                a.e(f"v_pk_fma_f32 {vr(v_xu+2*i,2)}, {vr(v_xu+2*i,2)}, {vr(v_q,2)}, {vr(v_s,2)} op_sel_hi:[1,0,0]")
                a.e(f"v_cvt_pk_bf16_f32 v{v_xl+i}, v{v_xu+2*i}, v{v_xu+2*i+1}")
            a.e(f"ds_write_b128 v{v_lt}, {vr(v_xl+4*s,4)} offset:{s*8192}")
            tick()
        while fill: tick()
    a.lab("K1_LN")
    T(1)
    a.e("s_waitcnt vmcnt(8)")
    T(2)
    layernorm(0)
    a.e("s_waitcnt vmcnt(0)")
    layernorm(1)
    T(3)
    a.e("s_branch K1_CONS")
    a.lab("K1_HMAIN")
    T(1)
    def wphi_frags(tmp):
        a.e(f"v_lshrrev_b32 v{tmp}, 5, v0")
        a.e(f"v_bfe_u32 v{tmp+1}, v0, 2, 2"); a.e(f"v_lshlrev_b32 v{tmp+1}, 5, v{tmp+1}")
        a.e(f"v_lshl_add_u32 v{tmp+1}, v{tmp}, 9, v{tmp+1}")
        a.e(f"v_bfe_u32 v{tmp+2}, v0, 1, 1"); a.e(f"v_bfe_u32 v{tmp+3}, v0, 4, 1")
        a.e(f"v_lshl_add_u32 v{tmp+2}, v{tmp+3}, 1, v{tmp+2}")
        a.e(f"v_lshl_add_u32 v{tmp+1}, v{tmp+2}, 3, v{tmp+1}")
        a.e(f"s_lshr_b32 s{s_t2}, s{s_j}, 1"); a.e(f"s_lshl_b32 s{s_t2}, s{s_t2}, 10"); a.e(f"s_add_u32 s{s_t2}, s{s_t2}, {WPHI}")
        a.e(f"v_add_u32 v{tmp+1}, s{s_t2}, v{tmp+1}")
        a.e(f"v_and_b32 v{tmp+2}, 1, v0")
        a.e(f"v_cmp_eq_u32 vcc, v{tmp+2}, v{tmp}")
        a.e(f"v_mov_b32 v{tmp+3}, {ZERO}")
        a.e("s_nop 0")
        for k in range(4):
            off = (8*(k>>1) + 4*(k&1)) * 32
            a.e(f"v_add_u32 v{tmp+2}, {off}, v{tmp+1}")
            a.e(f"v_cndmask_b32 v{tmp+2}, v{tmp+3}, v{tmp+2}, vcc")
            a.e(f"ds_read_b64_tr_b16 {vr(v_wa+4*(k>>1)+2*(k&1),2)}, v{tmp+2}")
    def prefetch_weights():
        a.e("s_load_dwordx2 s[54:55], s[0:1], 24"); a.e("s_load_dwordx4 s[56:59], s[0:1], 40"); a.e("s_load_dwordx2 s[60:61], s[0:1], 56")
        a.e("s_waitcnt lgkmcnt(0)")
        a.e(f"s_lshr_b32 s{s_t3}, s2, 3")
        a.e(f"s_cmp_eq_u32 s{s_j}, 0"); a.e("s_cbranch_scc0 K1_PF1")
        srd(a, SRD_P, 54, 524288)
        a.e(f"v_lshlrev_b32 v{v_h0}, 7, v0")
        touch_contig(a, SRD_P, 0, 128, s_t3, v_h0, v_dum, s_t2)
        for _ in range(2): a.e(f"buffer_load_dword v{v_dum}, v{v_h0}, s[{SRD_P}:{SRD_P+3}], s{s_t2} offen")
        a.e("s_branch K1_PFE")
        a.lab("K1_PF1")
        a.e(f"s_cmp_eq_u32 s{s_j}, 3"); a.e("s_cbranch_scc1 K1_PF3")
        a.e(f"s_cmp_eq_u32 s{s_j}, 1"); a.e(f"s_cselect_b32 s54, s56, s58"); a.e(f"s_cselect_b32 s55, s57, s59")
        srd(a, SRD_P, 54, 512*3584)
        a.e(f"s_mul_i32 s{s_t2}, s{s_t3}, {16*3584}"); a.e(f"s_bfe_u32 s{s_t3}, s2, 0x10002"); a.e(f"s_mul_i32 s{s_t3}, s{s_t3}, 1792"); a.e(f"s_add_u32 s{s_t2}, s{s_t2}, s{s_t3}")
        for k in range(4):
            a.e(f"v_add_u32 v{v_h0}, {64*k}, v0"); a.e(f"v_mul_u32_u24 v{v_h0+1}, 2341, v{v_h0}"); a.e(f"v_lshrrev_b32 v{v_h0+1}, 15, v{v_h0+1}")
            a.e(f"v_mul_u32_u24 v{v_h0+2}, 14, v{v_h0+1}"); a.e(f"v_sub_u32 v{v_h0}, v{v_h0}, v{v_h0+2}")
            a.e(f"v_mul_u32_u24 v{v_h0+1}, 3584, v{v_h0+1}"); a.e(f"v_lshl_add_u32 v{v_h0}, v{v_h0}, 7, v{v_h0+1}")
            a.e(f"buffer_load_dword v{v_dum}, v{v_h0}, s[{SRD_P}:{SRD_P+3}], s{s_t2} offen")
        a.e("s_branch K1_PFE")
        a.lab("K1_PF3")
        srd(a, SRD_P, 60, 1792*1024)
        a.e(f"v_lshlrev_b32 v{v_h0}, 7, v0")
        a.e(f"s_mov_b32 s{s_t3}, s2")
        touch_contig(a, SRD_P, 0, 56, s_t3, v_h0, v_dum, s_t2)
        for _ in range(3): a.e(f"buffer_load_dword v{v_dum}, v{v_h0}, s[{SRD_P}:{SRD_P+3}], s{s_t2} offen")
        a.lab("K1_PFE")
        pass
        pass
    VM.q = ["wphi"] + [("st", s) for s in range(NST) for _ in range(6)]
    for s in range(NSTG):
        VM.need(("st", s), "wphi")
        if s == 0: a.e("s_waitcnt lgkmcnt(0)")
        a.e("s_barrier")
        T(4 + min(s, 7) // 2) if s % 2 == 0 else None
        lim = min(NSTG - 1, s - 1 + NST)
        while nxt <= lim:
            issue(nxt); nxt += 1
        if s == 0: wphi_frags(v_tmp)
        if s == NSTG - NST and prefetch:
            prefetch_weights(); VM.q += ["pf"] * 4
    T(8)
    a.e(f"s_lshl_b32 s{s_t2}, s{s_j}, 11")
    a.e(f"v_lshlrev_b32 v{v_h0}, 4, v0"); a.e(f"v_add_u32 v{v_h0}, s{s_t2}, v{v_h0}")
    a.e(f"s_mov_b32 s{s_role}, 1")
    a.e("s_barrier")
    a.e("s_barrier")
    T(9)
    a.e(f"ds_read_b128 {vr(v_x0,4)}, v{v_h0} offset:{QX}")
    a.e(f"ds_read_b128 {vr(v_x0+4,4)}, v{v_h0} offset:{QX+1024}")
    a.e("s_waitcnt lgkmcnt(0)")
    a.e("s_branch K1_SOFTMAX")
    a.lab("K1_CONS")
    C = VAlloc(common_end)
    acc = C(48, 4); v_xa = C(4); v_xb = C(4); v_wad = C(1); fx_ = C(8, 4); fw = C(24, 4); v_t = C(8, 4)
    s_tb, s_hp, s_blk = 44, 45, 46
    a.e(f"s_and_b32 s{s_tb}, s{s_w}, 1"); a.e(f"s_lshr_b32 s{s_hp}, s{s_w}, 1")
    a.e(f"v_and_b32 v{v_t}, 31, v0"); a.e(f"v_lshrrev_b32 v{v_t+1}, 5, v0")
    a.e(f"v_lshrrev_b32 v{v_t+2}, 1, v{v_t}"); a.e(f"v_and_b32 v{v_t+2}, 7, v{v_t+2}"); a.e(f"v_xor_b32 v{v_t+1}, v{v_t+1}, v{v_t+2}")
    a.e(f"v_lshlrev_b32 v{v_t}, 7, v{v_t}"); a.e(f"v_lshl_add_u32 v{v_xb}, v{v_t+1}, 4, v{v_t}")
    a.e(f"s_lshl_b32 s{s_t2}, s{s_tb}, 12"); a.e(f"s_add_u32 s{s_t2}, s{s_t2}, {XR}"); a.e(f"v_add_u32 v{v_xb}, s{s_t2}, v{v_xb}")
    for t in range(1, 4): a.e(f"v_xor_b32 v{v_xb+t}, {t<<5}, v{v_xb}")
    a.e(f"s_mov_b32 s{s_blk}, s{s_rot}")
    def set_xblk():
        a.e(f"s_lshl_b32 s{s_t2}, s{s_blk}, 13")
        for t in range(4): a.e(f"v_add_u32 v{v_xa+t}, s{s_t2}, v{v_xb+t}")
        a.e(f"s_add_u32 s{s_blk}, s{s_blk}, 1"); a.e(f"s_and_b32 s{s_blk}, s{s_blk}, 7")
    set_xblk()
    a.e(f"v_lshrrev_b32 v{v_t}, 5, v0"); a.e(f"v_lshlrev_b32 v{v_t}, 3, v{v_t}")
    a.e(f"v_bfe_u32 v{v_t+1}, v0, 2, 2"); a.e(f"v_add_u32 v{v_t}, v{v_t}, v{v_t+1}"); a.e(f"v_mul_u32_u24 v{v_t}, 384, v{v_t}")
    a.e(f"v_bfe_u32 v{v_t+1}, v0, 3, 1"); a.e(f"v_xor_b32 v{v_t+1}, s{s_hp}, v{v_t+1}"); a.e(f"v_lshl_add_u32 v{v_t}, v{v_t+1}, 6, v{v_t}")
    a.e(f"v_and_b32 v{v_t+1}, 1, v0"); a.e(f"v_lshl_add_u32 v{v_t}, v{v_t+1}, 5, v{v_t}")
    a.e(f"v_bfe_u32 v{v_t+1}, v0, 1, 1"); a.e(f"v_bfe_u32 v{v_t+2}, v0, 4, 1"); a.e(f"v_lshl_add_u32 v{v_t+1}, v{v_t+2}, 1, v{v_t+1}")
    a.e(f"v_lshl_add_u32 v{v_wad}, v{v_t+1}, 3, v{v_t}"); a.e(f"v_add_u32 v{v_wad}, {WR}, v{v_wad}")
    for i in range(48): a.e(f"v_mov_b32 v{acc+i}, 0")
    LG = Cnt(a, "lgkmcnt", 15)
    def reads(s, t):
        p = t & 1; o = []
        o.append(lambda: LG.op(f"ds_read_b128 {vr(fx_+4*p,4)}, v{v_xa+t}", ("x", s, t)))
        for cb in range(3):
            for k in range(2):
                o.append(lambda cb=cb, k=k: LG.op(f"ds_read_b64_tr_b16 {vr(fw+12*p+4*cb+2*k,2)}, v{v_wad} offset:{t*6144+cb*128+k*1536}", ("w", s, t, cb)))
        return o
    def step(s, t, nxt_):
        p = t & 1
        def m(cb):
            LG.need(("x", s, t), ("w", s, t, cb))
            a.e(f"{MF} {vr(acc+16*cb,16)}, {vr(fw+12*p+4*cb,4)}, {vr(fx_+4*p,4)}, {vr(acc+16*cb,16)}")
        if t < 3:
            f = nxt_
            m(0); f[0](); f[1](); f[2](); m(1); f[3](); f[4](); m(2); f[5](); f[6]()
        else:
            m(0)
            if nxt_ is not None:
                LG.drain()
                a.e("s_barrier")
                delta = WSLOT if (s + 1) % NST != 0 else -(NST - 1) * WSLOT
                a.e(f"v_add_u32 v{v_wad}, {delta & 0xffffffff:#x}, v{v_wad}")
                set_xblk()
                f = nxt_
                f[0](); f[1](); f[2](); m(1); f[3](); f[4](); m(2); f[5](); f[6]()
            else:
                m(1); m(2)
    a.e("s_waitcnt lgkmcnt(0)")
    a.e("s_barrier")
    T(4)
    for f in reads(0, 0): f()
    wphi_frags(v_tmp)
    LG.q += [("wa", k) for k in range(4)]
    for s in range(NSTG):
        for t in range(4):
            nx = reads(s, t + 1) if t < 3 else (reads(s + 1, 0) if s + 1 < NSTG else None)
            step(s, t, nx)
    T(5)
    a.e("s_barrier")
    a.e(f"s_lshl_b32 s{s_t2}, s{s_j}, 11")
    a.e(f"v_lshlrev_b32 v{v_t}, 4, v0"); a.e(f"v_add_u32 v{v_t}, s{s_t2}, v{v_t}")
    a.e("s_nop 7")
    for i in range(8): a.e(f"v_cvt_pk_bf16_f32 v{v_x0+i}, v{acc+2*i}, v{acc+2*i+1}")
    a.e(f"ds_write_b128 v{v_t}, {vr(v_x0,4)} offset:{QX}")
    a.e(f"ds_write_b128 v{v_t}, {vr(v_x0+4,4)} offset:{QX+1024}")
    a.e("s_waitcnt lgkmcnt(0)")
    a.e("s_barrier")
    T(6)
    a.e(f"s_lshl_b32 s{s_t2}, s{s_hq}, 2"); a.e(f"v_mov_b32 v{v_t+6}, s{s_t2}")
    a.e(f"buffer_load_dword v{v_t+7}, v{v_t+6}, s[{SRD_D}:{SRD_D+3}], 0 offen offset:64 sc1")
    for i in range(8): a.e(f"v_cvt_pk_bf16_f32 v{v_x0+i}, v{acc+16+2*i}, v{acc+16+2*i+1}")
    for i in range(8): a.e(f"v_cvt_pk_bf16_f32 v{acc+32+i}, v{acc+32+2*i}, v{acc+32+2*i+1}")
    a.e(f"v_and_b32 v{v_t}, 31, v0"); a.e(f"s_lshl_b32 s{s_t2}, s{s_tb}, 5"); a.e(f"v_add_u32 v{v_t}, s{s_t2}, v{v_t}")
    a.e(f"v_mul_u32_u24 v{v_t}, 160, v{v_t}")
    a.e(f"v_lshrrev_b32 v{v_t+1}, 5, v0"); a.e(f"s_lshl_b32 s{s_t2}, s{s_hp}, 6")
    a.e(f"v_lshl_add_u32 v{v_t+2}, v{v_t+1}, 5, v{v_t}"); a.e(f"v_add_u32 v{v_t+2}, s{s_t2}, v{v_t+2}")
    a.e(f"ds_write_b128 v{v_t+2}, {vr(acc+32,4)} offset:{VV}")
    a.e(f"ds_write_b128 v{v_t+2}, {vr(acc+36,4)} offset:{VV+16}")
    a.e(f"v_lshl_add_u32 v{v_t+2}, v{v_t+1}, 4, v{v_t}")
    for i in range(4): a.e(f"v_mov_b32 v{v_t+8-8+0+ (i if False else 0)}, v{v_t}") if False else None
    for i in range(4): a.e(f"v_mov_b32 v{acc+40+i}, 0x3f803f80")
    a.e(f"ds_write_b128 v{v_t+2}, {vr(acc+40,4)} offset:{VV+128}")
    a.e(f"s_mov_b32 s{s_role}, 0")
    a.lab("K1_SOFTMAX")
    a.e("s_nop 1")
    a.e(f"{MF} {vr(v_p,16)}, {vr(v_wa,4)}, {vr(v_x0,4)}, 0")
    a.e(f"{MF} {vr(v_p,16)}, {vr(v_wa+4,4)}, {vr(v_x0+4,4)}, {vr(v_p,16)}")
    a.e(f"s_mov_b32 s{s_t3}, {fx(LOG2E)}")
    a.e("s_nop 15")
    mx, mn = v_tmp, v_tmp + 1
    a.e(f"v_max3_f32 v{mx}, v{v_p}, v{v_p+1}, v{v_p+2}"); a.e(f"v_min3_f32 v{mn}, v{v_p}, v{v_p+1}, v{v_p+2}")
    for i in range(3, 15, 2):
        a.e(f"v_max3_f32 v{mx}, v{mx}, v{v_p+i}, v{v_p+i+1}"); a.e(f"v_min3_f32 v{mn}, v{mn}, v{v_p+i}, v{v_p+i+1}")
    a.e(f"v_max_f32 v{mx}, v{mx}, v{v_p+15}"); a.e(f"v_min_f32 v{mn}, v{mn}, v{v_p+15}")
    a.e(f"v_mul_f32 v{mx}, s{s_t3}, v{mx}"); a.e(f"v_mul_f32 v{mn}, s{s_t3}, v{mn}")
    for i in range(16):
        a.e(f"v_fma_f32 v{v_en+i}, -v{v_p+i}, s{s_t3}, v{mn}")
        a.e(f"v_fma_f32 v{v_p+i}, v{v_p+i}, s{s_t3}, -v{mx}")
    for i in range(16):
        a.e(f"v_exp_f32 v{v_p+i}, v{v_p+i}"); a.e(f"v_exp_f32 v{v_en+i}, v{v_en+i}")
    sp, sn = v_tmp + 2, v_tmp + 4
    a.e(f"v_pk_add_f32 {vr(sp,2)}, {vr(v_p,2)}, {vr(v_p+2,2)}"); a.e(f"v_pk_add_f32 {vr(sn,2)}, {vr(v_en,2)}, {vr(v_en+2,2)}")
    for i in range(4, 16, 2):
        a.e(f"v_pk_add_f32 {vr(sp,2)}, {vr(sp,2)}, {vr(v_p+i,2)}"); a.e(f"v_pk_add_f32 {vr(sn,2)}, {vr(sn,2)}, {vr(v_en+i,2)}")
    a.e(f"v_add_f32 v{sp}, v{sp}, v{sp+1}"); a.e(f"v_add_f32 v{sn}, v{sn}, v{sn+1}")
    a.e(f"v_rcp_f32 v{sp}, v{sp}"); a.e(f"v_rcp_f32 v{sn}, v{sn}")
    a.e("s_nop 0")
    for i in range(0, 16, 2):
        a.e(f"v_pk_mul_f32 {vr(v_p+i,2)}, {vr(v_p+i,2)}, {vr(sp,2)} op_sel_hi:[1,0]")
        a.e(f"v_pk_mul_f32 {vr(v_en+i,2)}, {vr(v_en+i,2)}, {vr(sn,2)} op_sel_hi:[1,0]")
    for i in range(8):
        a.e(f"v_cvt_pk_bf16_f32 v{v_pk+i}, v{v_p+2*i}, v{v_p+2*i+1}"); a.e(f"v_cvt_pk_bf16_f32 v{v_pk+8+i}, v{v_en+2*i}, v{v_en+2*i+1}")
    a.e(f"s_cmp_eq_u32 s{s_role}, 0")
    a.e("s_cbranch_scc1 K1_CONS2")
    a.e(f"s_lshl_b32 s{s_t0}, s{s_rb}, 1"); a.e(f"s_and_b32 s{s_t1}, s{s_j}, 1"); a.e(f"s_add_u32 s{s_t0}, s{s_t0}, s{s_t1}")
    a.e(f"s_lshl_b32 s{s_t0}, s{s_t0}, 5"); a.e(f"s_lshl_b32 s{s_t1}, s{s_hq}, 2"); a.e(f"s_add_u32 s{s_t0}, s{s_t0}, s{s_t1}")
    a.e(f"s_lshr_b32 s{s_t1}, s{s_j}, 1"); a.e(f"s_lshl_b32 s{s_t1}, s{s_t1}, 1"); a.e(f"s_add_u32 s{s_t0}, s{s_t0}, s{s_t1}")
    a.e(f"s_lshl_b32 s{s_t0}, s{s_t0}, 11"); a.e(f"s_add_u32 s{s_t0}, s{s_t0}, {OFF_PHIQ}")
    a.e(f"v_and_b32 v{v_tmp}, 31, v0"); a.e(f"v_lshrrev_b32 v{v_tmp+1}, 5, v0")
    a.e(f"v_lshlrev_b32 v{v_tmp}, 4, v{v_tmp}"); a.e(f"v_lshl_add_u32 v{v_tmp}, v{v_tmp+1}, 11, v{v_tmp}")
    for i in range(4):
        a.e(f"buffer_store_dwordx4 {vr(v_pk+4*i,4)}, v{v_tmp}, s[{SRD_WS}:{SRD_WS+3}], s{s_t0} offen offset:{(i>>1)*1024+(i&1)*512}")
    T(10)
    T.real(14); T.dump(S_WS, s_w, v_tmp)
    a.e("s_endpgm")
    a.lab("K1_CONS2")
    t0 = v_tmp
    a.e(f"v_and_b32 v{t0}, 3, v0"); a.e(f"v_lshlrev_b32 v{t0}, 2, v{t0}")
    a.e(f"v_and_b32 v{t0+1}, 2, v0"); a.e(f"v_or_b32 v{t0}, v{t0}, v{t0+1}")
    a.e(f"v_bfe_u32 v{t0+1}, v0, 2, 1"); a.e(f"v_or_b32 v{t0}, v{t0}, v{t0+1}")
    a.e(f"v_lshrrev_b32 v{t0+1}, 5, v0"); a.e(f"s_lshl_b32 s{s_t2}, s{s_hp}, 1"); a.e(f"v_add_u32 v{t0+1}, s{s_t2}, v{t0+1}")
    a.e(f"v_lshlrev_b32 v{t0+1}, 2, v{t0+1}"); a.e(f"v_xor_b32 v{t0}, v{t0}, v{t0+1}")
    a.e(f"v_and_b32 v{t0+1}, 31, v0"); a.e(f"s_lshl_b32 s{s_t2}, s{s_tb}, 5"); a.e(f"v_add_u32 v{t0+1}, s{s_t2}, v{t0+1}")
    a.e(f"v_lshlrev_b32 v{t0+1}, 8, v{t0+1}"); a.e(f"v_lshl_add_u32 v{t0}, v{t0}, 4, v{t0+1}")
    for i in range(4):
        if i: a.e(f"v_xor_b32 v{t0+1}, {i<<4}, v{t0}")
        a.e(f"ds_write_b128 v{t0 if i == 0 else t0+1}, {vr(v_pk+4*i,4)} offset:{PHIK}")
    a.e("s_waitcnt lgkmcnt(0)")
    T(7)
    a.e(f"v_mov_b32 v{t0+6}, {ZERO+16}"); a.e(f"v_mov_b32 v{t0+7}, 1")
    a.e("v_cmp_eq_u32 vcc, 0, v0"); a.e(f"s_and_saveexec_b64 s[{s_c0}:{s_c0+1}], vcc")
    a.e(f"ds_add_u32 v{t0+6}, v{t0+7}")
    a.e(f"s_mov_b64 exec, s[{s_c0}:{s_c0+1}]")
    a.lab("K1_RDV")
    a.e(f"ds_read_b32 v{t0+7}, v{t0+6}")
    a.e("s_waitcnt lgkmcnt(0)")
    a.e(f"v_readfirstlane_b32 s{s_t2}, v{t0+7}")
    a.e("s_nop 3")
    a.e(f"s_cmp_lt_u32 s{s_t2}, 4")
    a.e("s_cbranch_scc1 K1_RDV")
    T(8)
    kvacc = v_p; fa = v_en; fb = v_en + 8
    a.e(f"v_lshrrev_b32 v{t0}, 5, v0"); a.e(f"v_lshlrev_b32 v{t0}, 3, v{t0}")
    a.e(f"v_bfe_u32 v{t0+1}, v0, 2, 2"); a.e(f"v_add_u32 v{t0}, v{t0}, v{t0+1}")
    a.e(f"v_and_b32 v{t0+2}, 3, v0")
    a.e(f"v_mul_u32_u24 v{t0+3}, 160, v{t0}"); a.e(f"v_lshl_add_u32 v{t0+3}, v{t0+2}, 3, v{t0+3}")
    a.e(f"s_lshl_b32 s{s_t2}, s{s_w}, 5"); a.e(f"v_mov_b32 v{t0+4}, s{s_t2}")
    a.e(f"v_bfe_u32 v{t0+5}, v0, 4, 1"); a.e(f"v_cmp_eq_u32 vcc, 1, v{t0+5}")
    a.e(f"v_mov_b32 v{t0+6}, 128")
    a.e("s_nop 0")
    a.e(f"v_cndmask_b32 v{t0+4}, v{t0+4}, v{t0+6}, vcc"); a.e(f"v_add_u32 v{t0+3}, v{t0+3}, v{t0+4}")
    a.e(f"v_lshrrev_b32 v{t0+4}, 1, v{t0+2}"); a.e(f"v_lshl_add_u32 v{t0+4}, v{t0+5}, 1, v{t0+4}")
    a.e(f"s_lshl_b32 s{s_t2}, s{s_w}, 2"); a.e(f"v_add_u32 v{t0+4}, s{s_t2}, v{t0+4}")
    a.e(f"v_lshlrev_b32 v{t0+5}, 2, v{t0+1}"); a.e(f"v_and_b32 v{t0+6}, 2, v{t0+1}"); a.e(f"v_or_b32 v{t0+5}, v{t0+5}, v{t0+6}")
    a.e(f"v_xor_b32 v{t0+4}, v{t0+4}, v{t0+5}")
    a.e(f"v_lshlrev_b32 v{t0+4}, 4, v{t0+4}"); a.e(f"v_lshl_add_u32 v{t0+4}, v{t0}, 8, v{t0+4}")
    a.e(f"v_and_b32 v{t0+5}, 1, v{t0+2}"); a.e(f"v_lshl_add_u32 v{t0+4}, v{t0+5}, 3, v{t0+4}")
    a.e(f"v_xor_b32 v{t0+5}, 16, v{t0+4}")
    def kv_rd(u, buf):
        a.e(f"ds_read_b64_tr_b16 {vr(fa+4*buf,2)}, v{t0+3} offset:{VV+u*2560}")
        a.e(f"ds_read_b64_tr_b16 {vr(fa+4*buf+2,2)}, v{t0+3} offset:{VV+u*2560+640}")
        a.e(f"ds_read_b64_tr_b16 {vr(fb+4*buf,2)}, v{t0+4} offset:{PHIK+u*4096}")
        a.e(f"ds_read_b64_tr_b16 {vr(fb+4*buf+2,2)}, v{t0+5} offset:{PHIK+u*4096+1024}")
    kv_rd(0, 0)
    for u in range(4):
        if u < 3:
            kv_rd(u + 1, (u + 1) & 1); a.e("s_waitcnt lgkmcnt(4)")
        else: a.e("s_waitcnt lgkmcnt(0)")
        a.e(f"{MF} {vr(kvacc,16)}, {vr(fa+4*(u&1),4)}, {vr(fb+4*(u&1),4)}, {'0' if u == 0 else vr(kvacc,16)}")
    T(9)
    a.e("s_waitcnt vmcnt(0)")
    a.lab("K1_POLL")
    a.e(f"v_readfirstlane_b32 s{s_t2}, v{v_t+7}")
    a.e("s_nop 3")
    a.e(f"s_cmp_lg_u32 s{s_t2}, 0")
    a.e("s_cbranch_scc1 K1_GO")
    a.e(f"buffer_load_dword v{v_t+7}, v{v_t+6}, s[{SRD_D}:{SRD_D+3}], 0 offen offset:64 sc1")
    a.e("s_waitcnt vmcnt(0)")
    a.e("s_branch K1_POLL")
    a.lab("K1_GO")
    a.e(f"s_lshl_b32 s{s_t2}, s{s_hq}, 2"); a.e(f"s_add_u32 s{s_t2}, s{s_t2}, s{s_w}")
    a.e(f"s_mul_i32 s{s_t2}, s{s_t2}, {17*128}"); a.e(f"s_add_u32 s{s_t2}, s{s_t2}, {OFF_KV}")
    a.e(f"v_and_b32 v{t0}, 31, v0"); a.e(f"v_lshlrev_b32 v{t0}, 2, v{t0}")
    a.e(f"v_lshrrev_b32 v{t0+1}, 5, v0"); a.e(f"v_lshl_add_u32 v{t0+2}, v{t0+1}, 9, v{t0}")
    a.e("s_nop 7")
    for r in range(8):
        a.e(f"buffer_atomic_add_f32 v{kvacc+r}, v{t0+2}, s[{SRD_WS}:{SRD_WS+3}], s{s_t2} offen offset:{((r&3)+8*(r>>2))*128}")
    a.e("v_cmp_gt_u32 vcc, 32, v0")
    a.e(f"s_and_saveexec_b64 s[{s_c0}:{s_c0+1}], vcc")
    a.e(f"buffer_atomic_add_f32 v{kvacc+8}, v{t0}, s[{SRD_WS}:{SRD_WS+3}], s{s_t2} offen offset:{16*128}")
    if dbg:
        T(10); a.e("s_waitcnt vmcnt(0)"); T(11); T.real(14); T.dump(S_WS, s_w, v_tmp)
    a.lab("K1_END")
    a.e("s_endpgm")
    nv = max(H.hi, C.hi, Cp.hi, L.hi)
    kernel_desc(a, name, nv, 102 if dbg else 64, (nv + 3) // 4 * 4)
    return (name, 256, 512, LDS)
```

```python
from glib import *

def gen_k2(a, dbg=False, TOUCH=False):
    name = "k2_kernel"
    T = Stamps(a, dbg, 1)
    WO = 0; KVB = 65536; RED = 0
    LDS = KVB + 4 * 8704
    kernel_begin(a, name)
    S_X, S_WO, S_DBG, S_WS = 4, 6, 12, 14
    SRD_X, SRD_WO, SRD_WS = 16, 20, 28
    s_w, s_rb, s_cb = 36, 37, 38
    s_t0, s_t1, s_t2, s_t3 = 40, 41, 42, 43
    a.e("s_cmp_ge_u32 s2, 256")
    a.e("s_cbranch_scc1 K2_END")
    T.real(15); T(0)
    a.e("s_load_dwordx2 s[4:5], s[0:1], 0")
    a.e("s_load_dwordx2 s[6:7], s[0:1], 24")
    a.e("s_load_dwordx2 s[14:15], s[0:1], 80")
    a.e("s_load_dwordx4 s[60:63], s[0:1], 40")
    a.e("v_lshrrev_b32 v1, 6, v0")
    a.e("v_and_b32 v0, 63, v0")
    a.e(f"v_readfirstlane_b32 s{s_w}, v1")
    a.e(f"s_and_b32 s{s_t0}, s2, 7"); a.e(f"s_lshr_b32 s{s_t1}, s2, 3")
    a.e(f"s_lshl_b32 s{s_rb}, s{s_t0}, 2"); a.e(f"s_and_b32 s{s_t2}, s{s_t1}, 3"); a.e(f"s_add_u32 s{s_rb}, s{s_rb}, s{s_t2}")
    a.e(f"s_lshr_b32 s{s_cb}, s{s_t1}, 2")
    V = VAlloc(2)
    v_dum = V(1); v_l128 = V(1); v_l16 = V(1); v_dma = V(1); v_kw = V(1); v_ka = V(1); v_wa0 = V(1); v_wa1 = V(1); v_t = V(8, 2)
    v_xr = V(8, 4)
    acc = V(64, 4)
    v_kv = V(68, 4)
    D = v_kv
    kA = V(16, 4)
    wA = V(16, 4)
    oF = V(8, 4)
    NV = V.hi
    PHI = 0
    a.e(f"v_lshlrev_b32 v{v_l16}, 4, v0")
    a.e(f"v_lshrrev_b32 v{v_t}, 3, v0"); a.e(f"v_lshlrev_b32 v{v_t}, 10, v{v_t}")
    a.e(f"v_bfe_u32 v{v_t+1}, v0, 4, 1"); a.e(f"v_lshlrev_b32 v{v_t+1}, 2, v{v_t+1}")
    a.e(f"v_and_b32 v{v_t+2}, 7, v0"); a.e(f"v_xor_b32 v{v_t+1}, v{v_t+1}, v{v_t+2}")
    a.e(f"v_lshl_add_u32 v{v_dma}, v{v_t+1}, 4, v{v_t}")
    a.e("s_waitcnt lgkmcnt(0)")
    srd(a, SRD_WS, S_WS, WS_BYTES); srd(a, SRD_WO, S_WO, 512*1024); srd(a, SRD_X, S_X, 2048*1024)
    VM = Cnt(a, "vmcnt", 63); LG = Cnt(a, "lgkmcnt", 15)
    if TOUCH:
        a.e(f"v_lshlrev_b32 v{v_l128}, 7, v0")
        a.e(f"s_and_b32 s{s_t0}, s2, 7"); a.e(f"s_lshl_b32 s{s_t0}, s{s_t0}, 19"); a.e(f"s_add_u32 s{s_t0}, s{s_t0}, {OFF_PHIQ}")
        a.e(f"s_lshr_b32 s{s_t1}, s2, 3"); a.e(f"s_lshl_b32 s{s_t1}, s{s_t1}, 2"); a.e(f"s_add_u32 s{s_t1}, s{s_t1}, s{s_w}")
        touch_contig(a, SRD_WS, ('s', s_t0), 32, s_t1, v_l128, v_dum, s_t2, VM)
    a.e(f"s_mul_i32 s{s_t0}, s{s_w}, 17408"); a.e(f"s_add_u32 s{s_t0}, s{s_t0}, {OFF_KV}")
    for i in range(17):
        if i and i % 4 == 0: a.e(f"s_add_u32 s{s_t0}, s{s_t0}, 4096")
        VM.op(f"buffer_load_dwordx4 {vr(v_kv+4*i,4)}, v{v_l16}, s[{SRD_WS}:{SRD_WS+3}], s{s_t0} offen offset:{(i%4)*1024}", "kv")
    s_pb, s_wb, s_m, s_ph, s_a, s_b = 52, 53, 54, 55, 56, 57
    a.e(f"s_lshl_b32 s{s_pb}, s{s_rb}, 6")
    a.e(f"s_lshl_b32 s44, s{s_w}, 3"); a.e(f"s_add_u32 s{s_pb}, s{s_pb}, s44")
    a.e(f"s_lshl_b32 s{s_pb}, s{s_pb}, 11"); a.e(f"s_add_u32 s{s_pb}, s{s_pb}, {OFF_PHIQ}")
    a.e(f"s_lshl_b32 s{s_wb}, s{s_w}, 17"); a.e(f"s_lshl_b32 s44, s{s_cb}, 7"); a.e(f"s_add_u32 s{s_wb}, s{s_wb}, s44")
    a.e(f"s_lshl_b32 s{s_m}, s{s_w}, 14")
    def issue_head(hd):
        a.e(f"s_add_u32 s{s_ph}, s{s_cb}, {hd}"); a.e(f"s_and_b32 s{s_ph}, s{s_ph}, 7")
        a.e(f"s_lshl_b32 s{s_a}, s{s_ph}, 11"); a.e(f"s_add_u32 s{s_a}, s{s_a}, s{s_pb}")
        a.e(f"s_add_u32 s{s_b}, s{s_a}, {32*2048}")
        for tb in range(2):
            for s in range(2):
                sp = s_a if tb == 0 else s_b
                VM.op(f"buffer_load_dwordx4 {ar(PHI+(hd*4+tb*2+s)*4,4)}, v{v_l16}, s[{SRD_WS}:{SRD_WS+3}], s{sp} offen offset:{s*1024}", ("phi", hd))
        a.e(f"s_lshl_b32 s{s_a}, s{s_ph}, 14"); a.e(f"s_add_u32 s{s_a}, s{s_a}, s{s_wb}")
        for i in range(2):
            a.e(f"s_add_u32 m0, s{s_m}, {WO + (hd*2+i)*1024}")
            if i: a.e(f"s_add_u32 s{s_a}, s{s_a}, 8192")
            else: a.e("s_nop 0")
            VM.op(f"buffer_load_dwordx4 v{v_dma}, s[{SRD_WO}:{SRD_WO+3}], s{s_a} offen lds", ("wo", hd))
    AH = 3
    for hd in range(AH): issue_head(hd)
    s_cs = 58
    a.e(f"s_lshr_b32 s{s_t1}, s2, 3")
    a.e(f"s_cmp_ge_u32 s{s_t1}, 14"); a.e(f"s_cselect_b32 s{s_t2}, 14, 0"); a.e(f"s_cselect_b32 s{s_cs+1}, 1, 0")
    a.e(f"s_sub_u32 s{s_t2}, s{s_t1}, s{s_t2}")
    a.e(f"s_cmp_eq_u32 s{s_cs+1}, 1"); a.e("s_cselect_b32 s60, s62, s60"); a.e("s_cselect_b32 s61, s63, s61")
    srd(a, 24, 60, 512*3584)
    a.e(f"s_bfe_u32 s{s_t3}, s2, 0x10002"); a.e(f"s_mul_i32 s{s_t3}, s{s_t3}, 14"); a.e(f"s_add_u32 s{s_t2}, s{s_t2}, s{s_t3}")
    a.e(f"s_and_b32 s{s_t3}, s2, 3"); a.e(f"s_lshl_b32 s{s_t3}, s{s_t3}, 2"); a.e(f"s_add_u32 s{s_t3}, s{s_t3}, s{s_w}")
    a.e(f"s_mul_i32 s{s_cs}, s{s_t3}, 3584"); a.e(f"s_mul_i32 s{s_cs+1}, s{s_cs+1}, 1792"); a.e(f"s_add_u32 s{s_cs}, s{s_cs}, s{s_cs+1}")
    a.e(f"s_lshl_b32 s{s_cs+1}, s{s_t2}, 6"); a.e(f"s_add_u32 s{s_cs}, s{s_cs}, s{s_cs+1}"); a.e(f"s_lshl_b32 s{s_cs}, s{s_cs}, 2"); a.e(f"s_add_u32 s{s_cs}, s{s_cs}, {OFF_CS}")
    a.e(f"s_mul_i32 s{s_t3}, s{s_t3}, {32*3584}"); a.e(f"s_lshl_b32 s{s_t2}, s{s_t2}, 7"); a.e(f"s_add_u32 s{s_t3}, s{s_t3}, s{s_t2}")
    a.e(f"v_lshrrev_b32 v{v_t}, 3, v0"); a.e(f"v_mul_u32_u24 v{v_t}, 3584, v{v_t}"); a.e(f"v_and_b32 v{v_t+1}, 7, v0"); a.e(f"v_lshl_add_u32 v{v_t}, v{v_t+1}, 4, v{v_t}")
    a.e(f"s_cmp_ge_u32 s{s_t1}, 28"); a.e(f"s_cselect_b32 s{s_cs+1}, 1, 0")
    a.e(f"s_cselect_b32 s{s_t3}, 0x7f000000, s{s_t3}")
    for k in range(4):
        VM.op(f"buffer_load_dwordx4 {vr(acc+4*k,4)}, v{v_t}, s[24:27], s{s_t3} offen", "cs")
        if k < 3: a.e(f"s_add_u32 s{s_t3}, s{s_t3}, {8*3584}")
    T(1)
    a.e(f"v_and_b32 v{v_t}, 31, v0"); a.e(f"v_lshlrev_b32 v{v_t}, 10, v{v_t}")
    a.e(f"v_lshrrev_b32 v{v_t+1}, 5, v0"); a.e(f"v_lshl_add_u32 v{v_t}, v{v_t+1}, 4, v{v_t}")
    a.e(f"s_and_b32 s44, s{s_w}, 1"); a.e(f"s_lshl_b32 s45, s{s_rb}, 1"); a.e(f"s_add_u32 s45, s45, s44")
    a.e(f"s_lshl_b32 s46, s45, 15")
    a.e(f"s_lshr_b32 s47, s{s_w}, 1")
    a.e(f"s_lshl_b32 s48, s{s_cb}, 1"); a.e(f"s_add_u32 s48, s48, s47")
    a.e(f"s_lshl_b32 s49, s48, 6"); a.e(f"s_add_u32 s46, s46, s49")
    for i in range(2):
        VM.op(f"buffer_load_dwordx4 {vr(v_xr+4*i,4)}, v{v_t}, s[{SRD_X}:{SRD_X+3}], s46 offen offset:{32*i}", "x")
    a.e(f"s_mul_i32 s{s_t0}, s{s_w}, 8704"); a.e(f"s_add_u32 s{s_t0}, s{s_t0}, {KVB}")
    a.e(f"v_lshlrev_b32 v{v_kw}, 3, v0"); a.e(f"v_add_u32 v{v_kw}, s{s_t0}, v{v_kw}")
    a.e(f"v_and_b32 v{v_t+2}, 31, v0"); a.e(f"v_min_u32 v{v_t+2}, 16, v{v_t+2}"); a.e(f"v_lshlrev_b32 v{v_t+2}, 6, v{v_t+2}")
    a.e(f"v_lshrrev_b32 v{v_t+3}, 5, v0"); a.e(f"v_lshl_add_u32 v{v_t+2}, v{v_t+3}, 4, v{v_t+2}")
    a.e(f"v_add_u32 v{v_ka}, s{s_t0}, v{v_t+2}")
    a.e(f"v_lshrrev_b32 v{v_t+2}, 5, v0"); a.e(f"v_lshlrev_b32 v{v_t+2}, 2, v{v_t+2}")
    a.e(f"v_bfe_u32 v{v_t+3}, v0, 2, 2"); a.e(f"v_add_u32 v{v_t+2}, v{v_t+2}, v{v_t+3}")
    a.e(f"v_lshlrev_b32 v{v_t+2}, 7, v{v_t+2}")
    a.e(f"v_bfe_u32 v{v_t+3}, v0, 3, 1"); a.e(f"v_lshl_add_u32 v{v_t+2}, v{v_t+3}, 6, v{v_t+2}")
    a.e(f"v_bfe_u32 v{v_t+3}, v0, 4, 1"); a.e(f"v_lshl_add_u32 v{v_t+2}, v{v_t+3}, 5, v{v_t+2}")
    a.e(f"v_and_b32 v{v_t+3}, 1, v0"); a.e(f"v_lshl_add_u32 v{v_t+2}, v{v_t+3}, 4, v{v_t+2}")
    a.e(f"v_bfe_u32 v{v_t+3}, v0, 1, 1"); a.e(f"v_lshl_add_u32 v{v_t+2}, v{v_t+3}, 3, v{v_t+2}")
    a.e(f"s_lshl_b32 s{s_t0}, s{s_w}, 14")
    a.e(f"v_add_u32 v{v_wa0}, s{s_t0}, v{v_t+2}"); a.e(f"v_xor_b32 v{v_wa1}, 64, v{v_wa0}")
    VM.need("kv")
    T(2)
    for i in range(17):
        b = v_kv + 4*i
        a.e(f"v_cvt_pk_bf16_f32 v{b}, v{b}, v{b+1}"); a.e(f"v_cvt_pk_bf16_f32 v{b+1}, v{b+2}, v{b+3}")
        LG.op(f"ds_write_b64 v{v_kw}, {vr(b,2)} offset:{i*512}", "kw")
    def cs_process():
        VM.need("cs")
        cs = acc + 16
        for k in range(4):
            for r in range(4):
                x = acc + 4*k + r
                a.e(f"v_lshlrev_b32 v{acc+32}, 16, v{x}"); a.e(f"v_and_b32 v{acc+33}, 0xffff0000, v{x}")
                if k == 0:
                    a.e(f"v_mov_b32 v{cs+2*r}, v{acc+32}"); a.e(f"v_mov_b32 v{cs+2*r+1}, v{acc+33}")
                else:
                    a.e(f"v_pk_add_f32 {vr(cs+2*r,2)}, {vr(cs+2*r,2)}, {vr(acc+32,2)}")
        a.e("s_nop 1")
        for j in range(8): a.e(f"v_add_f32_dpp v{cs+j}, v{cs+j}, v{cs+j} row_ror:8 row_mask:0xf bank_mask:0xf")
        for op in ("v_permlane16_swap_b32", "v_permlane32_swap_b32"):
            for j in range(8): a.e(f"v_mov_b32 v{acc+32+j}, v{cs+j}")
            a.e("s_nop 1")
            for j in range(8): a.e(f"{op} v{cs+j}, v{acc+32+j}")
            a.e("s_nop 1")
            for j in range(8): a.e(f"v_add_f32 v{cs+j}, v{cs+j}, v{acc+32+j}")
        a.e(f"s_cmp_eq_u32 s{s_cs+1}, 1"); a.e(f"s_cselect_b32 s{s_cs}, 0x7f000000, s{s_cs}")
        a.e(f"v_lshlrev_b32 v{acc+32}, 5, v0")
        a.e("v_cmp_gt_u32 vcc, 8, v0"); a.e("s_and_saveexec_b64 s[50:51], vcc")
        for q in range(2):
            VM.op(f"buffer_store_dwordx4 {vr(cs+4*q,4)}, v{acc+32}, s[{SRD_WS}:{SRD_WS+3}], s{s_cs} offen offset:{16*q}", "csst")
        a.e("s_mov_b64 exec, s[50:51]")
        a.e("s_nop 1")

        for i in range(64): a.e(f"v_mov_b32 v{acc+i}, 0")
    LG.drain()
    def rd_k(hd):
        p = hd & 1
        a.e(f"s_add_u32 s{s_ph}, s{s_cb}, {hd}"); a.e(f"s_and_b32 s{s_ph}, s{s_ph}, 7"); a.e(f"s_mul_i32 s{s_ph}, s{s_ph}, 1088")
        a.e(f"v_add_u32 v{v_t+6}, s{s_ph}, v{v_ka}")
        for s in range(2):
            LG.op(f"ds_read_b128 {vr(kA+8*p+4*s,4)}, v{v_t+6} offset:{s*32}", ("k", hd))
    def rd_w(hd):
        p = hd & 1
        VM.need(("wo", hd))
        for nb in range(2):
            va = v_wa0 if nb == 0 else v_wa1
            LG.op(f"ds_read_b64_tr_b16 {vr(wA+8*p+4*nb,2)}, v{va} offset:{WO+hd*2048}", ("w", hd))
            LG.op(f"ds_read_b64_tr_b16 {vr(wA+8*p+4*nb+2,2)}, v{va} offset:{WO+hd*2048+1024}", ("w", hd))
    def num(hd):
        p = hd & 1
        VM.need(("phi", hd)); LG.need(("k", hd))
        for s in range(2):
            for tb in range(2):
                d = D + 32*p + 16*tb
                a.e(f"{MF} {vr(d,16)}, {vr(kA+8*p+4*s,4)}, {ar(PHI+(hd*4+tb*2+s)*4,4)}, {'0' if s == 0 else vr(d,16)}")
    def fin(hd):
        p = hd & 1
        for tb in range(2):
            d = D + 32*p + 16*tb
            a.e(f"v_add_f32 v{d+8}, {fx(1e-6)}, v{d+8}")
            a.e(f"v_rcp_f32 v{d+8}, v{d+8}")
        a.e("s_nop 0")
        for tb in range(2):
            d = D + 32*p + 16*tb
            for i in range(0, 8, 2):
                a.e(f"v_pk_mul_f32 {vr(d+i,2)}, {vr(d+i,2)}, {vr(d+8,2)} op_sel_hi:[1,0]")
        for tb in range(2):
            d = D + 32*p + 16*tb
            for i in range(4):
                a.e(f"v_cvt_pk_bf16_f32 v{oF+4*tb+i}, v{d+2*i}, v{d+2*i+1}")
        LG.need(("w", hd))
        a.e("s_nop 1")
        for nb in range(2):
            for tb in range(2):
                ti = tb + 2*nb
                a.e(f"{MF} {vr(acc+16*ti,16)}, {vr(wA+8*p+4*nb,4)}, {vr(oF+4*tb,4)}, {vr(acc+16*ti,16)}")
    rd_k(0)
    for hd in range(8):
        if hd + AH < 8: issue_head(hd + AH)
        num(hd)
        if hd < 7: rd_k(hd + 1)
        rd_w(hd)
        if hd == 0: cs_process()
        if hd >= 1: fin(hd - 1)
    a.e("s_nop 7"); a.e("s_nop 3")
    fin(7)
    T(3)
    a.e("s_barrier")
    a.e(f"s_lshl_b32 s{s_t0}, s{s_w}, 12")
    a.e(f"v_add_u32 v{v_t}, s{s_t0}, v{v_l16}")
    a.e("s_nop 7"); a.e("s_nop 3")
    for ti in range(4):
        for q in range(4):
            a.e(f"ds_write_b128 v{v_t}, {vr(acc+16*ti+4*q,4)} offset:{RED+ti*16384+q*1024}")
    a.e("s_waitcnt lgkmcnt(0)")
    a.e("s_barrier")
    T(4)
    a.e(f"s_lshl_b32 s{s_t0}, s{s_w}, 14")
    a.e(f"v_add_u32 v{v_t}, s{s_t0}, v{v_l16}")
    for sw in range(4):
        for q in range(4):
            a.e(f"ds_read_b128 {vr(acc+16*sw+4*q,4)}, v{v_t} offset:{RED+sw*4096+q*1024}")
    a.e("s_waitcnt vmcnt(0) lgkmcnt(0)")
    for i in range(0, 16, 2):
        a.e(f"v_pk_add_f32 {vr(acc+i,2)}, {vr(acc+i,2)}, {vr(acc+16+i,2)}")
        a.e(f"v_pk_add_f32 {vr(acc+32+i,2)}, {vr(acc+32+i,2)}, {vr(acc+48+i,2)}")
    for i in range(0, 16, 2):
        a.e(f"v_pk_add_f32 {vr(acc+i,2)}, {vr(acc+i,2)}, {vr(acc+32+i,2)}")
    for i in range(8):
        a.e(f"v_lshlrev_b32 v{v_t+2}, 16, v{v_xr+i}")
        a.e(f"v_and_b32 v{v_t+3}, 0xffff0000, v{v_xr+i}")
        a.e(f"v_add_f32 v{acc+2*i}, v{acc+2*i}, v{v_t+2}")
        a.e(f"v_add_f32 v{acc+2*i+1}, v{acc+2*i+1}, v{v_t+3}")
        a.e(f"v_cvt_pk_bf16_f32 v{v_xr+i}, v{acc+2*i}, v{acc+2*i+1}")
    a.e(f"s_lshl_b32 s{s_t0}, s45, 5"); a.e(f"s_lshl_b32 s{s_t1}, s48, 1"); a.e(f"s_add_u32 s{s_t0}, s{s_t0}, s{s_t1}")
    a.e(f"s_lshl_b32 s{s_t0}, s{s_t0}, 10"); a.e(f"s_add_u32 s{s_t0}, s{s_t0}, {OFF_H}")
    for i in range(2):
        a.e(f"buffer_store_dwordx4 {vr(v_xr+4*i,4)}, v{v_l16}, s[{SRD_WS}:{SRD_WS+3}], s{s_t0} offen offset:{i*1024}")
    a.e(f"v_mov_b32 v{v_t}, 0"); a.e(f"v_mov_b32 v{v_t+1}, 0"); a.e(f"v_mov_b32 v{v_t+2}, 0x3f803f80")
    for i in range(8):
        a.e(f"v_dot2_f32_bf16 v{v_t}, v{v_xr+i}, v{v_t+2}, v{v_t}")
        a.e(f"v_dot2_f32_bf16 v{v_t+1}, v{v_xr+i}, v{v_xr+i}, v{v_t+1}")
    xhalf_sum(a, v_t, v_t+3); xhalf_sum(a, v_t+1, v_t+4)
    a.e(f"s_lshl_b32 s{s_t0}, s45, 8"); a.e(f"s_lshl_b32 s{s_t1}, s48, 14"); a.e(f"s_add_u32 s{s_t0}, s{s_t0}, s{s_t1}")
    a.e(f"s_add_u32 s{s_t0}, s{s_t0}, {OFF_ST2}")
    a.e(f"v_and_b32 v{v_t+2}, 31, v0"); a.e(f"v_lshlrev_b32 v{v_t+2}, 3, v{v_t+2}")
    a.e("v_cmp_gt_u32 vcc, 32, v0")
    a.e("s_and_saveexec_b64 s[50:51], vcc")
    a.e(f"buffer_store_dwordx2 {vr(v_t,2)}, v{v_t+2}, s[{SRD_WS}:{SRD_WS+3}], s{s_t0} offen")
    if dbg:
        T(5); T.real(14); T.dump(S_WS, s_w, v_t+4)
    a.lab("K2_END")
    a.e("s_endpgm")
    accum = (NV + 3) // 4 * 4
    kernel_desc(a, name, accum + 128, 102 if dbg else 64, accum)
    return (name, 256, 256, LDS)
```

```python
from glib import *

def gen_k1(a, dbg=False, prefetch=True, TOUCH=False, CODEPF=11, TLBW=0):
    name = "k1_kernel"
    T = Stamps(a, dbg, 0)
    WPHI = 0; ZERO = 2048
    XR = 4096
    WR = XR + 65536; WSLOT = 24576; NST = 3; NSTG = 8
    LDS = WR + NST * WSLOT
    QX = XR; PHIK = XR + 8192; VV = XR + 8192 + 16384
    kernel_begin(a, name)
    S_X, S_W, S_PHI, S_DBG, S_WS = 4, 6, 8, 12, 14
    SRD_X, SRD_W, SRD_P, SRD_WS, SRD_D = 16, 20, 24, 28, 32
    s_w, s_rb, s_hq, s_rot, s_j, s_role = 36, 37, 38, 39, 50, 51
    s_t0, s_t1, s_t2, s_t3, s_c0 = 40, 41, 42, 43, 52
    a.e("s_cmp_ge_u32 s2, 256")
    a.e("s_cbranch_scc1 K1_END")
    T.real(15); T(0)
    a.e("s_load_dwordx4 s[4:7], s[0:1], 0")
    a.e("s_load_dwordx2 s[8:9], s[0:1], 16")
    a.e("s_load_dwordx4 s[12:15], s[0:1], 72")
    a.e("v_lshrrev_b32 v1, 6, v0")
    a.e("v_and_b32 v0, 63, v0")
    a.e(f"v_readfirstlane_b32 s{s_w}, v1")
    a.e(f"s_and_b32 s{s_t0}, s2, 7"); a.e(f"s_lshr_b32 s{s_t1}, s2, 3")
    a.e(f"s_and_b32 s{s_rb}, s{s_t0}, 3"); a.e(f"s_lshl_b32 s{s_rb}, s{s_rb}, 3"); a.e(f"s_and_b32 s{s_t2}, s{s_t1}, 7"); a.e(f"s_add_u32 s{s_rb}, s{s_rb}, s{s_t2}")
    a.e(f"s_lshr_b32 s{s_hq}, s{s_t0}, 2"); a.e(f"s_lshl_b32 s{s_hq}, s{s_hq}, 2"); a.e(f"s_lshr_b32 s{s_t3}, s{s_t1}, 3"); a.e(f"s_add_u32 s{s_hq}, s{s_hq}, s{s_t3}")
    a.e(f"s_mov_b32 s{s_rot}, s{s_t2}")
    a.e(f"s_and_b32 s{s_j}, s{s_w}, 3")
    V = VAlloc(2)
    v_dum = V(2, 2); v_wa = V(8, 4); v_x0 = V(8, 4); v_p = V(16, 4); v_en = V(16, 4); v_pk = V(16, 4); v_tmp = V(8, 2)
    common_end = V.mark()
    L = VAlloc(common_end)
    v_xl = L(64, 4); v_xu = L(64, 4); v_s = L(2, 2); v_q = L(2, 2); v_lt = L(6, 2)
    ln_end = L.mark()
    a.e(f"v_lshrrev_b32 v{v_lt}, 3, v0"); a.e(f"v_lshlrev_b32 v{v_lt}, 10, v{v_lt}")
    a.e(f"v_and_b32 v{v_lt+1}, 7, v0"); a.e(f"v_lshl_add_u32 v{v_lt}, v{v_lt+1}, 4, v{v_lt}")
    a.e(f"s_lshl_b32 s{s_t0}, s{s_rb}, 2"); a.e(f"s_add_u32 s{s_t0}, s{s_t0}, s{s_j}"); a.e(f"s_lshl_b32 s{s_t0}, s{s_t0}, 14")
    a.e("s_waitcnt lgkmcnt(0)")
    srd(a, SRD_X, S_X, 2048*1024)
    srd(a, SRD_WS, S_WS, WS_BYTES)
    VM = Cnt(a, "vmcnt", 63)
    a.e(f"s_cmp_ge_u32 s{s_w}, 4")
    a.e("s_cbranch_scc1 K1_HPRO")
    for g in range(2):
        for s in range(8):
            a.e(f"buffer_load_dwordx4 {vr(v_xl+32*g+4*s,4)}, v{v_lt}, s[{SRD_X}:{SRD_X+3}], s{s_t0} offen offset:{s*128}")
        if g == 0: a.e(f"s_add_u32 s{s_t0}, s{s_t0}, 8192")
    a.lab("K1_HPRO")
    if CODEPF:
        a.e(f"s_cmp_eq_u32 s{s_w}, 4"); a.e("s_cbranch_scc0 K1_NOCPF")
        a.e("s_getpc_b64 s[54:55]")
        a.lab("K1_PC")
        a.e("s_sub_u32 s54, s54, K1_PC-k1_kernel"); a.e("s_subb_u32 s55, s55, 0")
        a.e(f"s_lshr_b32 s{s_t2}, s2, 3"); a.e(f"s_mul_i32 s{s_t2}, s{s_t2}, {CODEPF}"); a.e(f"v_add_u32 v{v_dum+1}, s{s_t2}, v0"); a.e(f"v_lshlrev_b32 v{v_dum+1}, 7, v{v_dum+1}")
        a.e(f"v_cmp_gt_u32 vcc, {CODEPF}, v0"); a.e(f"s_and_saveexec_b64 s[{s_c0}:{s_c0+1}], vcc")
        a.e(f"s_mov_b32 s{s_t2}, ALL_END-k1_kernel")
        a.e(f"v_cmp_gt_u32 vcc, s{s_t2}, v{v_dum+1}"); a.e("s_and_b64 exec, exec, vcc")
        a.e("s_cbranch_execz K1_CPFX")
        a.e(f"global_load_dword v{v_dum}, v{v_dum+1}, s[54:55]")
        a.lab("K1_CPFX")
        a.e(f"s_mov_b64 exec, s[{s_c0}:{s_c0+1}]")
        a.lab("K1_NOCPF")
    if TLBW:
        a.e(f"s_cmp_eq_u32 s{s_w}, 5"); a.e("s_cbranch_scc0 K1_NOTLB")
        a.e("s_load_dwordx2 s[54:55], s[0:1], 64"); a.e("s_waitcnt lgkmcnt(0)")
        srd(a, 56, 54, 2048*1024)
        a.e(f"s_lshr_b32 s{s_t2}, s2, 3")
        a.e(f"s_lshl_b32 s{s_t3}, s{s_t2}, 3"); a.e(f"v_add_u32 v{v_dum+1}, s{s_t3}, v0"); a.e(f"v_lshlrev_b32 v{v_dum+1}, 16, v{v_dum+1}")
        a.e("v_cmp_gt_u32 vcc, 8, v0"); a.e(f"s_and_saveexec_b64 s[{s_c0}:{s_c0+1}], vcc")
        a.e(f"buffer_load_dword v{v_dum}, v{v_dum+1}, s[{SRD_WS}:{SRD_WS+3}], 0 offen offset:{TLBW}")
        a.e(f"s_lshl_b32 s{s_t2}, s{s_t2}, 16"); a.e(f"v_mov_b32 v{v_dum+1}, s{s_t2}")
        a.e(f"buffer_load_dword v{v_dum}, v{v_dum+1}, s[56:59], 0 offen")
        a.e(f"s_mov_b64 exec, s[{s_c0}:{s_c0+1}]")
        a.lab("K1_NOTLB")
    a.e("s_barrier")
    srd(a, SRD_W, S_W, 512*3072)
    a.e(f"s_cmp_ge_u32 s{s_w}, 4")
    a.e("s_cbranch_scc0 K1_CPRO")
    H = VAlloc(ln_end)
    v_wo = H(3); v_h0 = H(4)
    srd(a, SRD_P, S_PHI, 32*512)
    for i in range(3):
        a.e(f"v_lshrrev_b32 v{v_h0}, 3, v0"); a.e(f"v_add_u32 v{v_h0}, {8*i}, v{v_h0}")
        a.e(f"v_mul_u32_u24 v{v_h0+1}, 43, v{v_h0}"); a.e(f"v_lshrrev_b32 v{v_h0+1}, 7, v{v_h0+1}")
        a.e(f"v_mul_u32_u24 v{v_h0+2}, 3, v{v_h0+1}"); a.e(f"v_sub_u32 v{v_h0}, v{v_h0}, v{v_h0+2}")
        a.e(f"v_bfe_u32 v{v_h0+2}, v{v_h0+1}, 1, 1"); a.e(f"v_lshlrev_b32 v{v_h0+2}, 2, v{v_h0+2}")
        a.e(f"v_and_b32 v{v_h0+3}, 7, v0"); a.e(f"v_xor_b32 v{v_h0+2}, v{v_h0+2}, v{v_h0+3}")
        a.e(f"v_mul_u32_u24 v{v_h0+1}, 3072, v{v_h0+1}")
        a.e(f"v_lshl_add_u32 v{v_h0+1}, v{v_h0}, 10, v{v_h0+1}")
        a.e(f"v_lshl_add_u32 v{v_wo+i}, v{v_h0+2}, 4, v{v_h0+1}")
    s_wb, s_wl, s_kst, s_wo = 44, 45, 46, 47
    a.e(f"s_mul_i32 s{s_wb}, s{s_j}, {16*3072}"); a.e(f"s_lshl_b32 s{s_t2}, s{s_hq}, 7"); a.e(f"s_add_u32 s{s_wb}, s{s_wb}, s{s_t2}")
    a.e(f"s_mul_i32 s{s_wl}, s{s_j}, 6144"); a.e(f"s_add_u32 s{s_wl}, s{s_wl}, {WR}")
    a.e(f"s_mov_b32 s{s_kst}, s{s_rot}")
    def issue(st):
        slot = st % NST
        a.e(f"s_mul_i32 s{s_wo}, s{s_kst}, {64*3072}"); a.e(f"s_add_u32 s{s_wo}, s{s_wo}, s{s_wb}")
        a.e(f"s_add_u32 s{s_kst}, s{s_kst}, 1"); a.e(f"s_and_b32 s{s_kst}, s{s_kst}, 7")
        for i in range(6):
            a.e(f"s_add_u32 m0, s{s_wl}, {slot*WSLOT+i*1024}")
            if i == 3: a.e(f"s_add_u32 s{s_wo}, s{s_wo}, {8*3072}")
            else: a.e("s_nop 0")
            VM.op(f"buffer_load_dwordx4 v{v_wo+i%3}, s[{SRD_W}:{SRD_W+3}], s{s_wo} offen lds", ("st", st))
    a.e(f"s_and_b32 s{s_t2}, s{s_j}, 1"); a.e(f"s_lshl_b32 s{s_t2}, s{s_t2}, 10")
    a.e(f"s_add_u32 m0, s{s_t2}, {WPHI}")
    a.e(f"v_lshlrev_b32 v{v_h0}, 4, v0")
    a.e(f"s_lshl_b32 s{s_t3}, s{s_hq}, 11"); a.e(f"s_add_u32 s{s_t2}, s{s_t2}, s{s_t3}")
    VM.op(f"buffer_load_dwordx4 v{v_h0}, s[{SRD_P}:{SRD_P+3}], s{s_t2} offen lds", "wphi")
    nxt = 0
    for _ in range(NST):
        issue(nxt); nxt += 1
    a.e("s_branch K1_HMAIN")
    a.lab("K1_CPRO")
    srd(a, SRD_D, S_DBG, 256)
    Cp = VAlloc(ln_end)
    v_t = Cp(8, 4)
    for i in range(4): a.e(f"v_mov_b32 v{v_t+i}, 0")
    a.e(f"v_mov_b32 v{v_t+4}, {ZERO}")
    a.e(f"ds_write_b128 v{v_t+4}, {vr(v_t,4)}")
    a.e(f"ds_write_b32 v{v_t+4}, v{v_t} offset:16")
    if TOUCH:
        a.e(f"s_lshl_b32 s{s_t2}, s{s_w}, 6"); a.e(f"v_add_u32 v{v_t+5}, s{s_t2}, v0")
        a.e(f"v_mul_u32_u24 v{v_t+6}, 171, v{v_t+5}"); a.e(f"v_lshrrev_b32 v{v_t+6}, 11, v{v_t+6}")
        a.e(f"v_mul_u32_u24 v{v_t+7}, 12, v{v_t+6}"); a.e(f"v_sub_u32 v{v_t+5}, v{v_t+5}, v{v_t+7}")
        a.e(f"v_mul_u32_u24 v{v_t+6}, 3072, v{v_t+6}")
        a.e(f"v_lshrrev_b32 v{v_t+7}, 2, v{v_t+5}"); a.e(f"v_lshl_add_u32 v{v_t+6}, v{v_t+7}, 10, v{v_t+6}")
        a.e(f"v_and_b32 v{v_t+5}, 3, v{v_t+5}"); a.e(f"v_lshl_add_u32 v{v_t+6}, v{v_t+5}, 7, v{v_t+6}")
        a.e(f"s_lshr_b32 s{s_t2}, s2, 3"); a.e(f"s_mul_i32 s{s_t2}, s{s_t2}, {16*3072}")
        a.e(f"s_bfe_u32 s{s_t3}, s2, 0x10002"); a.e(f"s_lshl_b32 s{s_t3}, s{s_t3}, 9"); a.e(f"s_add_u32 s{s_t2}, s{s_t2}, s{s_t3}")
        a.e(f"buffer_load_dword v{v_dum}, v{v_t+6}, s[{SRD_W}:{SRD_W+3}], s{s_t2} offen")
    a.e(f"s_cmp_eq_u32 s{s_w}, 0")
    a.e("s_cbranch_scc0 K1_LN")
    a.e(f"s_lshl_b32 s{s_t2}, s{s_hq}, 2")
    a.e(f"v_mov_b32 v{v_t+4}, s{s_t2}"); a.e(f"v_mov_b32 v{v_t+5}, 1")
    a.e("v_cmp_eq_u32 vcc, 0, v0")
    a.e(f"s_and_saveexec_b64 s[{s_c0}:{s_c0+1}], vcc")
    a.e(f"buffer_atomic_add v{v_t+5}, v{v_t+4}, s[{SRD_D}:{SRD_D+3}], 0 offen sc0")
    a.e("s_waitcnt vmcnt(0)")
    a.e(f"s_mov_b64 exec, s[{s_c0}:{s_c0+1}]")
    a.e("s_nop 0")
    a.e(f"v_readfirstlane_b32 s{s_t2}, v{v_t+5}")
    a.e("s_nop 3")
    a.e(f"s_cmp_eq_u32 s{s_t2}, 0")
    a.e("s_cbranch_scc0 K1_LN")
    a.e(f"s_mul_i32 s{s_t2}, s{s_hq}, 8704"); a.e(f"s_add_u32 s{s_t2}, s{s_t2}, {OFF_KV}")
    a.e(f"v_lshlrev_b32 v{v_t+4}, 4, v0")
    for i in range(8):
        if i == 4: a.e(f"s_add_u32 s{s_t2}, s{s_t2}, 4096")
        a.e(f"buffer_store_dwordx4 {vr(v_t,4)}, v{v_t+4}, s[{SRD_WS}:{SRD_WS+3}], s{s_t2} offen offset:{(i%4)*1024} sc1")
    a.e("v_cmp_gt_u32 vcc, 32, v0")
    a.e(f"s_and_saveexec_b64 s[{s_c0}:{s_c0+1}], vcc")
    a.e(f"s_add_u32 s{s_t2}, s{s_t2}, 4096")
    a.e(f"buffer_store_dwordx4 {vr(v_t,4)}, v{v_t+4}, s[{SRD_WS}:{SRD_WS+3}], s{s_t2} offen sc1")
    a.e("s_waitcnt vmcnt(0)")
    a.e("v_cmp_eq_u32 vcc, 0, v0")
    a.e("s_and_b64 exec, exec, vcc")
    a.e(f"s_lshl_b32 s{s_t2}, s{s_hq}, 2")
    a.e(f"v_mov_b32 v{v_t+4}, s{s_t2}"); a.e(f"v_mov_b32 v{v_t+5}, 1")
    a.e(f"buffer_store_dword v{v_t+5}, v{v_t+4}, s[{SRD_D}:{SRD_D+3}], 0 offen offset:64 sc1")
    a.e(f"s_mov_b64 exec, s[{s_c0}:{s_c0+1}]")
    v_xl0 = v_xl
    def layernorm(g):
        v_xl = v_xl0 + 32*g
        def tick(): pass
        fill = []
        for i in range(32):
            a.e(f"v_lshlrev_b32 v{v_xu+2*i}, 16, v{v_xl+i}")
            a.e(f"v_and_b32 v{v_xu+2*i+1}, 0xffff0000, v{v_xl+i}")
            if i == 0:
                a.e(f"v_pk_mul_f32 {vr(v_q,2)}, {vr(v_xu,2)}, {vr(v_xu,2)}")
                a.e(f"v_mov_b32 v{v_s}, v{v_xu}"); a.e(f"v_mov_b32 v{v_s+1}, v{v_xu+1}")
            else:
                a.e(f"v_pk_add_f32 {vr(v_s,2)}, {vr(v_s,2)}, {vr(v_xu+2*i,2)}")
                a.e(f"v_pk_fma_f32 {vr(v_q,2)}, {vr(v_xu+2*i,2)}, {vr(v_xu+2*i,2)}, {vr(v_q,2)}")
            if i % 4 == 3: tick()
        a.e(f"v_add_f32 v{v_s}, v{v_s}, v{v_s+1}"); a.e(f"v_add_f32 v{v_q}, v{v_q}, v{v_q+1}")
        for ctl in ("quad_perm:[1,0,3,2]", "quad_perm:[2,3,0,1]", "row_half_mirror"):
            a.e("s_nop 1")
            a.e(f"v_add_f32_dpp v{v_s}, v{v_s}, v{v_s} {ctl} row_mask:0xf bank_mask:0xf")
            a.e(f"v_add_f32_dpp v{v_q}, v{v_q}, v{v_q} {ctl} row_mask:0xf bank_mask:0xf")
        a.e(f"v_mul_f32 v{v_s}, {fx(1/512)}, v{v_s}"); a.e(f"v_mul_f32 v{v_q}, {fx(1/512)}, v{v_q}")
        a.e(f"v_fma_f32 v{v_q}, -v{v_s}, v{v_s}, v{v_q}")
        a.e(f"v_max_f32 v{v_q}, 0, v{v_q}"); a.e(f"v_add_f32 v{v_q}, {fx(1e-5)}, v{v_q}")
        a.e(f"v_rsq_f32 v{v_q}, v{v_q}")
        a.e(f"v_lshrrev_b32 v{v_lt}, 4, v0"); a.e(f"v_add_u32 v{v_lt}, {4*g}, v{v_lt}")
        a.e(f"v_mul_f32 v{v_s}, v{v_s}, v{v_q}"); a.e(f"v_sub_f32 v{v_s}, 0, v{v_s}")
        a.e(f"v_xor_b32 v{v_lt}, v{v_lt}, v0"); a.e(f"v_and_b32 v{v_lt}, 7, v{v_lt}")
        a.e(f"v_lshrrev_b32 v{v_lt+1}, 3, v0"); a.e(f"v_lshlrev_b32 v{v_lt+1}, 7, v{v_lt+1}")
        a.e(f"v_lshl_add_u32 v{v_lt}, v{v_lt}, 4, v{v_lt+1}")
        a.e(f"s_lshl_b32 s{s_t0}, s{s_j}, 11"); a.e(f"s_add_u32 s{s_t0}, s{s_t0}, {XR}+{1024}*{0}") if False else None
        a.e(f"s_lshl_b32 s{s_t0}, s{s_j}, 11"); a.e(f"s_add_u32 s{s_t0}, s{s_t0}, {XR + 1024*g}"); a.e(f"v_add_u32 v{v_lt}, s{s_t0}, v{v_lt}")
        for s in range(8):
            for r in range(4):
                i = 4*s + r
                a.e(f"v_pk_fma_f32 {vr(v_xu+2*i,2)}, {vr(v_xu+2*i,2)}, {vr(v_q,2)}, {vr(v_s,2)} op_sel_hi:[1,0,0]")
                a.e(f"v_cvt_pk_bf16_f32 v{v_xl+i}, v{v_xu+2*i}, v{v_xu+2*i+1}")
            a.e(f"ds_write_b128 v{v_lt}, {vr(v_xl+4*s,4)} offset:{s*8192}")
            tick()
        while fill: tick()
    a.lab("K1_LN")
    T(1)
    a.e("s_waitcnt vmcnt(8)")
    T(2)
    layernorm(0)
    a.e("s_waitcnt vmcnt(0)")
    layernorm(1)
    T(3)
    a.e("s_branch K1_CONS")
    a.lab("K1_HMAIN")
    T(1)
    def wphi_frags(tmp):
        a.e(f"v_lshrrev_b32 v{tmp}, 5, v0")
        a.e(f"v_bfe_u32 v{tmp+1}, v0, 2, 2"); a.e(f"v_lshlrev_b32 v{tmp+1}, 5, v{tmp+1}")
        a.e(f"v_lshl_add_u32 v{tmp+1}, v{tmp}, 9, v{tmp+1}")
        a.e(f"v_bfe_u32 v{tmp+2}, v0, 1, 1"); a.e(f"v_bfe_u32 v{tmp+3}, v0, 4, 1")
        a.e(f"v_lshl_add_u32 v{tmp+2}, v{tmp+3}, 1, v{tmp+2}")
        a.e(f"v_lshl_add_u32 v{tmp+1}, v{tmp+2}, 3, v{tmp+1}")
        a.e(f"s_lshr_b32 s{s_t2}, s{s_j}, 1"); a.e(f"s_lshl_b32 s{s_t2}, s{s_t2}, 10"); a.e(f"s_add_u32 s{s_t2}, s{s_t2}, {WPHI}")
        a.e(f"v_add_u32 v{tmp+1}, s{s_t2}, v{tmp+1}")
        a.e(f"v_and_b32 v{tmp+2}, 1, v0")
        a.e(f"v_cmp_eq_u32 vcc, v{tmp+2}, v{tmp}")
        a.e(f"v_mov_b32 v{tmp+3}, {ZERO}")
        a.e("s_nop 0")
        for k in range(4):
            off = (8*(k>>1) + 4*(k&1)) * 32
            a.e(f"v_add_u32 v{tmp+2}, {off}, v{tmp+1}")
            a.e(f"v_cndmask_b32 v{tmp+2}, v{tmp+3}, v{tmp+2}, vcc")
            a.e(f"ds_read_b64_tr_b16 {vr(v_wa+4*(k>>1)+2*(k&1),2)}, v{tmp+2}")
    def prefetch_weights():
        a.e("s_load_dwordx2 s[54:55], s[0:1], 24"); a.e("s_load_dwordx4 s[56:59], s[0:1], 40"); a.e("s_load_dwordx2 s[60:61], s[0:1], 56")
        a.e("s_waitcnt lgkmcnt(0)")
        a.e(f"s_lshr_b32 s{s_t3}, s2, 3")
        a.e(f"s_cmp_eq_u32 s{s_j}, 0"); a.e("s_cbranch_scc0 K1_PF1")
        srd(a, SRD_P, 54, 524288)
        a.e(f"v_lshlrev_b32 v{v_h0}, 7, v0")
        touch_contig(a, SRD_P, 0, 128, s_t3, v_h0, v_dum, s_t2)
        for _ in range(2): a.e(f"buffer_load_dword v{v_dum}, v{v_h0}, s[{SRD_P}:{SRD_P+3}], s{s_t2} offen")
        a.e("s_branch K1_PFE")
        a.lab("K1_PF1")
        a.e(f"s_cmp_eq_u32 s{s_j}, 3"); a.e("s_cbranch_scc1 K1_PF3")
        a.e(f"s_cmp_eq_u32 s{s_j}, 1"); a.e(f"s_cselect_b32 s54, s56, s58"); a.e(f"s_cselect_b32 s55, s57, s59")
        srd(a, SRD_P, 54, 512*3584)
        a.e(f"s_mul_i32 s{s_t2}, s{s_t3}, {16*3584}"); a.e(f"s_bfe_u32 s{s_t3}, s2, 0x10002"); a.e(f"s_mul_i32 s{s_t3}, s{s_t3}, 1792"); a.e(f"s_add_u32 s{s_t2}, s{s_t2}, s{s_t3}")
        for k in range(4):
            a.e(f"v_add_u32 v{v_h0}, {64*k}, v0"); a.e(f"v_mul_u32_u24 v{v_h0+1}, 2341, v{v_h0}"); a.e(f"v_lshrrev_b32 v{v_h0+1}, 15, v{v_h0+1}")
            a.e(f"v_mul_u32_u24 v{v_h0+2}, 14, v{v_h0+1}"); a.e(f"v_sub_u32 v{v_h0}, v{v_h0}, v{v_h0+2}")
            a.e(f"v_mul_u32_u24 v{v_h0+1}, 3584, v{v_h0+1}"); a.e(f"v_lshl_add_u32 v{v_h0}, v{v_h0}, 7, v{v_h0+1}")
            a.e(f"buffer_load_dword v{v_dum}, v{v_h0}, s[{SRD_P}:{SRD_P+3}], s{s_t2} offen")
        a.e("s_branch K1_PFE")
        a.lab("K1_PF3")
        srd(a, SRD_P, 60, 1792*1024)
        a.e(f"v_lshlrev_b32 v{v_h0}, 7, v0")
        a.e(f"s_mov_b32 s{s_t3}, s2")
        touch_contig(a, SRD_P, 0, 56, s_t3, v_h0, v_dum, s_t2)
        for _ in range(3): a.e(f"buffer_load_dword v{v_dum}, v{v_h0}, s[{SRD_P}:{SRD_P+3}], s{s_t2} offen")
        a.lab("K1_PFE")
        pass
        pass
    VM.q = ["wphi"] + [("st", s) for s in range(NST) for _ in range(6)]
    for s in range(NSTG):
        VM.need(("st", s), "wphi")
        if s == 0: a.e("s_waitcnt lgkmcnt(0)")
        a.e("s_barrier")
        T(4 + min(s, 7) // 2) if s % 2 == 0 else None
        lim = min(NSTG - 1, s - 1 + NST)
        while nxt <= lim:
            issue(nxt); nxt += 1
        if s == 0: wphi_frags(v_tmp)
        if s == NSTG - NST and prefetch:
            prefetch_weights(); VM.q += ["pf"] * 4
    T(8)
    a.e(f"s_lshl_b32 s{s_t2}, s{s_j}, 11")
    a.e(f"v_lshlrev_b32 v{v_h0}, 4, v0"); a.e(f"v_add_u32 v{v_h0}, s{s_t2}, v{v_h0}")
    a.e(f"s_mov_b32 s{s_role}, 1")
    a.e("s_barrier")
    a.e("s_barrier")
    T(9)
    a.e(f"ds_read_b128 {vr(v_x0,4)}, v{v_h0} offset:{QX}")
    a.e(f"ds_read_b128 {vr(v_x0+4,4)}, v{v_h0} offset:{QX+1024}")
    a.e("s_waitcnt lgkmcnt(0)")
    a.e("s_branch K1_SOFTMAX")
    a.lab("K1_CONS")
    C = VAlloc(common_end)
    acc = C(48, 4); v_xa = C(4); v_xb = C(4); v_wad = C(1); fx_ = C(8, 4); fw = C(24, 4); v_t = C(8, 4)
    s_tb, s_hp, s_blk = 44, 45, 46
    a.e(f"s_and_b32 s{s_tb}, s{s_w}, 1"); a.e(f"s_lshr_b32 s{s_hp}, s{s_w}, 1")
    a.e(f"v_and_b32 v{v_t}, 31, v0"); a.e(f"v_lshrrev_b32 v{v_t+1}, 5, v0")
    a.e(f"v_lshrrev_b32 v{v_t+2}, 1, v{v_t}"); a.e(f"v_and_b32 v{v_t+2}, 7, v{v_t+2}"); a.e(f"v_xor_b32 v{v_t+1}, v{v_t+1}, v{v_t+2}")
    a.e(f"v_lshlrev_b32 v{v_t}, 7, v{v_t}"); a.e(f"v_lshl_add_u32 v{v_xb}, v{v_t+1}, 4, v{v_t}")
    a.e(f"s_lshl_b32 s{s_t2}, s{s_tb}, 12"); a.e(f"s_add_u32 s{s_t2}, s{s_t2}, {XR}"); a.e(f"v_add_u32 v{v_xb}, s{s_t2}, v{v_xb}")
    for t in range(1, 4): a.e(f"v_xor_b32 v{v_xb+t}, {t<<5}, v{v_xb}")
    a.e(f"s_mov_b32 s{s_blk}, s{s_rot}")
    def set_xblk():
        a.e(f"s_lshl_b32 s{s_t2}, s{s_blk}, 13")
        for t in range(4): a.e(f"v_add_u32 v{v_xa+t}, s{s_t2}, v{v_xb+t}")
        a.e(f"s_add_u32 s{s_blk}, s{s_blk}, 1"); a.e(f"s_and_b32 s{s_blk}, s{s_blk}, 7")
    set_xblk()
    a.e(f"v_lshrrev_b32 v{v_t}, 5, v0"); a.e(f"v_lshlrev_b32 v{v_t}, 3, v{v_t}")
    a.e(f"v_bfe_u32 v{v_t+1}, v0, 2, 2"); a.e(f"v_add_u32 v{v_t}, v{v_t}, v{v_t+1}"); a.e(f"v_mul_u32_u24 v{v_t}, 384, v{v_t}")
    a.e(f"v_bfe_u32 v{v_t+1}, v0, 3, 1"); a.e(f"v_xor_b32 v{v_t+1}, s{s_hp}, v{v_t+1}"); a.e(f"v_lshl_add_u32 v{v_t}, v{v_t+1}, 6, v{v_t}")
    a.e(f"v_and_b32 v{v_t+1}, 1, v0"); a.e(f"v_lshl_add_u32 v{v_t}, v{v_t+1}, 5, v{v_t}")
    a.e(f"v_bfe_u32 v{v_t+1}, v0, 1, 1"); a.e(f"v_bfe_u32 v{v_t+2}, v0, 4, 1"); a.e(f"v_lshl_add_u32 v{v_t+1}, v{v_t+2}, 1, v{v_t+1}")
    a.e(f"v_lshl_add_u32 v{v_wad}, v{v_t+1}, 3, v{v_t}"); a.e(f"v_add_u32 v{v_wad}, {WR}, v{v_wad}")
    for i in range(48): a.e(f"v_mov_b32 v{acc+i}, 0")
    LG = Cnt(a, "lgkmcnt", 15)
    def reads(s, t):
        p = t & 1; o = []
        o.append(lambda: LG.op(f"ds_read_b128 {vr(fx_+4*p,4)}, v{v_xa+t}", ("x", s, t)))
        for cb in range(3):
            for k in range(2):
                o.append(lambda cb=cb, k=k: LG.op(f"ds_read_b64_tr_b16 {vr(fw+12*p+4*cb+2*k,2)}, v{v_wad} offset:{t*6144+cb*128+k*1536}", ("w", s, t, cb)))
        return o
    def step(s, t, nxt_):
        p = t & 1
        def m(cb):
            LG.need(("x", s, t), ("w", s, t, cb))
            a.e(f"{MF} {vr(acc+16*cb,16)}, {vr(fw+12*p+4*cb,4)}, {vr(fx_+4*p,4)}, {vr(acc+16*cb,16)}")
        if t < 3:
            f = nxt_
            m(0); f[0](); f[1](); f[2](); m(1); f[3](); f[4](); m(2); f[5](); f[6]()
        else:
            m(0)
            if nxt_ is not None:
                LG.drain()
                a.e("s_barrier")
                delta = WSLOT if (s + 1) % NST != 0 else -(NST - 1) * WSLOT
                a.e(f"v_add_u32 v{v_wad}, {delta & 0xffffffff:#x}, v{v_wad}")
                set_xblk()
                f = nxt_
                f[0](); f[1](); f[2](); m(1); f[3](); f[4](); m(2); f[5](); f[6]()
            else:
                m(1); m(2)
    a.e("s_waitcnt lgkmcnt(0)")
    a.e("s_barrier")
    T(4)
    for f in reads(0, 0): f()
    wphi_frags(v_tmp)
    LG.q += [("wa", k) for k in range(4)]
    for s in range(NSTG):
        for t in range(4):
            nx = reads(s, t + 1) if t < 3 else (reads(s + 1, 0) if s + 1 < NSTG else None)
            step(s, t, nx)
    T(5)
    a.e("s_barrier")
    a.e(f"s_lshl_b32 s{s_t2}, s{s_j}, 11")
    a.e(f"v_lshlrev_b32 v{v_t}, 4, v0"); a.e(f"v_add_u32 v{v_t}, s{s_t2}, v{v_t}")
    a.e("s_nop 7")
    for i in range(8): a.e(f"v_cvt_pk_bf16_f32 v{v_x0+i}, v{acc+2*i}, v{acc+2*i+1}")
    a.e(f"ds_write_b128 v{v_t}, {vr(v_x0,4)} offset:{QX}")
    a.e(f"ds_write_b128 v{v_t}, {vr(v_x0+4,4)} offset:{QX+1024}")
    a.e("s_waitcnt lgkmcnt(0)")
    a.e("s_barrier")
    T(6)
    a.e(f"s_lshl_b32 s{s_t2}, s{s_hq}, 2"); a.e(f"v_mov_b32 v{v_t+6}, s{s_t2}")
    a.e(f"buffer_load_dword v{v_t+7}, v{v_t+6}, s[{SRD_D}:{SRD_D+3}], 0 offen offset:64 sc1")
    for i in range(8): a.e(f"v_cvt_pk_bf16_f32 v{v_x0+i}, v{acc+16+2*i}, v{acc+16+2*i+1}")
    for i in range(8): a.e(f"v_cvt_pk_bf16_f32 v{acc+32+i}, v{acc+32+2*i}, v{acc+32+2*i+1}")
    a.e(f"v_and_b32 v{v_t}, 31, v0"); a.e(f"s_lshl_b32 s{s_t2}, s{s_tb}, 5"); a.e(f"v_add_u32 v{v_t}, s{s_t2}, v{v_t}")
    a.e(f"v_mul_u32_u24 v{v_t}, 160, v{v_t}")
    a.e(f"v_lshrrev_b32 v{v_t+1}, 5, v0"); a.e(f"s_lshl_b32 s{s_t2}, s{s_hp}, 6")
    a.e(f"v_lshl_add_u32 v{v_t+2}, v{v_t+1}, 5, v{v_t}"); a.e(f"v_add_u32 v{v_t+2}, s{s_t2}, v{v_t+2}")
    a.e(f"ds_write_b128 v{v_t+2}, {vr(acc+32,4)} offset:{VV}")
    a.e(f"ds_write_b128 v{v_t+2}, {vr(acc+36,4)} offset:{VV+16}")
    a.e(f"v_lshl_add_u32 v{v_t+2}, v{v_t+1}, 4, v{v_t}")
    for i in range(4): a.e(f"v_mov_b32 v{v_t+8-8+0+ (i if False else 0)}, v{v_t}") if False else None
    for i in range(4): a.e(f"v_mov_b32 v{acc+40+i}, 0x3f803f80")
    a.e(f"ds_write_b128 v{v_t+2}, {vr(acc+40,4)} offset:{VV+128}")
    a.e(f"s_mov_b32 s{s_role}, 0")
    a.lab("K1_SOFTMAX")
    a.e("s_nop 1")
    a.e(f"{MF} {vr(v_p,16)}, {vr(v_wa,4)}, {vr(v_x0,4)}, 0")
    a.e(f"{MF} {vr(v_p,16)}, {vr(v_wa+4,4)}, {vr(v_x0+4,4)}, {vr(v_p,16)}")
    a.e(f"s_mov_b32 s{s_t3}, {fx(LOG2E)}")
    a.e("s_nop 15")
    mx, mn = v_tmp, v_tmp + 1
    a.e(f"v_max3_f32 v{mx}, v{v_p}, v{v_p+1}, v{v_p+2}"); a.e(f"v_min3_f32 v{mn}, v{v_p}, v{v_p+1}, v{v_p+2}")
    for i in range(3, 15, 2):
        a.e(f"v_max3_f32 v{mx}, v{mx}, v{v_p+i}, v{v_p+i+1}"); a.e(f"v_min3_f32 v{mn}, v{mn}, v{v_p+i}, v{v_p+i+1}")
    a.e(f"v_max_f32 v{mx}, v{mx}, v{v_p+15}"); a.e(f"v_min_f32 v{mn}, v{mn}, v{v_p+15}")
    a.e(f"v_mul_f32 v{mx}, s{s_t3}, v{mx}"); a.e(f"v_mul_f32 v{mn}, s{s_t3}, v{mn}")
    for i in range(16):
        a.e(f"v_fma_f32 v{v_en+i}, -v{v_p+i}, s{s_t3}, v{mn}")
        a.e(f"v_fma_f32 v{v_p+i}, v{v_p+i}, s{s_t3}, -v{mx}")
    for i in range(16):
        a.e(f"v_exp_f32 v{v_p+i}, v{v_p+i}"); a.e(f"v_exp_f32 v{v_en+i}, v{v_en+i}")
    sp, sn = v_tmp + 2, v_tmp + 4
    a.e(f"v_pk_add_f32 {vr(sp,2)}, {vr(v_p,2)}, {vr(v_p+2,2)}"); a.e(f"v_pk_add_f32 {vr(sn,2)}, {vr(v_en,2)}, {vr(v_en+2,2)}")
    for i in range(4, 16, 2):
        a.e(f"v_pk_add_f32 {vr(sp,2)}, {vr(sp,2)}, {vr(v_p+i,2)}"); a.e(f"v_pk_add_f32 {vr(sn,2)}, {vr(sn,2)}, {vr(v_en+i,2)}")
    a.e(f"v_add_f32 v{sp}, v{sp}, v{sp+1}"); a.e(f"v_add_f32 v{sn}, v{sn}, v{sn+1}")
    a.e(f"v_rcp_f32 v{sp}, v{sp}"); a.e(f"v_rcp_f32 v{sn}, v{sn}")
    a.e("s_nop 0")
    for i in range(0, 16, 2):
        a.e(f"v_pk_mul_f32 {vr(v_p+i,2)}, {vr(v_p+i,2)}, {vr(sp,2)} op_sel_hi:[1,0]")
        a.e(f"v_pk_mul_f32 {vr(v_en+i,2)}, {vr(v_en+i,2)}, {vr(sn,2)} op_sel_hi:[1,0]")
    for i in range(8):
        a.e(f"v_cvt_pk_bf16_f32 v{v_pk+i}, v{v_p+2*i}, v{v_p+2*i+1}"); a.e(f"v_cvt_pk_bf16_f32 v{v_pk+8+i}, v{v_en+2*i}, v{v_en+2*i+1}")
    a.e(f"s_cmp_eq_u32 s{s_role}, 0")
    a.e("s_cbranch_scc1 K1_CONS2")
    a.e(f"s_lshl_b32 s{s_t0}, s{s_rb}, 1"); a.e(f"s_and_b32 s{s_t1}, s{s_j}, 1"); a.e(f"s_add_u32 s{s_t0}, s{s_t0}, s{s_t1}")
    a.e(f"s_lshl_b32 s{s_t0}, s{s_t0}, 5"); a.e(f"s_lshl_b32 s{s_t1}, s{s_hq}, 2"); a.e(f"s_add_u32 s{s_t0}, s{s_t0}, s{s_t1}")
    a.e(f"s_lshr_b32 s{s_t1}, s{s_j}, 1"); a.e(f"s_lshl_b32 s{s_t1}, s{s_t1}, 1"); a.e(f"s_add_u32 s{s_t0}, s{s_t0}, s{s_t1}")
    a.e(f"s_lshl_b32 s{s_t0}, s{s_t0}, 11"); a.e(f"s_add_u32 s{s_t0}, s{s_t0}, {OFF_PHIQ}")
    a.e(f"v_and_b32 v{v_tmp}, 31, v0"); a.e(f"v_lshrrev_b32 v{v_tmp+1}, 5, v0")
    a.e(f"v_lshlrev_b32 v{v_tmp}, 4, v{v_tmp}"); a.e(f"v_lshl_add_u32 v{v_tmp}, v{v_tmp+1}, 11, v{v_tmp}")
    for i in range(4):
        a.e(f"buffer_store_dwordx4 {vr(v_pk+4*i,4)}, v{v_tmp}, s[{SRD_WS}:{SRD_WS+3}], s{s_t0} offen offset:{(i>>1)*1024+(i&1)*512}")
    T(10)
    T.real(14); T.dump(S_WS, s_w, v_tmp)
    a.e("s_endpgm")
    a.lab("K1_CONS2")
    t0 = v_tmp
    a.e(f"v_and_b32 v{t0}, 3, v0"); a.e(f"v_lshlrev_b32 v{t0}, 2, v{t0}")
    a.e(f"v_and_b32 v{t0+1}, 2, v0"); a.e(f"v_or_b32 v{t0}, v{t0}, v{t0+1}")
    a.e(f"v_bfe_u32 v{t0+1}, v0, 2, 1"); a.e(f"v_or_b32 v{t0}, v{t0}, v{t0+1}")
    a.e(f"v_lshrrev_b32 v{t0+1}, 5, v0"); a.e(f"s_lshl_b32 s{s_t2}, s{s_hp}, 1"); a.e(f"v_add_u32 v{t0+1}, s{s_t2}, v{t0+1}")
    a.e(f"v_lshlrev_b32 v{t0+1}, 2, v{t0+1}"); a.e(f"v_xor_b32 v{t0}, v{t0}, v{t0+1}")
    a.e(f"v_and_b32 v{t0+1}, 31, v0"); a.e(f"s_lshl_b32 s{s_t2}, s{s_tb}, 5"); a.e(f"v_add_u32 v{t0+1}, s{s_t2}, v{t0+1}")
    a.e(f"v_lshlrev_b32 v{t0+1}, 8, v{t0+1}"); a.e(f"v_lshl_add_u32 v{t0}, v{t0}, 4, v{t0+1}")
    for i in range(4):
        if i: a.e(f"v_xor_b32 v{t0+1}, {i<<4}, v{t0}")
        a.e(f"ds_write_b128 v{t0 if i == 0 else t0+1}, {vr(v_pk+4*i,4)} offset:{PHIK}")
    a.e("s_waitcnt lgkmcnt(0)")
    T(7)
    a.e(f"v_mov_b32 v{t0+6}, {ZERO+16}"); a.e(f"v_mov_b32 v{t0+7}, 1")
    a.e("v_cmp_eq_u32 vcc, 0, v0"); a.e(f"s_and_saveexec_b64 s[{s_c0}:{s_c0+1}], vcc")
    a.e(f"ds_add_u32 v{t0+6}, v{t0+7}")
    a.e(f"s_mov_b64 exec, s[{s_c0}:{s_c0+1}]")
    a.lab("K1_RDV")
    a.e(f"ds_read_b32 v{t0+7}, v{t0+6}")
    a.e("s_waitcnt lgkmcnt(0)")
    a.e(f"v_readfirstlane_b32 s{s_t2}, v{t0+7}")
    a.e("s_nop 3")
    a.e(f"s_cmp_lt_u32 s{s_t2}, 4")
    a.e("s_cbranch_scc1 K1_RDV")
    T(8)
    kvacc = v_p; fa = v_en; fb = v_en + 8
    a.e(f"v_lshrrev_b32 v{t0}, 5, v0"); a.e(f"v_lshlrev_b32 v{t0}, 3, v{t0}")
    a.e(f"v_bfe_u32 v{t0+1}, v0, 2, 2"); a.e(f"v_add_u32 v{t0}, v{t0}, v{t0+1}")
    a.e(f"v_and_b32 v{t0+2}, 3, v0")
    a.e(f"v_mul_u32_u24 v{t0+3}, 160, v{t0}"); a.e(f"v_lshl_add_u32 v{t0+3}, v{t0+2}, 3, v{t0+3}")
    a.e(f"s_lshl_b32 s{s_t2}, s{s_w}, 5"); a.e(f"v_mov_b32 v{t0+4}, s{s_t2}")
    a.e(f"v_bfe_u32 v{t0+5}, v0, 4, 1"); a.e(f"v_cmp_eq_u32 vcc, 1, v{t0+5}")
    a.e(f"v_mov_b32 v{t0+6}, 128")
    a.e("s_nop 0")
    a.e(f"v_cndmask_b32 v{t0+4}, v{t0+4}, v{t0+6}, vcc"); a.e(f"v_add_u32 v{t0+3}, v{t0+3}, v{t0+4}")
    a.e(f"v_lshrrev_b32 v{t0+4}, 1, v{t0+2}"); a.e(f"v_lshl_add_u32 v{t0+4}, v{t0+5}, 1, v{t0+4}")
    a.e(f"s_lshl_b32 s{s_t2}, s{s_w}, 2"); a.e(f"v_add_u32 v{t0+4}, s{s_t2}, v{t0+4}")
    a.e(f"v_lshlrev_b32 v{t0+5}, 2, v{t0+1}"); a.e(f"v_and_b32 v{t0+6}, 2, v{t0+1}"); a.e(f"v_or_b32 v{t0+5}, v{t0+5}, v{t0+6}")
    a.e(f"v_xor_b32 v{t0+4}, v{t0+4}, v{t0+5}")
    a.e(f"v_lshlrev_b32 v{t0+4}, 4, v{t0+4}"); a.e(f"v_lshl_add_u32 v{t0+4}, v{t0}, 8, v{t0+4}")
    a.e(f"v_and_b32 v{t0+5}, 1, v{t0+2}"); a.e(f"v_lshl_add_u32 v{t0+4}, v{t0+5}, 3, v{t0+4}")
    a.e(f"v_xor_b32 v{t0+5}, 16, v{t0+4}")
    def kv_rd(u, buf):
        a.e(f"ds_read_b64_tr_b16 {vr(fa+4*buf,2)}, v{t0+3} offset:{VV+u*2560}")
        a.e(f"ds_read_b64_tr_b16 {vr(fa+4*buf+2,2)}, v{t0+3} offset:{VV+u*2560+640}")
        a.e(f"ds_read_b64_tr_b16 {vr(fb+4*buf,2)}, v{t0+4} offset:{PHIK+u*4096}")
        a.e(f"ds_read_b64_tr_b16 {vr(fb+4*buf+2,2)}, v{t0+5} offset:{PHIK+u*4096+1024}")
    kv_rd(0, 0)
    for u in range(4):
        if u < 3:
            kv_rd(u + 1, (u + 1) & 1); a.e("s_waitcnt lgkmcnt(4)")
        else: a.e("s_waitcnt lgkmcnt(0)")
        a.e(f"{MF} {vr(kvacc,16)}, {vr(fa+4*(u&1),4)}, {vr(fb+4*(u&1),4)}, {'0' if u == 0 else vr(kvacc,16)}")
    T(9)
    a.e("s_waitcnt vmcnt(0)")
    a.lab("K1_POLL")
    a.e(f"v_readfirstlane_b32 s{s_t2}, v{v_t+7}")
    a.e("s_nop 3")
    a.e(f"s_cmp_lg_u32 s{s_t2}, 0")
    a.e("s_cbranch_scc1 K1_GO")
    a.e(f"buffer_load_dword v{v_t+7}, v{v_t+6}, s[{SRD_D}:{SRD_D+3}], 0 offen offset:64 sc1")
    a.e("s_waitcnt vmcnt(0)")
    a.e("s_branch K1_POLL")
    a.lab("K1_GO")
    a.e(f"s_lshl_b32 s{s_t2}, s{s_hq}, 2"); a.e(f"s_add_u32 s{s_t2}, s{s_t2}, s{s_w}")
    a.e(f"s_mul_i32 s{s_t2}, s{s_t2}, {17*128}"); a.e(f"s_add_u32 s{s_t2}, s{s_t2}, {OFF_KV}")
    a.e(f"v_and_b32 v{t0}, 31, v0"); a.e(f"v_lshlrev_b32 v{t0}, 2, v{t0}")
    a.e(f"v_lshrrev_b32 v{t0+1}, 5, v0"); a.e(f"v_lshl_add_u32 v{t0+2}, v{t0+1}, 9, v{t0}")
    a.e("s_nop 7")
    for r in range(8):
        a.e(f"buffer_atomic_add_f32 v{kvacc+r}, v{t0+2}, s[{SRD_WS}:{SRD_WS+3}], s{s_t2} offen offset:{((r&3)+8*(r>>2))*128}")
    a.e("v_cmp_gt_u32 vcc, 32, v0")
    a.e(f"s_and_saveexec_b64 s[{s_c0}:{s_c0+1}], vcc")
    a.e(f"buffer_atomic_add_f32 v{kvacc+8}, v{t0}, s[{SRD_WS}:{SRD_WS+3}], s{s_t2} offen offset:{16*128}")
    if dbg:
        T(10); a.e("s_waitcnt vmcnt(0)"); T(11); T.real(14); T.dump(S_WS, s_w, v_tmp)
    a.lab("K1_END")
    a.e("s_endpgm")
    nv = max(H.hi, C.hi, Cp.hi, L.hi)
    kernel_desc(a, name, nv, 102 if dbg else 64, (nv + 3) // 4 * 4)
    return (name, 256, 512, LDS)
```

```python
from glib import *

def gen_k3(a, dbg=False, TOUCH=False, PFWD=True, STPOL=' sc1'):
    name = "k3_kernel"
    T = Stamps(a, dbg, 2)
    NWG = 224
    STAT = 0; CSX = 1024
    RB = 8192; XB = 16384; SLOT = 49152; NST = 3; NSTG = 8
    LDS = RB + NST * SLOT
    kernel_begin(a, name)
    S_WG, S_WU, S_WS = 4, 6, 14
    SRD_G, SRD_U, SRD_WS = 16, 20, 28
    s_w, s_rb, s_cg, s_rot, s_j = 36, 37, 38, 39, 50
    s_t0, s_t1, s_t2, s_t3 = 40, 41, 42, 43
    a.e(f"s_cmp_ge_u32 s2, {NWG}")
    a.e("s_cbranch_scc1 K3_END")
    T.real(15); T(0)
    a.e("s_load_dwordx4 s[4:7], s[0:1], 40")
    a.e("s_load_dwordx2 s[14:15], s[0:1], 80")
    a.e("v_lshrrev_b32 v1, 6, v0")
    a.e("v_and_b32 v0, 63, v0")
    a.e(f"v_readfirstlane_b32 s{s_w}, v1")
    a.e(f"s_and_b32 s{s_t0}, s2, 7"); a.e(f"s_lshr_b32 s{s_t1}, s2, 3")
    a.e(f"s_and_b32 s{s_rb}, s{s_t0}, 3"); a.e(f"s_lshl_b32 s{s_rb}, s{s_rb}, 2"); a.e(f"s_and_b32 s{s_t2}, s{s_t1}, 3"); a.e(f"s_add_u32 s{s_rb}, s{s_rb}, s{s_t2}")
    a.e(f"s_lshr_b32 s{s_cg}, s{s_t0}, 2"); a.e(f"s_mul_i32 s{s_cg}, s{s_cg}, 7"); a.e(f"s_lshr_b32 s{s_t2}, s{s_t1}, 2"); a.e(f"s_add_u32 s{s_cg}, s{s_cg}, s{s_t2}")
    a.e(f"s_and_b32 s{s_rot}, s{s_t1}, 3"); a.e(f"s_lshl_b32 s{s_rot}, s{s_rot}, 1"); a.e(f"s_add_u32 s{s_rot}, s{s_rot}, s{s_t2}"); a.e(f"s_and_b32 s{s_rot}, s{s_rot}, 7")
    a.e(f"s_and_b32 s{s_j}, s{s_w}, 3")
    a.e(f"s_cmp_ge_u32 s{s_w}, 4")
    a.e("s_cbranch_scc0 K3_CONS")
    H = VAlloc(2)
    v_dum = H(1); v_l16 = H(1); v_g = H(1); v_u = H(1); v_st = H(16, 4); v_t = H(8, 2)
    a.e(f"v_lshlrev_b32 v{v_l16}, 4, v0")
    a.e(f"v_lshrrev_b32 v{v_t}, 4, v0")
    a.e(f"v_bfe_u32 v{v_t+1}, v0, 1, 3")
    a.e(f"v_xor_b32 v{v_t+1}, v{v_t+1}, v{v_t}")
    a.e(f"v_mul_u32_u24 v{v_t+2}, 3584, v{v_t}")
    a.e(f"v_and_b32 v{v_t+3}, 1, v0")
    a.e(f"v_lshl_add_u32 v{v_t+2}, v{v_t+3}, 4, v{v_t+2}")
    a.e(f"v_lshl_add_u32 v{v_g}, v{v_t+1}, 5, v{v_t+2}")
    a.e(f"v_xor_b32 v{v_t+1}, 4, v{v_t+1}")
    a.e(f"v_lshl_add_u32 v{v_u}, v{v_t+1}, 5, v{v_t+2}")
    a.e("s_waitcnt lgkmcnt(0)")
    srd(a, SRD_WS, S_WS, WS_BYTES); srd(a, SRD_G, S_WG, 512*3584); srd(a, SRD_U, S_WU, 512*3584)
    VM = Cnt(a, "vmcnt", 63)
    s_xb, s_wb, s_xl, s_wl, s_kst, s_xo, s_wo, s_slot = 44, 45, 46, 47, 48, 49, 51, 52
    a.e(f"s_lshl_b32 s{s_xb}, s{s_rb}, 2"); a.e(f"s_add_u32 s{s_xb}, s{s_xb}, s{s_j}")
    a.e(f"s_lshl_b32 s{s_t0}, s{s_xb}, 12")
    a.e(f"s_lshl_b32 s{s_xb}, s{s_xb}, 15"); a.e(f"s_add_u32 s{s_xb}, s{s_xb}, {OFF_H}")
    a.e(f"s_mul_i32 s{s_wb}, s{s_j}, {16*3584}"); a.e(f"s_lshl_b32 s{s_t2}, s{s_cg}, 8"); a.e(f"s_add_u32 s{s_wb}, s{s_wb}, s{s_t2}")
    a.e(f"s_lshl_b32 s{s_xl}, s{s_j}, 12")
    a.e(f"s_lshl_b32 s{s_wl}, s{s_j}, 12"); a.e(f"s_add_u32 s{s_wl}, s{s_wl}, {XB}")
    a.e(f"s_mov_b32 s{s_kst}, s{s_rot}")
    def issue(st, slot):
        a.e(f"s_lshl_b32 s{s_xo}, s{s_kst}, 12"); a.e(f"s_add_u32 s{s_xo}, s{s_xo}, s{s_xb}")
        a.e(f"s_mul_i32 s{s_wo}, s{s_kst}, {64*3584}"); a.e(f"s_add_u32 s{s_wo}, s{s_wo}, s{s_wb}")
        a.e(f"s_add_u32 m0, s{s_xl}, {RB+slot*SLOT}")
        a.e(f"s_add_u32 s{s_kst}, s{s_kst}, 1")
        for i in range(4):
            VM.op(f"buffer_load_dwordx4 v{v_l16}, s[{SRD_WS}:{SRD_WS+3}], s{s_xo} offen offset:{i*1024} lds", ("st", st))
        a.e(f"s_and_b32 s{s_kst}, s{s_kst}, 7")
        for i in range(4):
            a.e(f"s_add_u32 m0, s{s_wl}, {RB+slot*SLOT+i*1024}")
            a.e("s_nop 0")
            VM.op(f"buffer_load_dwordx4 v{v_g}, s[{SRD_G}:{SRD_G+3}], s{s_wo} offen lds", ("st", st))
            a.e(f"s_add_u32 m0, s{s_wl}, {RB+slot*SLOT+16384+i*1024}")
            a.e("s_nop 0")
            VM.op(f"buffer_load_dwordx4 v{v_u}, s[{SRD_U}:{SRD_U+3}], s{s_wo} offen lds", ("st", st))
            if i < 3: a.e(f"s_add_u32 s{s_wo}, s{s_wo}, {4*3584}")
    nxt = 0
    v_cp = H(16, 4)
    def load_stats():
        a.e(f"v_and_b32 v{v_t}, 15, v0"); a.e(f"v_lshlrev_b32 v{v_t}, 4, v{v_t}")
        a.e(f"v_lshrrev_b32 v{v_t+1}, 4, v0"); a.e(f"v_lshl_add_u32 v{v_t}, v{v_t+1}, 16, v{v_t}")
        a.e(f"s_lshl_b32 s{s_t0}, s{s_rb}, 2"); a.e(f"s_add_u32 s{s_t0}, s{s_t0}, s{s_j}"); a.e(f"s_lshl_b32 s{s_t0}, s{s_t0}, 8"); a.e(f"s_add_u32 s{s_t0}, s{s_t0}, {OFF_ST2}")
        for i in range(4):
            VM.op(f"buffer_load_dwordx4 {vr(v_st+4*i,4)}, v{v_t}, s[{SRD_WS}:{SRD_WS+3}], s{s_t0} offen", "stat")
            if i < 3: a.e(f"s_add_u32 s{s_t0}, s{s_t0}, 16384")
        a.e(f"v_and_b32 v{v_t+2}, 31, v0"); a.e(f"v_lshlrev_b32 v{v_t+2}, 4, v{v_t+2}")
        a.e(f"v_lshrrev_b32 v{v_t+3}, 5, v0"); a.e(f"v_mul_u32_u24 v{v_t+3}, {1792*4}, v{v_t+3}"); a.e(f"v_add_u32 v{v_t+2}, v{v_t+2}, v{v_t+3}")
        a.e(f"s_mul_i32 s{s_t1}, s{s_j}, {4*3584*4}"); a.e(f"s_lshl_b32 s{s_t2}, s{s_cg}, 9"); a.e(f"s_add_u32 s{s_t1}, s{s_t1}, s{s_t2}"); a.e(f"s_add_u32 s{s_t1}, s{s_t1}, {OFF_CS}")
        for i in range(4):
            VM.op(f"buffer_load_dwordx4 {vr(v_cp+4*i,4)}, v{v_t+2}, s[{SRD_WS}:{SRD_WS+3}], s{s_t1} offen", "stat")
            if i < 3: a.e(f"s_add_u32 s{s_t1}, s{s_t1}, {3584*4}")
    issue(0, 0); nxt = 1
    T(1)
    def process_stats():
        VM.need("stat")
        for i in range(1, 4):
            a.e(f"v_pk_add_f32 {vr(v_cp,2)}, {vr(v_cp,2)}, {vr(v_cp+4*i,2)}"); a.e(f"v_pk_add_f32 {vr(v_cp+2,2)}, {vr(v_cp+2,2)}, {vr(v_cp+4*i+2,2)}")
            a.e(f"v_pk_add_f32 {vr(v_st,2)}, {vr(v_st,2)}, {vr(v_st+4*i,2)}"); a.e(f"v_pk_add_f32 {vr(v_st+2,2)}, {vr(v_st+2,2)}, {vr(v_st+4*i+2,2)}")
        a.e(f"v_lshlrev_b32 v{v_t+2}, 6, v0"); a.e(f"s_lshl_b32 s{s_t1}, s{s_j}, 2"); a.e(f"v_add_u32 v{v_t+2}, s{s_t1}, v{v_t+2}")
        for e in range(4): a.e(f"ds_write_b32 v{v_t+2}, v{v_cp+e} offset:{CSX+16*e}")
        for op in ("v_permlane16_swap_b32", "v_permlane32_swap_b32"):
            for e in range(4): a.e(f"v_mov_b32 v{v_st+4+e}, v{v_st+e}")
            a.e("s_nop 1")
            for e in range(4): a.e(f"{op} v{v_st+e}, v{v_st+4+e}")
            a.e("s_nop 1")
            for e in range(4): a.e(f"v_add_f32 v{v_st+e}, v{v_st+e}, v{v_st+4+e}")
        for e in (0, 2):
            a.e(f"v_mul_f32 v{v_st+e}, {fx(1/512)}, v{v_st+e}"); a.e(f"v_mul_f32 v{v_st+e+1}, {fx(1/512)}, v{v_st+e+1}")
            a.e(f"v_fma_f32 v{v_st+e+1}, -v{v_st+e}, v{v_st+e}, v{v_st+e+1}")
            a.e(f"v_max_f32 v{v_st+e+1}, 0, v{v_st+e+1}"); a.e(f"v_add_f32 v{v_st+e+1}, {fx(1e-5)}, v{v_st+e+1}")
            a.e(f"v_rsq_f32 v{v_st+e+1}, v{v_st+e+1}")
        a.e(f"v_and_b32 v{v_t}, 15, v0"); a.e(f"v_lshlrev_b32 v{v_t}, 4, v{v_t}")
        a.e(f"s_lshl_b32 s{s_t2}, s{s_j}, 8"); a.e(f"v_add_u32 v{v_t}, s{s_t2}, v{v_t}")
        a.e(f"ds_write_b128 v{v_t}, {vr(v_st,4)} offset:{STAT}")
    for s in range(NSTG):
        VM.need(("st", s))
        a.e("s_barrier")
        T(2+s)
        lim = min(NSTG - 1, s - 1 + NST, s + 2)
        while nxt <= lim:
            issue(nxt, nxt % NST); nxt += 1
        if s == 3: load_stats()
        if s == NSTG - 1:
            process_stats(); a.e("s_waitcnt lgkmcnt(0)")
        if PFWD and s == NSTG - NST:
            a.e("s_load_dwordx2 s[54:55], s[0:1], 56"); a.e("s_waitcnt lgkmcnt(0)")
            srd(a, 56, 54, 1792*1024)
            a.e(f"v_lshlrev_b32 v{v_t}, 7, v0")
            a.e(f"s_lshr_b32 s{s_t1}, s2, 3"); a.e(f"s_lshl_b32 s{s_t1}, s{s_t1}, 2"); a.e(f"s_add_u32 s{s_t1}, s{s_t1}, s{s_j}")
            touch_contig(a, 56, 0, 128, s_t1, v_t, v_dum, s_t2, VM)
    a.e("s_barrier")
    T(10); T.real(14); T.dump(S_WS, s_w, v_t)
    a.e("s_endpgm")
    a.lab("K3_CONS")
    C = VAlloc(2)
    acc = C(128, 4)
    fxr = C(16, 4)
    fw = C(32, 4)
    v_dum = C(1); v_xa = C(1); v_wa = C(4); v_cs = C(2); v_one = C(1); v_l16 = C(1)
    v_t = C(8, 4); aux = C(4, 4); auw = C(16, 4); st = C(4, 2); P = C(8, 4)
    s_tbp, s_fh = 44, 45
    a.e(f"s_and_b32 s{s_tbp}, s{s_w}, 1"); a.e(f"s_lshr_b32 s{s_fh}, s{s_w}, 1")
    a.e(f"v_lshlrev_b32 v{v_l16}, 4, v0")
    a.e(f"s_lshl_b32 s{s_t0}, s{s_tbp}, 13"); a.e(f"s_add_u32 s{s_t0}, s{s_t0}, {RB}")
    a.e(f"v_add_u32 v{v_xa}, s{s_t0}, v{v_l16}")
    a.e(f"v_bfe_u32 v{v_t}, v0, 2, 2")
    a.e(f"v_lshrrev_b32 v{v_t+1}, 5, v0")
    a.e(f"v_lshl_add_u32 v{v_t+1}, v{v_t+1}, 3, v{v_t}")
    a.e(f"v_lshlrev_b32 v{v_t+1}, 8, v{v_t+1}")
    a.e(f"v_bfe_u32 v{v_t+2}, v0, 1, 1")
    a.e(f"v_lshl_add_u32 v{v_t+1}, v{v_t+2}, 14, v{v_t+1}")
    a.e(f"v_lshl_or_b32 v{v_t+2}, v{v_t+2}, 2, v{v_t}")
    a.e(f"v_lshl_add_u32 v{v_t+1}, v{v_t+2}, 5, v{v_t+1}")
    a.e(f"v_and_b32 v{v_t+2}, 1, v0"); a.e(f"v_lshl_add_u32 v{v_t+1}, v{v_t+2}, 4, v{v_t+1}")
    a.e(f"v_bfe_u32 v{v_t+2}, v0, 4, 1"); a.e(f"v_lshl_add_u32 v{v_t+1}, v{v_t+2}, 3, v{v_t+1}")
    a.e(f"s_lshl_b32 s{s_t0}, s{s_fh}, 2"); a.e(f"s_lshl_b32 s{s_t1}, s{s_tbp}, 1"); a.e(f"s_add_u32 s{s_t0}, s{s_t0}, s{s_t1}")
    for lt in range(4):
        a.e(f"s_xor_b32 s{s_t1}, s{s_t0}, {lt}"); a.e(f"s_lshl_b32 s{s_t1}, s{s_t1}, 5")
        a.e(f"v_xor_b32 v{v_wa+lt}, s{s_t1}, v{v_t+1}")
        a.e(f"v_add_u32 v{v_wa+lt}, {RB+XB}, v{v_wa+lt}")
    for i in range(128): a.e(f"v_mov_b32 v{acc+i}, 0")
    a.e("s_waitcnt lgkmcnt(0)")
    srd(a, SRD_WS, S_WS, WS_BYTES)
    if TOUCH:
        a.e(f"v_lshlrev_b32 v{v_t+2}, 7, v0")
        a.e(f"s_and_b32 s{s_t0}, s2, 3"); a.e(f"s_lshl_b32 s{s_t0}, s{s_t0}, 19"); a.e(f"s_add_u32 s{s_t0}, s{s_t0}, {OFF_H}")
        a.e(f"s_lshr_b32 s{s_t1}, s2, 3"); a.e(f"s_lshl_b32 s{s_t1}, s{s_t1}, 2"); a.e(f"s_add_u32 s{s_t1}, s{s_t1}, s{s_w}")
        touch_contig(a, SRD_WS, ('s', s_t0), 40, s_t1, v_t+2, v_dum, s_t2)
    LG = Cnt(a, "lgkmcnt", 15)
    def reads(s, t):
        p = t & 1; out = []
        for tbl in range(2):
            out.append(lambda tbl=tbl: LG.op(f"ds_read_b128 {vr(fxr+8*p+4*tbl,4)}, v{v_xa} offset:{tbl*4096+t*1024}", ("x", s, t, tbl)))
        for lt in range(4):
            for k in range(2):
                out.append(lambda lt=lt, k=k: LG.op(f"ds_read_b64_tr_b16 {vr(fw+16*p+4*lt+2*k,2)}, v{v_wa+lt} offset:{t*4096+k*1024}", ("w", s, t, lt)))
        return [out[0], out[2], out[3], out[1]] + out[4:]
    def step(s, t, nxt):
        p = t & 1
        mf = []
        for lt in range(4):
            for tbl in range(2):
                def m(lt=lt, tbl=tbl):
                    LG.need(("x", s, t, tbl), ("w", s, t, lt))
                    d = acc + 16*(lt*2+tbl)
                    a.e(f"{MF} {vr(d,16)}, {vr(fw+16*p+4*lt,4)}, {vr(fxr+8*p+4*tbl,4)}, {vr(d,16)}")
                mf.append(m)
        if t < 3:
            fill = nxt
            k = 0
            for i, m in enumerate(mf):
                m()
                upto = (len(fill) * (i + 1) + 7) // 8
                while k < upto: fill[k](); k += 1
        else:
            for i in range(3): mf[i]()
            if nxt is not None:
                LG.drain()
                a.e("s_barrier")
                delta = SLOT if (s + 1) % NST != 0 else -(NST - 1) * SLOT
                a.e(f"v_add_u32 v{v_xa}, {delta & 0xffffffff:#x}, v{v_xa}")
                for lt in range(4): a.e(f"v_add_u32 v{v_wa+lt}, {delta & 0xffffffff:#x}, v{v_wa+lt}")
            k = 0; fill = nxt or []
            for i in range(3, 8):
                mf[i]()
                upto = (len(fill) * (i - 2) + 4) // 5
                while k < upto: fill[k](); k += 1
    T(1)
    a.e("s_barrier")
    T(2)
    for f in reads(0, 0): f()
    for s in range(NSTG):
        for t in range(4):
            if t < 3: nxt = reads(s, t + 1)
            else: nxt = reads(s + 1, 0) if s + 1 < NSTG else None
            step(s, t, nxt)
    T(3)
    a.e("s_barrier")
    T(4)
    csr = C(16, 4)
    a.e(f"v_bfe_u32 v{v_t}, v0, 3, 1"); a.e(f"v_lshlrev_b32 v{v_t}, 7, v{v_t}")
    a.e(f"v_bfe_u32 v{v_t+1}, v0, 2, 1"); a.e(f"v_lshl_add_u32 v{v_t}, v{v_t+1}, 3, v{v_t}")
    a.e(f"v_bfe_u32 v{v_t+1}, v0, 4, 1"); a.e(f"v_lshl_add_u32 v{v_t}, v{v_t+1}, 2, v{v_t}")
    a.e(f"v_and_b32 v{v_t+1}, 3, v0"); a.e(f"v_add_u32 v{v_t}, v{v_t}, v{v_t+1}"); a.e(f"v_lshlrev_b32 v{v_t}, 4, v{v_t}")
    a.e(f"s_lshl_b32 s{s_t0}, s{s_fh}, 2"); a.e(f"s_lshl_b32 s{s_t1}, s{s_tbp}, 1"); a.e(f"s_add_u32 s{s_t0}, s{s_t0}, s{s_t1}")
    for lt in range(4):
        a.e(f"s_xor_b32 s{s_t1}, s{s_t0}, {lt}"); a.e(f"s_lshl_b32 s{s_t1}, s{s_t1}, 8"); a.e(f"v_add_u32 v{v_t+1}, s{s_t1}, v{v_t}")
        a.e(f"ds_read_b128 {vr(csr+4*lt,4)}, v{v_t+1} offset:{CSX}")
    a.e(f"v_and_b32 v{v_t}, 31, v0"); a.e(f"v_lshlrev_b32 v{v_t}, 3, v{v_t}")
    a.e(f"s_lshl_b32 s{s_t1}, s{s_tbp}, 9"); a.e(f"v_add_u32 v{v_t}, s{s_t1}, v{v_t}")
    a.e(f"ds_read_b64 {vr(st,2)}, v{v_t} offset:{STAT}")
    a.e(f"ds_read_b64 {vr(st+2,2)}, v{v_t} offset:{STAT+256}")
    a.e("v_cmp_gt_u32 vcc, 32, v0")
    for lt in range(4):
        a.e(f"v_mov_b32 v{auw+4*lt+2}, 0"); a.e(f"v_mov_b32 v{auw+4*lt+3}, 0")
    a.e(f"v_mov_b32 v{aux+2}, 0"); a.e(f"v_mov_b32 v{aux+3}, 0")
    a.e("s_waitcnt lgkmcnt(0)")
    for lt in range(4):
        src = csr + 4*lt
        a.e(f"v_add_f32 v{src}, v{src}, v{src+1}"); a.e(f"v_add_f32 v{src+2}, v{src+2}, v{src+3}"); a.e(f"v_add_f32 v{src}, v{src}, v{src+2}")
        a.e(f"v_cndmask_b32 v{src}, 0, v{src}, vcc")
        split_aug_w(a, src, auw+4*lt, v_t+4)
    for tbl in range(2):
        a.e(f"v_cndmask_b32 v{v_t+5}, 0, v{st+2*tbl}, vcc")
        a.e(f"v_sub_f32 v{v_t+5}, 0, v{v_t+5}")
        split_aug_x(a, v_t+5, aux, v_t+4)
        a.e("s_nop 1")
        for lt in range(4):
            d = acc + 16*(lt*2+tbl)
            a.e(f"{MF} {vr(d,16)}, {vr(auw+4*lt,4)}, {vr(aux,4)}, {vr(d,16)}")
        if tbl == 0: a.e("s_nop 3")
    c1 = st; r0 = st + 1
    cc = C(4, 2)
    for tbl in range(2):
        a.e(f"v_mul_f32 v{cc+2*tbl}, {fx(-LOG2E)}, v{st+2*tbl+1}")
        a.e(f"v_mov_b32 v{cc+2*tbl+1}, v{st+2*tbl+1}")
    s_hb = 46
    a.e(f"s_lshl_b32 s{s_hb}, s{s_rb}, 2"); a.e(f"s_lshl_b32 s{s_t1}, s{s_tbp}, 1"); a.e(f"s_add_u32 s{s_hb}, s{s_hb}, s{s_t1}")
    a.e(f"s_mul_i32 s{s_hb}, s{s_hb}, 112"); a.e(f"s_lshl_b32 s{s_t1}, s{s_cg}, 3"); a.e(f"s_add_u32 s{s_hb}, s{s_hb}, s{s_t1}")
    a.e(f"s_lshl_b32 s{s_hb}, s{s_hb}, 10"); a.e(f"s_add_u32 s{s_hb}, s{s_hb}, {OFF_HH}")
    a.e("s_nop 7")
    T(5)
    for tbl in range(2):
        for lt in range(4):
            d = acc + 16*(lt*2+tbl)
            pk = P + 4*((tbl*4+lt) & 1)
            gp = [d, d+2, d+8, d+10]; up = [d+4, d+6, d+12, d+14]
            for g in gp: a.e(f"v_pk_mul_f32 {vr(g,2)}, {vr(g,2)}, {vr(cc+2*tbl,2)} op_sel_hi:[1,0]")
            for g in gp:
                a.e(f"v_exp_f32 v{g}, v{g}"); a.e(f"v_exp_f32 v{g+1}, v{g+1}")
            for u in up: a.e(f"v_pk_mul_f32 {vr(u,2)}, {vr(u,2)}, {vr(cc+2*tbl,2)} op_sel:[0,1]")
            for g in gp: a.e(f"v_pk_add_f32 {vr(g,2)}, {vr(g,2)}, 1.0 op_sel_hi:[1,0]")
            for g in gp:
                a.e(f"v_rcp_f32 v{g}, v{g}"); a.e(f"v_rcp_f32 v{g+1}, v{g+1}")
            a.e("s_nop 0")
            for g, u in zip(gp, up): a.e(f"v_pk_mul_f32 {vr(g,2)}, {vr(g,2)}, {vr(u,2)}")
            for i, g in enumerate(gp): a.e(f"v_cvt_pk_bf16_f32 v{pk+i}, v{g}, v{g+1}")
            a.e(f"s_xor_b32 s{s_t1}, s{s_t0}, {lt}"); a.e(f"s_lshl_b32 s{s_t1}, s{s_t1}, 10")
            a.e(f"s_add_u32 s{s_t1}, s{s_t1}, s{s_hb}")
            if tbl: a.e(f"s_add_u32 s{s_t1}, s{s_t1}, {112*1024}")
            a.e(f"buffer_store_dwordx4 {vr(pk,4)}, v{v_l16}, s[{SRD_WS}:{SRD_WS+3}], s{s_t1} offen{STPOL}")
    if dbg:
        T(6); a.e("s_waitcnt vmcnt(0)"); T(7); T.real(14); T.dump(S_WS, s_w, v_t)
    a.lab("K3_END")
    a.e("s_endpgm")
    nv = max(H.hi, C.hi)
    kernel_desc(a, name, nv, 102 if dbg else 64, (nv + 3) // 4 * 4)
    return (name, NWG, 512, LDS)
```

```python
from glib import *

def gen_k4(a, dbg=False, AHEAD=2, TOUCH=False, FIRST=2):
    name = "k4_kernel"
    T = Stamps(a, dbg, 3)
    XB = 16384; SLOT = 32768; NST = 4; NSTG = 14
    LDS = NST * SLOT
    kernel_begin(a, name)
    S_WD, S_OUT, S_WS = 4, 6, 14
    SRD_W, SRD_O, SRD_WS = 16, 20, 28
    s_w, s_rb, s_cb, s_rot, s_j = 36, 37, 38, 39, 50
    s_t0, s_t1, s_t2, s_t3 = 40, 41, 42, 43
    a.e("s_cmp_ge_u32 s2, 256")
    a.e("s_cbranch_scc1 K4_END")
    T.real(15); T(0)
    a.e("s_load_dwordx4 s[4:7], s[0:1], 56")
    a.e("s_load_dwordx2 s[14:15], s[0:1], 80")
    a.e("v_lshrrev_b32 v1, 6, v0")
    a.e("v_and_b32 v0, 63, v0")
    a.e(f"v_readfirstlane_b32 s{s_w}, v1")
    a.e(f"s_and_b32 s{s_t0}, s2, 7"); a.e(f"s_lshr_b32 s{s_t1}, s2, 3")
    a.e(f"s_lshl_b32 s{s_rb}, s{s_t0}, 2"); a.e(f"s_and_b32 s{s_t2}, s{s_t1}, 3"); a.e(f"s_add_u32 s{s_rb}, s{s_rb}, s{s_t2}")
    a.e(f"s_lshr_b32 s{s_cb}, s{s_t1}, 2")
    a.e(f"s_and_b32 s{s_rot}, s{s_t1}, 3"); a.e(f"s_mul_i32 s{s_rot}, s{s_rot}, 2"); a.e(f"s_add_u32 s{s_rot}, s{s_rot}, s{s_cb}")
    a.e(f"s_and_b32 s{s_j}, s{s_w}, 3")
    a.e(f"s_cmp_ge_u32 s{s_w}, 4")
    a.e("s_cbranch_scc0 K4_CONS")
    H = VAlloc(2)
    v_l16 = H(1); v_wd = H(1); v_t = H(4)
    a.e(f"v_lshlrev_b32 v{v_l16}, 4, v0")
    a.e(f"v_lshrrev_b32 v{v_t}, 3, v0"); a.e(f"v_lshlrev_b32 v{v_t}, 10, v{v_t}")
    a.e(f"v_bfe_u32 v{v_t+1}, v0, 4, 1"); a.e(f"v_lshlrev_b32 v{v_t+1}, 2, v{v_t+1}")
    a.e(f"v_and_b32 v{v_t+2}, 7, v0"); a.e(f"v_xor_b32 v{v_t+1}, v{v_t+1}, v{v_t+2}")
    a.e(f"v_lshl_add_u32 v{v_wd}, v{v_t+1}, 4, v{v_t}")
    a.e("s_waitcnt lgkmcnt(0)")
    srd(a, SRD_WS, S_WS, WS_BYTES); srd(a, SRD_W, S_WD, 1792*1024)
    VM = Cnt(a, "vmcnt", 63)
    s_xb, s_wb, s_xl, s_wl, s_kst, s_xo, s_wo = 44, 45, 46, 47, 48, 49, 51
    a.e(f"s_and_b32 s{s_t0}, s{s_j}, 1"); a.e(f"s_lshr_b32 s{s_t1}, s{s_j}, 1")
    a.e(f"s_lshl_b32 s{s_xb}, s{s_rb}, 1"); a.e(f"s_add_u32 s{s_xb}, s{s_xb}, s{s_t0}")
    a.e(f"s_mul_i32 s{s_xb}, s{s_xb}, {112*1024}"); a.e(f"s_lshl_b32 s{s_t2}, s{s_t1}, 12"); a.e(f"s_add_u32 s{s_xb}, s{s_xb}, s{s_t2}")
    a.e(f"s_add_u32 s{s_xb}, s{s_xb}, {OFF_HH}")
    a.e(f"s_lshl_b32 s{s_xl}, s{s_t0}, 13"); a.e(f"s_add_u32 s{s_xl}, s{s_xl}, s{s_t2}")
    a.e(f"s_lshl_b32 s{s_wb}, s{s_j}, 15"); a.e(f"s_lshl_b32 s{s_t2}, s{s_cb}, 7"); a.e(f"s_add_u32 s{s_wb}, s{s_wb}, s{s_t2}")
    a.e(f"s_lshl_b32 s{s_wl}, s{s_j}, 12"); a.e(f"s_add_u32 s{s_wl}, s{s_wl}, {XB}")
    a.e(f"s_mov_b32 s{s_kst}, s{s_rot}")
    def issue(st, slot):
        a.e(f"s_lshl_b32 s{s_xo}, s{s_kst}, 13"); a.e(f"s_add_u32 s{s_xo}, s{s_xo}, s{s_xb}")
        a.e(f"s_lshl_b32 s{s_wo}, s{s_kst}, 17"); a.e(f"s_add_u32 s{s_wo}, s{s_wo}, s{s_wb}")
        a.e(f"s_add_u32 m0, s{s_xl}, {slot*SLOT}")
        a.e(f"s_add_u32 s{s_kst}, s{s_kst}, 1")
        for i in range(4):
            VM.op(f"buffer_load_dwordx4 v{v_l16}, s[{SRD_WS}:{SRD_WS+3}], s{s_xo} offen offset:{i*1024} lds", ("st", st))
        a.e(f"s_cmp_eq_u32 s{s_kst}, {NSTG}"); a.e(f"s_cselect_b32 s{s_kst}, 0, s{s_kst}")
        for i in range(4):
            a.e(f"s_add_u32 m0, s{s_wl}, {slot*SLOT+i*1024}")
            a.e("s_nop 0")
            VM.op(f"buffer_load_dwordx4 v{v_wd}, s[{SRD_W}:{SRD_W+3}], s{s_wo} offen lds", ("st", st))
            if i < 3: a.e(f"s_add_u32 s{s_wo}, s{s_wo}, 8192")
    nxt = 0
    for s in range(FIRST):
        issue(nxt, nxt % NST); nxt += 1
    T(1)
    for s in range(NSTG):
        VM.need(("st", s))
        a.e("s_barrier")
        if s < 8: T(2+s)
        lim = min(NSTG - 1, s - 1 + NST, s + AHEAD)
        while nxt <= lim:
            issue(nxt, nxt % NST); nxt += 1
    T(10); T.real(14); T.dump(S_WS, s_w, v_t)
    a.e("s_endpgm")
    a.lab("K4_CONS")
    C = VAlloc(2)
    acc = C(16, 4); fxr = C(16, 4); fw = C(16, 4)
    v_xa = C(1); v_wa = C(1); v_l16 = C(1); v_t = C(8, 4); v_h = C(8, 4)
    s_tb, s_nb = 44, 45
    a.e(f"s_and_b32 s{s_tb}, s{s_w}, 1"); a.e(f"s_lshr_b32 s{s_nb}, s{s_w}, 1")
    a.e(f"v_lshlrev_b32 v{v_l16}, 4, v0")
    a.e(f"s_lshl_b32 s{s_t0}, s{s_tb}, 13"); a.e(f"v_add_u32 v{v_xa}, s{s_t0}, v{v_l16}")
    a.e(f"v_lshrrev_b32 v{v_t}, 5, v0"); a.e(f"v_lshlrev_b32 v{v_t}, 3, v{v_t}")
    a.e(f"v_bfe_u32 v{v_t+1}, v0, 2, 2"); a.e(f"v_add_u32 v{v_t}, v{v_t}, v{v_t+1}"); a.e(f"v_lshlrev_b32 v{v_t}, 7, v{v_t}")
    a.e(f"v_bfe_u32 v{v_t+1}, v0, 3, 1"); a.e(f"v_lshl_add_u32 v{v_t}, v{v_t+1}, 6, v{v_t}")
    a.e(f"v_bfe_u32 v{v_t+1}, v0, 4, 1"); a.e(f"v_lshl_add_u32 v{v_t}, v{v_t+1}, 5, v{v_t}")
    a.e(f"v_and_b32 v{v_t+1}, 1, v0"); a.e(f"v_lshl_add_u32 v{v_t}, v{v_t+1}, 4, v{v_t}")
    a.e(f"v_bfe_u32 v{v_t+1}, v0, 1, 1"); a.e(f"v_lshl_add_u32 v{v_t}, v{v_t+1}, 3, v{v_t}")
    a.e(f"s_lshl_b32 s{s_t0}, s{s_nb}, 6"); a.e(f"v_xor_b32 v{v_wa}, s{s_t0}, v{v_t}"); a.e(f"v_add_u32 v{v_wa}, {XB}, v{v_wa}")
    for i in range(16): a.e(f"v_mov_b32 v{acc+i}, 0")
    a.e("s_waitcnt lgkmcnt(0)")
    srd(a, SRD_WS, S_WS, WS_BYTES); srd(a, SRD_O, S_OUT, 2048*1024)
    if TOUCH:
        a.e(f"v_lshlrev_b32 v{v_t+2}, 7, v0")
        a.e(f"s_and_b32 s{s_t0}, s2, 7"); a.e(f"s_mul_i32 s{s_t0}, s{s_t0}, {8*112*1024}"); a.e(f"s_add_u32 s{s_t0}, s{s_t0}, {OFF_HH}")
        a.e(f"s_lshr_b32 s{s_t1}, s2, 3"); a.e(f"s_lshl_b32 s{s_t1}, s{s_t1}, 2"); a.e(f"s_add_u32 s{s_t1}, s{s_t1}, s{s_w}")
        touch_contig(a, SRD_WS, ('s', s_t0), 56, s_t1, v_t+2, v_t+3, s_t2)
    a.e(f"s_lshl_b32 s{s_t0}, s{s_rb}, 1"); a.e(f"s_add_u32 s{s_t0}, s{s_t0}, s{s_tb}")
    a.e(f"s_lshl_b32 s46, s{s_cb}, 1"); a.e(f"s_add_u32 s46, s46, s{s_nb}")
    a.e(f"s_lshl_b32 s{s_t1}, s{s_t0}, 5"); a.e(f"s_lshl_b32 s{s_t2}, s46, 1"); a.e(f"s_add_u32 s{s_t1}, s{s_t1}, s{s_t2}")
    a.e(f"s_lshl_b32 s{s_t1}, s{s_t1}, 10"); a.e(f"s_add_u32 s{s_t1}, s{s_t1}, {OFF_H}")
    for i in range(2):
        a.e(f"buffer_load_dwordx4 {vr(v_h+4*i,4)}, v{v_l16}, s[{SRD_WS}:{SRD_WS+3}], s{s_t1} offen offset:{i*1024}")
    a.e(f"s_lshl_b32 s47, s{s_t0}, 15"); a.e(f"s_lshl_b32 s{s_t2}, s46, 6"); a.e(f"s_add_u32 s47, s47, s{s_t2}")
    LG = Cnt(a, "lgkmcnt", 15)
    NSTEP = NSTG * 8
    DEPTH = 3
    def rd(g):
        s, t = divmod(g, 8); p = g & 3
        LG.op(f"ds_read_b128 {vr(fxr+4*p,4)}, v{v_xa} offset:{t*1024}", ("f", g))
        LG.op(f"ds_read_b64_tr_b16 {vr(fw+4*p,2)}, v{v_wa} offset:{t*2048}", ("f", g))
        LG.op(f"ds_read_b64_tr_b16 {vr(fw+4*p+2,2)}, v{v_wa} offset:{t*2048+512}", ("f", g))
    def cross(s):
        LG.drain()
        a.e("s_barrier")
        delta = SLOT if s % NST != 0 else -(NST - 1) * SLOT
        a.e(f"v_add_u32 v{v_xa}, {delta & 0xffffffff:#x}, v{v_xa}"); a.e(f"v_add_u32 v{v_wa}, {delta & 0xffffffff:#x}, v{v_wa}")
    T(1)
    a.e("s_barrier")
    T(2)
    for g in range(DEPTH): rd(g)
    for g in range(NSTEP):
        n = g + DEPTH
        if n < NSTEP:
            if n % 8 == 0: cross(n // 8)
            rd(n)
        LG.need(("f", g))
        p = g & 3
        a.e(f"{MF} {vr(acc,16)}, {vr(fw+4*p,4)}, {vr(fxr+4*p,4)}, {vr(acc,16)}")
    T(3)
    a.e("s_waitcnt vmcnt(0)")
    a.e("s_nop 7"); a.e("s_nop 3")
    for i in range(8):
        a.e(f"v_lshlrev_b32 v{v_t}, 16, v{v_h+i}"); a.e(f"v_and_b32 v{v_t+1}, 0xffff0000, v{v_h+i}")
        a.e(f"v_add_f32 v{acc+2*i}, v{acc+2*i}, v{v_t}"); a.e(f"v_add_f32 v{acc+2*i+1}, v{acc+2*i+1}, v{v_t+1}")
        a.e(f"v_cvt_pk_bf16_f32 v{v_h+i}, v{acc+2*i}, v{acc+2*i+1}")
    a.e(f"v_and_b32 v{v_t}, 31, v0"); a.e(f"v_lshlrev_b32 v{v_t}, 10, v{v_t}")
    a.e(f"v_lshrrev_b32 v{v_t+1}, 5, v0"); a.e(f"v_lshl_add_u32 v{v_t}, v{v_t+1}, 4, v{v_t}")
    for i in range(2):
        a.e(f"buffer_store_dwordx4 {vr(v_h+4*i,4)}, v{v_t}, s[{SRD_O}:{SRD_O+3}], s47 offen offset:{32*i}")
    if dbg:
        T(4); a.e("s_waitcnt vmcnt(0)"); T(5); T.real(14); T.dump(S_WS, s_w, v_t+2)
    a.lab("K4_END")
    a.e("s_endpgm")
    a.lab("ALL_END")
    nv = max(H.hi, C.hi)
    kernel_desc(a, name, nv, 102 if dbg else 64, (nv + 3) // 4 * 4)
    return (name, 256, 512, LDS)
```

```python
import sys
sys.path.insert(0, "dev")
import importlib, gen2, k1, k2, k3, k4
def mk(name, k1kw={}, k2kw={}, k3kw={}, k4kw={}):
    open(f"cdna_kernels/{name}.s","w").write(gen2.build([lambda b: k1.gen_k1(b, False, **k1kw), lambda b: k2.gen_k2(b, False, **k2kw), lambda b: k3.gen_k3(b, False, **k3kw), lambda b: k4.gen_k4(b, False, **k4kw)]))
if __name__ == "__main__":
    mk("v_b0")
    mk("v_b1", k1kw=dict(TLBW=64))
    mk("v_b2", k3kw=dict(STPOL=""))
    mk("v_b3", k3kw=dict(STPOL=" nt"))
```

```python
import sys
from glib import *

OFF_FLAG = 0x7C0000
OFF_NONCE = 0x7F0000
KNAME = NAME + "_kernel"

S_X, S_WQKV, S_WPHI, S_WO, S_WG, S_WU, S_WD, S_OUT, S_DBG, S_WS = 4, 6, 8, 10, 12, 14, 16, 18, 20, 22
s_w, s_j, s_ep = 24, 25, 26
SRD_WS, SRD_B, SRD_C, SRD_D = 28, 32, 36, 40
s_t0, s_t1, s_t2, s_t3 = 44, 45, 46, 47
s_c0 = 48
WSS = f"s[{SRD_WS}:{SRD_WS+3}]"
SC1 = " sc1"

def srd_s(d): return f"s[{d}:{d+3}]"

def signal(a, ph, vt, tag, pub=True):
    a.e("s_waitcnt vmcnt(0)")
    a.e("s_barrier")
    if not pub: return
    a.e(f"s_cmp_eq_u32 s{s_w}, 0"); a.e(f"s_cbranch_scc0 SIG{tag}")
    a.e(f"s_lshl_b32 s{s_t0}, s2, 7"); a.e(f"s_add_u32 s{s_t0}, s{s_t0}, {OFF_FLAG + ph*32768}")
    a.e(f"v_mov_b32 v{vt}, 0"); a.e(f"v_mov_b32 v{vt+1}, s{s_ep}")
    a.e("v_cmp_eq_u32 vcc, 0, v0"); a.e(f"s_and_saveexec_b64 s[{s_c0}:{s_c0+1}], vcc")
    a.e(f"buffer_store_dword v{vt+1}, v{vt}, {WSS}, s{s_t0} offen sc1")
    a.e(f"s_mov_b64 exec, s[{s_c0}:{s_c0+1}]")
    a.lab(f"SIG{tag}")

def waitflags(a, ph, vt, tag, lane_wg, nper=1, nlanes=64, poller=True):
    if not poller:
        a.e("s_barrier"); return
    a.e(f"s_cmp_eq_u32 s{s_w}, 0"); a.e(f"s_cbranch_scc0 WAI{tag}")
    lane_wg(a, vt)
    a.e(f"v_lshlrev_b32 v{vt}, 7, v{vt}")
    a.e(f"s_mov_b32 s{s_t0}, {OFF_FLAG + ph*32768}")
    a.e(f"s_mov_b32 s{s_t1}, 0")
    a.lab(f"POL{tag}")
    for k in range(nper):
        if k: a.e(f"s_add_u32 s{s_t2}, s{s_t0}, {k*8192}")
        a.e(f"buffer_load_dword v{vt+1+k}, v{vt}, {WSS}, s{s_t2 if k else s_t0} offen sc1")
    a.e("s_waitcnt vmcnt(0)")
    a.e(f"v_cmp_ne_u32 vcc, s{s_ep}, v{vt+1}")
    for k in range(1, nper):
        a.e(f"v_cmp_ne_u32 s[{s_c0}:{s_c0+1}], s{s_ep}, v{vt+1+k}"); a.e("s_nop 1"); a.e(f"s_or_b64 vcc, vcc, s[{s_c0}:{s_c0+1}]")
    a.e("s_nop 1")
    if nlanes < 64: a.e(f"s_and_b64 vcc, vcc, {(1 << nlanes) - 1:#x}")
    a.e(f"s_add_u32 s{s_t1}, s{s_t1}, 1")
    a.e("s_cmp_eq_u64 vcc, 0"); a.e(f"s_cbranch_scc1 WAI{tag}")
    a.e(f"s_cmp_lt_u32 s{s_t1}, 40000"); a.e(f"s_cbranch_scc1 POL{tag}")
    a.lab(f"WAI{tag}")
    a.e("s_barrier")

def w_tile_map(a, tmp, colm):
    pass

def softmax_block(a, v_wa, v_x0, v_p, v_en, v_pk, v_tmp, v_c):
    a.e("s_nop 1")
    a.e(f"{MF} {vr(v_p,16)}, {vr(v_wa,4)}, {vr(v_x0,4)}, 0")
    a.e(f"{MF} {vr(v_p,16)}, {vr(v_wa+4,4)}, {vr(v_x0+4,4)}, {vr(v_p,16)}")
    a.e("s_nop 15")
    mx, mn = v_tmp, v_tmp + 1
    a.e(f"v_max3_f32 v{mx}, v{v_p}, v{v_p+1}, v{v_p+2}"); a.e(f"v_min3_f32 v{mn}, v{v_p}, v{v_p+1}, v{v_p+2}")
    for i in range(3, 15, 2):
        a.e(f"v_max3_f32 v{mx}, v{mx}, v{v_p+i}, v{v_p+i+1}"); a.e(f"v_min3_f32 v{mn}, v{mn}, v{v_p+i}, v{v_p+i+1}")
    a.e(f"v_max_f32 v{mx}, v{mx}, v{v_p+15}"); a.e(f"v_min_f32 v{mn}, v{mn}, v{v_p+15}")
    a.e(f"v_mul_f32 v{mx}, v{v_c}, v{mx}"); a.e(f"v_mul_f32 v{mn}, v{v_c}, v{mn}")
    for i in range(16):
        a.e(f"v_fma_f32 v{v_en+i}, -v{v_p+i}, v{v_c}, v{mn}")
        a.e(f"v_fma_f32 v{v_p+i}, v{v_p+i}, v{v_c}, -v{mx}")
    for i in range(16):
        a.e(f"v_exp_f32 v{v_p+i}, v{v_p+i}"); a.e(f"v_exp_f32 v{v_en+i}, v{v_en+i}")
    sp, sn = v_tmp + 2, v_tmp + 4
    a.e(f"v_pk_add_f32 {vr(sp,2)}, {vr(v_p,2)}, {vr(v_p+2,2)}"); a.e(f"v_pk_add_f32 {vr(sn,2)}, {vr(v_en,2)}, {vr(v_en+2,2)}")
    for i in range(4, 16, 2):
        a.e(f"v_pk_add_f32 {vr(sp,2)}, {vr(sp,2)}, {vr(v_p+i,2)}"); a.e(f"v_pk_add_f32 {vr(sn,2)}, {vr(sn,2)}, {vr(v_en+i,2)}")
    a.e(f"v_add_f32 v{sp}, v{sp}, v{sp+1}"); a.e(f"v_add_f32 v{sn}, v{sn}, v{sn+1}")
    a.e(f"v_rcp_f32 v{sp}, v{sp}"); a.e(f"v_rcp_f32 v{sn}, v{sn}")
    a.e("s_nop 0")
    for i in range(0, 16, 2):
        a.e(f"v_pk_mul_f32 {vr(v_p+i,2)}, {vr(v_p+i,2)}, {vr(sp,2)} op_sel_hi:[1,0]")
        a.e(f"v_pk_mul_f32 {vr(v_en+i,2)}, {vr(v_en+i,2)}, {vr(sn,2)} op_sel_hi:[1,0]")
    for i in range(8):
        a.e(f"v_cvt_pk_bf16_f32 v{v_pk+i}, v{v_p+2*i}, v{v_p+2*i+1}"); a.e(f"v_cvt_pk_bf16_f32 v{v_pk+8+i}, v{v_en+2*i}, v{v_en+2*i+1}")

def finish_stats(a, s, q, eps=1e-5):
    a.e(f"v_mul_f32 v{s}, {fx(1/512)}, v{s}"); a.e(f"v_mul_f32 v{q}, {fx(1/512)}, v{q}")
    a.e(f"v_fma_f32 v{q}, -v{s}, v{s}, v{q}")
    a.e(f"v_max_f32 v{q}, 0, v{q}"); a.e(f"v_add_f32 v{q}, {fx(eps)}, v{q}")
    a.e(f"v_rsq_f32 v{q}, v{q}")
    a.e("s_nop 0")

def phase1(a, dbg, opt):
    T = Stamps(a, dbg, 0)
    WPHI = 0; ZERO = 2048
    XR = 8192; WR = XR + 65536; WSLOT = 24576; NST = 3; NSTG = 8
    QX = XR; PHIK = XR + 8192; VV = XR + 8192 + 16384
    SRD_X, SRD_W, SRD_P, SRD_DB = SRD_B, SRD_C, SRD_D, 52
    s_rb, s_hq, s_rot, s_role = 56, 57, 58, 59
    T.real(15); T(0)
    a.e(f"s_and_b32 s{s_t0}, s2, 7"); a.e(f"s_lshr_b32 s{s_t1}, s2, 3")
    a.e(f"s_and_b32 s{s_rb}, s{s_t0}, 3"); a.e(f"s_lshl_b32 s{s_rb}, s{s_rb}, 3"); a.e(f"s_and_b32 s{s_t2}, s{s_t1}, 7"); a.e(f"s_add_u32 s{s_rb}, s{s_rb}, s{s_t2}")
    a.e(f"s_lshr_b32 s{s_hq}, s{s_t0}, 2"); a.e(f"s_lshl_b32 s{s_hq}, s{s_hq}, 2"); a.e(f"s_lshr_b32 s{s_t3}, s{s_t1}, 3"); a.e(f"s_add_u32 s{s_hq}, s{s_hq}, s{s_t3}")
    a.e(f"s_and_b32 s{s_rot}, s{s_t2}, {opt.get('rotmask', 7)}")
    V = VAlloc(2)
    v_dum = V(2, 2); v_tmp = V(8, 2); v_c = V(1); v_wa = V(8, 4); v_x0 = V(8, 4); v_p = V(16, 4); v_en = V(16, 4); v_pk = V(16, 4)
    common_end = V.mark()
    L = VAlloc(common_end)
    v_xl = L(32, 4); v_xu = L(64, 4); v_s = L(2, 2); v_q = L(2, 2); v_lt = L(6, 2)
    ln_end = L.mark()
    def wphi_frags(tmp):
        a.e(f"v_lshrrev_b32 v{tmp}, 5, v0")
        a.e(f"v_bfe_u32 v{tmp+1}, v0, 2, 2"); a.e(f"v_lshlrev_b32 v{tmp+1}, 5, v{tmp+1}")
        a.e(f"v_lshl_add_u32 v{tmp+1}, v{tmp}, 9, v{tmp+1}")
        a.e(f"v_bfe_u32 v{tmp+2}, v0, 1, 1"); a.e(f"v_bfe_u32 v{tmp+3}, v0, 4, 1")
        a.e(f"v_lshl_add_u32 v{tmp+2}, v{tmp+3}, 1, v{tmp+2}")
        a.e(f"v_lshl_add_u32 v{tmp+1}, v{tmp+2}, 3, v{tmp+1}")
        a.e(f"s_lshr_b32 s{s_t2}, s{s_j}, 1"); a.e(f"s_lshl_b32 s{s_t2}, s{s_t2}, 10"); a.e(f"s_add_u32 s{s_t2}, s{s_t2}, {WPHI}")
        a.e(f"v_add_u32 v{tmp+1}, s{s_t2}, v{tmp+1}")
        a.e(f"v_and_b32 v{tmp+2}, 1, v0")
        a.e(f"v_cmp_eq_u32 vcc, v{tmp+2}, v{tmp}")
        a.e(f"v_mov_b32 v{tmp+3}, {ZERO}")
        a.e("s_nop 0")
        for k in range(4):
            off = (8*(k>>1) + 4*(k&1)) * 32
            a.e(f"v_add_u32 v{tmp+2}, {off}, v{tmp+1}")
            a.e(f"v_cndmask_b32 v{tmp+2}, v{tmp+3}, v{tmp+2}, vcc")
            a.e(f"ds_read_b64_tr_b16 {vr(v_wa+4*(k>>1)+2*(k&1),2)}, v{tmp+2}")
    a.e(f"v_lshrrev_b32 v{v_lt}, 3, v0"); a.e(f"v_lshlrev_b32 v{v_lt}, 10, v{v_lt}")
    a.e(f"v_and_b32 v{v_lt+1}, 7, v0"); a.e(f"v_lshl_add_u32 v{v_lt}, v{v_lt+1}, 4, v{v_lt}")
    s_xo = 3
    a.e(f"s_lshl_b32 s{s_xo}, s{s_rb}, 3"); a.e(f"s_add_u32 s{s_xo}, s{s_xo}, s{s_w}"); a.e(f"s_lshl_b32 s{s_xo}, s{s_xo}, 13")
    a.e(f"v_mov_b32 v{v_c}, {fx(LOG2E)}")
    def x_loads():
        for s in range(8): a.e(f"buffer_load_dwordx4 {vr(v_xl+4*s,4)}, v{v_lt}, {srd_s(SRD_X)}, s{s_xo} offen offset:{s*128}")
    def layernorm(fill):
        fill = list(fill)
        def tick():
            if fill: fill.pop(0)()
        for i in range(32):
            a.e(f"v_lshlrev_b32 v{v_xu+2*i}, 16, v{v_xl+i}"); a.e(f"v_and_b32 v{v_xu+2*i+1}, 0xffff0000, v{v_xl+i}")
            if i == 0:
                a.e(f"v_pk_mul_f32 {vr(v_q,2)}, {vr(v_xu,2)}, {vr(v_xu,2)}"); a.e(f"v_mov_b32 v{v_s}, v{v_xu}"); a.e(f"v_mov_b32 v{v_s+1}, v{v_xu+1}")
            else:
                a.e(f"v_pk_add_f32 {vr(v_s,2)}, {vr(v_s,2)}, {vr(v_xu+2*i,2)}"); a.e(f"v_pk_fma_f32 {vr(v_q,2)}, {vr(v_xu+2*i,2)}, {vr(v_xu+2*i,2)}, {vr(v_q,2)}")
            if i % 4 == 3: tick()
        a.e(f"v_add_f32 v{v_s}, v{v_s}, v{v_s+1}"); a.e(f"v_add_f32 v{v_q}, v{v_q}, v{v_q+1}")
        for ctl in ("quad_perm:[1,0,3,2]", "quad_perm:[2,3,0,1]", "row_half_mirror"):
            a.e("s_nop 1")
            a.e(f"v_add_f32_dpp v{v_s}, v{v_s}, v{v_s} {ctl} row_mask:0xf bank_mask:0xf"); a.e(f"v_add_f32_dpp v{v_q}, v{v_q}, v{v_q} {ctl} row_mask:0xf bank_mask:0xf")
        finish_stats(a, v_s, v_q)
        a.e(f"v_lshrrev_b32 v{v_lt}, 4, v0"); a.e(f"s_lshl_b32 s{s_t0}, s{s_w}, 2"); a.e(f"v_add_u32 v{v_lt}, s{s_t0}, v{v_lt}")
        a.e(f"v_mul_f32 v{v_s}, v{v_s}, v{v_q}"); a.e(f"v_sub_f32 v{v_s}, 0, v{v_s}")
        a.e(f"v_xor_b32 v{v_lt}, v{v_lt}, v0"); a.e(f"v_and_b32 v{v_lt}, 7, v{v_lt}")
        a.e(f"v_lshrrev_b32 v{v_lt+1}, 3, v0"); a.e(f"v_lshlrev_b32 v{v_lt+1}, 7, v{v_lt+1}"); a.e(f"v_lshl_add_u32 v{v_lt}, v{v_lt}, 4, v{v_lt+1}")
        a.e(f"s_lshl_b32 s{s_t0}, s{s_w}, 10"); a.e(f"s_add_u32 s{s_t0}, s{s_t0}, {XR}"); a.e(f"v_add_u32 v{v_lt}, s{s_t0}, v{v_lt}")
        for s in range(8):
            for r in range(4):
                i = 4*s + r
                a.e(f"v_pk_fma_f32 {vr(v_xu+2*i,2)}, {vr(v_xu+2*i,2)}, {vr(v_q,2)}, {vr(v_s,2)} op_sel_hi:[1,0,0]")
                a.e(f"v_cvt_pk_bf16_f32 v{v_xl+i}, v{v_xu+2*i}, v{v_xu+2*i+1}")
            a.e(f"ds_write_b128 v{v_lt}, {vr(v_xl+4*s,4)} offset:{s*8192}")
            tick()
        while fill: tick()
    a.e(f"s_cmp_ge_u32 s{s_w}, 4")
    a.e("s_cbranch_scc0 P1_CONS")
    H = VAlloc(ln_end)
    v_wo = H(3); v_h0 = H(4); v_csl = H(16, 4); csa = H(16, 4)
    for i in range(3):
        a.e(f"v_lshrrev_b32 v{v_h0}, 3, v0"); a.e(f"v_add_u32 v{v_h0}, {8*i}, v{v_h0}")
        a.e(f"v_mul_u32_u24 v{v_h0+1}, 43, v{v_h0}"); a.e(f"v_lshrrev_b32 v{v_h0+1}, 7, v{v_h0+1}")
        a.e(f"v_mul_u32_u24 v{v_h0+2}, 3, v{v_h0+1}"); a.e(f"v_sub_u32 v{v_h0}, v{v_h0}, v{v_h0+2}")
        a.e(f"v_bfe_u32 v{v_h0+2}, v{v_h0+1}, 1, 1"); a.e(f"v_lshlrev_b32 v{v_h0+2}, 2, v{v_h0+2}")
        a.e(f"v_and_b32 v{v_h0+3}, 7, v0"); a.e(f"v_xor_b32 v{v_h0+2}, v{v_h0+2}, v{v_h0+3}")
        a.e(f"v_mul_u32_u24 v{v_h0+1}, 3072, v{v_h0+1}")
        a.e(f"v_lshl_add_u32 v{v_h0+1}, v{v_h0}, 10, v{v_h0+1}")
        a.e(f"v_lshl_add_u32 v{v_wo+i}, v{v_h0+2}, 4, v{v_h0+1}")
    s_wb, s_wl, s_kst, s_wo = 60, 61, 62, 63
    a.e(f"s_mul_i32 s{s_wb}, s{s_j}, {16*3072}"); a.e(f"s_lshl_b32 s{s_t2}, s{s_hq}, 7"); a.e(f"s_add_u32 s{s_wb}, s{s_wb}, s{s_t2}")
    a.e(f"s_mul_i32 s{s_wl}, s{s_j}, 6144"); a.e(f"s_add_u32 s{s_wl}, s{s_wl}, {WR}")
    a.e(f"s_mov_b32 s{s_kst}, s{s_rot}")
    a.e("s_waitcnt lgkmcnt(0)")
    srd(a, SRD_X, S_X, 2048*1024); srd(a, SRD_W, S_WQKV, 512*3072); srd(a, SRD_P, S_WPHI, 32*512); srd(a, SRD_WS, S_WS, WS_BYTES)
    VM = Cnt(a, "vmcnt", 63)
    def one(st, i, track=True):
        def f():
            slot = st % NST
            if i == 0:
                a.e(f"s_mul_i32 s{s_wo}, s{s_kst}, {64*3072}"); a.e(f"s_add_u32 s{s_wo}, s{s_wo}, s{s_wb}")
                a.e(f"s_add_u32 s{s_kst}, s{s_kst}, 1"); a.e(f"s_and_b32 s{s_kst}, s{s_kst}, 7")
            a.e(f"s_add_u32 m0, s{s_wl}, {slot*WSLOT+i*1024}")
            if i == 3: a.e(f"s_add_u32 s{s_wo}, s{s_wo}, {8*3072}")
            else: a.e("s_nop 0")
            VM.op(f"buffer_load_dwordx4 v{v_wo+i%3}, {srd_s(SRD_W)}, s{s_wo} offen lds", ("st", st))
        return f
    def issue(st):
        for i in range(6): one(st, i)()
    XFIRST = opt.get("xfirst", 0)
    if XFIRST:
        x_loads(); VM.q += ["x"] * 8
    issue(0)
    a.e(f"s_and_b32 s{s_t2}, s{s_j}, 1"); a.e(f"s_lshl_b32 s{s_t2}, s{s_t2}, 10")
    a.e(f"s_add_u32 m0, s{s_t2}, {WPHI}")
    a.e(f"v_lshlrev_b32 v{v_h0}, 4, v0")
    a.e(f"s_lshl_b32 s{s_t3}, s{s_hq}, 11"); a.e(f"s_add_u32 s{s_t2}, s{s_t2}, s{s_t3}")
    VM.op(f"buffer_load_dwordx4 v{v_h0}, {srd_s(SRD_P)}, s{s_t2} offen lds", ("st", 0))
    if not XFIRST:
        x_loads(); VM.q += ["x"] * 8
    T(1)
    VM.need("x")
    T(2)
    layernorm([one(st, i) for st in (1, 2) for i in range(6)])
    nxt = 3
    T(3)
    def prefetch_weights():
        def gu(k):
            a.e(f"v_add_u32 v{v_h0}, {64*k}, v0"); a.e(f"v_mul_u32_u24 v{v_h0+1}, 2341, v{v_h0}"); a.e(f"v_lshrrev_b32 v{v_h0+1}, 15, v{v_h0+1}")
            a.e(f"v_mul_u32_u24 v{v_h0+2}, 14, v{v_h0+1}"); a.e(f"v_sub_u32 v{v_h0}, v{v_h0}, v{v_h0+2}")
            a.e(f"v_mul_u32_u24 v{v_h0+1}, 3584, v{v_h0+1}"); a.e(f"v_lshl_add_u32 v{v_h0}, v{v_h0}, 7, v{v_h0+1}")
        a.e(f"s_lshr_b32 s{s_t3}, s2, 3")
        a.e(f"s_cmp_eq_u32 s{s_j}, 0"); a.e("s_cbranch_scc0 P1_PF1")
        srd(a, SRD_P, S_WO, 524288)
        a.e(f"v_lshlrev_b32 v{v_h0}, 7, v0")
        touch_contig(a, SRD_P, 0, 128, s_t3, v_h0, 255, s_t2)
        srd(a, SRD_P, S_WD, 1792*1024)
        a.e(f"s_mov_b32 s{s_t3}, s2")
        a.e("v_cmp_gt_u32 vcc, 56, v0"); a.e(f"s_and_saveexec_b64 s[{s_c0}:{s_c0+1}], vcc")
        touch_contig(a, SRD_P, 0, 56, s_t3, v_h0, 255, s_t2)
        a.e(f"s_mov_b64 exec, s[{s_c0}:{s_c0+1}]")
        a.e("s_branch P1_PFE")
        a.lab("P1_PF1")
        a.e(f"s_mul_i32 s{s_t2}, s{s_t3}, {16*3584}"); a.e(f"s_bfe_u32 s{s_t3}, s2, 0x10002"); a.e(f"s_mul_i32 s{s_t3}, s{s_t3}, 1792"); a.e(f"s_add_u32 s{s_t2}, s{s_t2}, s{s_t3}")
        a.e(f"s_cmp_eq_u32 s{s_j}, 3"); a.e("s_cbranch_scc1 P1_PF3")
        a.e(f"s_cmp_eq_u32 s{s_j}, 1"); a.e(f"s_cselect_b32 s54, s{S_WG}, s{S_WU}"); a.e(f"s_cselect_b32 s55, s{S_WG+1}, s{S_WU+1}")
        srd(a, SRD_P, 54, 512*3584)
        for k in range(3):
            gu(k); a.e(f"buffer_load_dword v255, v{v_h0}, {srd_s(SRD_P)}, s{s_t2} offen")
        a.e("s_branch P1_PFE")
        a.lab("P1_PF3")
        gu(3)
        a.e("v_cmp_gt_u32 vcc, 32, v0"); a.e(f"s_and_saveexec_b64 s[{s_c0}:{s_c0+1}], vcc")
        srd(a, SRD_P, S_WG, 512*3584); a.e(f"buffer_load_dword v255, v{v_h0}, {srd_s(SRD_P)}, s{s_t2} offen")
        srd(a, SRD_P, S_WU, 512*3584); a.e(f"buffer_load_dword v255, v{v_h0}, {srd_s(SRD_P)}, s{s_t2} offen")
        a.e("s_and_b64 exec, exec, 1")
        a.e(f"buffer_load_dword v255, v{v_h0}, {srd_s(SRD_P)}, s{s_t2} offen")
        a.e(f"s_mov_b64 exec, s[{s_c0}:{s_c0+1}]")
        a.lab("P1_PFE")
        VM.q += ["pf"] * 3
    s_cs = 51
    def cs_loads():
        a.e(f"s_lshr_b32 s{s_t1}, s2, 3")
        a.e(f"s_cmp_ge_u32 s{s_t1}, 14"); a.e(f"s_cselect_b32 s{s_t2}, 14, 0"); a.e(f"s_cselect_b32 s{s_t0}, 1, 0")
        a.e(f"s_cselect_b32 s54, s{S_WU}, s{S_WG}"); a.e(f"s_cselect_b32 s55, s{S_WU+1}, s{S_WG+1}")
        a.e(f"s_sub_u32 s{s_t2}, s{s_t1}, s{s_t2}")
        srd(a, SRD_P, 54, 512*3584)
        a.e(f"s_bfe_u32 s{s_t3}, s2, 0x10002"); a.e(f"s_mul_i32 s{s_t3}, s{s_t3}, 14"); a.e(f"s_add_u32 s{s_t2}, s{s_t2}, s{s_t3}")
        a.e(f"s_and_b32 s{s_t3}, s2, 3"); a.e(f"s_lshl_b32 s{s_t3}, s{s_t3}, 2"); a.e(f"s_add_u32 s{s_t3}, s{s_t3}, s{s_j}")
        a.e(f"s_mul_i32 s{s_cs}, s{s_t3}, 3584"); a.e(f"s_mul_i32 s{s_t0}, s{s_t0}, 1792"); a.e(f"s_add_u32 s{s_cs}, s{s_cs}, s{s_t0}")
        a.e(f"s_lshl_b32 s{s_t0}, s{s_t2}, 6"); a.e(f"s_add_u32 s{s_cs}, s{s_cs}, s{s_t0}"); a.e(f"s_lshl_b32 s{s_cs}, s{s_cs}, 2"); a.e(f"s_add_u32 s{s_cs}, s{s_cs}, {OFF_CS}")
        a.e(f"s_mul_i32 s{s_t3}, s{s_t3}, {32*3584}"); a.e(f"s_lshl_b32 s{s_t2}, s{s_t2}, 7"); a.e(f"s_add_u32 s{s_t3}, s{s_t3}, s{s_t2}")
        a.e(f"v_lshrrev_b32 v{v_h0}, 3, v0"); a.e(f"v_mul_u32_u24 v{v_h0}, 3584, v{v_h0}"); a.e(f"v_and_b32 v{v_h0+1}, 7, v0"); a.e(f"v_lshl_add_u32 v{v_h0}, v{v_h0+1}, 4, v{v_h0}")
        a.e(f"s_cmp_ge_u32 s{s_t1}, 28"); a.e(f"s_cselect_b32 s{s_t3}, 0x7f000000, s{s_t3}"); a.e(f"s_cselect_b32 s{s_cs}, 0x7f000000, s{s_cs}")
        for k in range(4):
            VM.op(f"buffer_load_dwordx4 {vr(v_csl+4*k,4)}, v{v_h0}, {srd_s(SRD_P)}, s{s_t3} offen", "cs")
            if k < 3: a.e(f"s_add_u32 s{s_t3}, s{s_t3}, {8*3584}")
    def cs_process():
        VM.need("cs")
        cs = csa; t = csa + 8
        for k in range(4):
            for r in range(4):
                x = v_csl + 4*k + r
                a.e(f"v_lshlrev_b32 v{t}, 16, v{x}"); a.e(f"v_and_b32 v{t+1}, 0xffff0000, v{x}")
                if k == 0: a.e(f"v_mov_b32 v{cs+2*r}, v{t}"); a.e(f"v_mov_b32 v{cs+2*r+1}, v{t+1}")
                else: a.e(f"v_pk_add_f32 {vr(cs+2*r,2)}, {vr(cs+2*r,2)}, {vr(t,2)}")
        a.e("s_nop 1")
        for j in range(8): a.e(f"v_add_f32_dpp v{cs+j}, v{cs+j}, v{cs+j} row_ror:8 row_mask:0xf bank_mask:0xf")
        for op in ("v_permlane16_swap_b32", "v_permlane32_swap_b32"):
            for j in range(8): a.e(f"v_mov_b32 v{t+j}, v{cs+j}")
            a.e("s_nop 1")
            for j in range(8): a.e(f"{op} v{cs+j}, v{t+j}")
            a.e("s_nop 1")
            for j in range(8): a.e(f"v_add_f32 v{cs+j}, v{cs+j}, v{t+j}")
        a.e(f"v_lshlrev_b32 v{t}, 5, v0")
        a.e("v_cmp_gt_u32 vcc, 8, v0"); a.e(f"s_and_saveexec_b64 s[{s_c0}:{s_c0+1}], vcc")
        for q in range(2): VM.op(f"buffer_store_dwordx4 {vr(cs+4*q,4)}, v{t}, {WSS}, s{s_cs} offen offset:{16*q}{SC1}", "csst")
        a.e(f"s_mov_b64 exec, s[{s_c0}:{s_c0+1}]")
    for s in range(NSTG):
        VM.need(("st", s))
        if s == 0: a.e("s_waitcnt lgkmcnt(0)")
        a.e("s_barrier")
        if s % 2 == 0: T(4 + s // 2)
        lim = min(NSTG - 1, s - 1 + NST)
        while nxt <= lim:
            issue(nxt); nxt += 1
        if s == 0: wphi_frags(v_tmp)
        if s == NSTG - 1:
            cs_loads()
            if opt.get("prefetch", True): prefetch_weights()
    a.e(f"s_lshl_b32 s{s_t2}, s{s_j}, 11")
    a.e(f"v_lshlrev_b32 v{v_h0}, 4, v0"); a.e(f"v_add_u32 v{v_h0}, s{s_t2}, v{v_h0}")
    a.e(f"s_mov_b32 s{s_role}, 1")
    T(8)
    a.e("s_barrier")
    a.e("s_barrier")
    T(9)
    a.e(f"ds_read_b128 {vr(v_x0,4)}, v{v_h0} offset:{QX}")
    a.e(f"ds_read_b128 {vr(v_x0+4,4)}, v{v_h0} offset:{QX+1024}")
    a.e("s_waitcnt lgkmcnt(0)")
    a.e("s_branch P1_SOFTMAX")
    a.lab("P1_CONS")
    Cp = VAlloc(ln_end)
    v_t = Cp(8, 4)
    s_tb, s_hp, s_blk = 60, 61, 50
    a.e(f"s_and_b32 s{s_tb}, s{s_w}, 1"); a.e(f"s_lshr_b32 s{s_hp}, s{s_w}, 1")
    for i in range(4): a.e(f"v_mov_b32 v{v_t+i}, 0")
    a.e(f"v_mov_b32 v{v_t+4}, {ZERO}")
    a.e(f"ds_write_b128 v{v_t+4}, {vr(v_t,4)}")
    a.e(f"ds_write_b32 v{v_t+4}, v{v_t} offset:16")
    a.e("s_waitcnt lgkmcnt(0)")
    srd(a, SRD_X, S_X, 2048*1024); srd(a, SRD_WS, S_WS, WS_BYTES); srd(a, SRD_DB, S_DBG, 256)
    x_loads()
    if opt.get("codepf", True):
        a.e(f"s_cmp_eq_u32 s{s_w}, 1"); a.e("s_cbranch_scc0 P1_NOCPF")
        a.e("s_getpc_b64 s[62:63]")
        a.lab("P1_PC")
        a.e(f"s_sub_u32 s62, s62, P1_PC-{KNAME}"); a.e("s_subb_u32 s63, s63, 0")
        a.e(f"s_lshr_b32 s{s_t2}, s2, 3"); a.e(f"s_mul_i32 s{s_t2}, s{s_t2}, 12"); a.e(f"v_add_u32 v{v_dum+1}, s{s_t2}, v0"); a.e(f"v_lshlrev_b32 v{v_dum+1}, 7, v{v_dum+1}")
        a.e(f"v_cmp_gt_u32 vcc, 12, v0"); a.e(f"s_and_saveexec_b64 s[{s_c0}:{s_c0+1}], vcc")
        a.e(f"s_mov_b32 s{s_t2}, ALL_END-{KNAME}")
        a.e(f"v_cmp_gt_u32 vcc, s{s_t2}, v{v_dum+1}"); a.e("s_and_b64 exec, exec, vcc")
        a.e("s_cbranch_execz P1_CPFX")
        a.e(f"global_load_dword v255, v{v_dum+1}, s[62:63]")
        a.lab("P1_CPFX")
        a.e(f"s_mov_b64 exec, s[{s_c0}:{s_c0+1}]")
        a.lab("P1_NOCPF")
    a.e(f"s_cmp_eq_u32 s{s_w}, 0")
    a.e("s_cbranch_scc0 P1_NOZERO")
    a.e(f"v_mov_b32 v{v_t+6}, {OFF_NONCE}")
    a.e(f"buffer_load_dword v{v_t+7}, v{v_t+6}, {WSS}, 0 offen sc1")
    a.e(f"s_lshl_b32 s{s_t2}, s{s_hq}, 2")
    a.e(f"v_mov_b32 v{v_t+4}, s{s_t2}"); a.e(f"v_mov_b32 v{v_t+5}, 1")
    a.e("v_cmp_eq_u32 vcc, 0, v0")
    a.e(f"s_and_saveexec_b64 s[{s_c0}:{s_c0+1}], vcc")
    a.e(f"buffer_atomic_add v{v_t+5}, v{v_t+4}, {srd_s(SRD_DB)}, 0 offen sc0")
    a.e("s_waitcnt vmcnt(0)")
    a.e(f"s_mov_b64 exec, s[{s_c0}:{s_c0+1}]")
    a.e("s_nop 0")
    a.e(f"v_readfirstlane_b32 s{s_ep}, v{v_t+7}")
    a.e(f"v_readfirstlane_b32 s{s_t2}, v{v_t+5}")
    a.e("s_nop 3")
    a.e(f"s_add_u32 s{s_ep}, s{s_ep}, 1")
    a.e(f"s_cmp_eq_u32 s{s_t2}, 0")
    a.e("s_cbranch_scc0 P1_NOZERO")
    a.e(f"s_mul_i32 s{s_t2}, s{s_hq}, 8704"); a.e(f"s_add_u32 s{s_t2}, s{s_t2}, {OFF_KV}")
    a.e(f"v_lshlrev_b32 v{v_t+4}, 4, v0")
    for i in range(8):
        if i == 4: a.e(f"s_add_u32 s{s_t2}, s{s_t2}, 4096")
        a.e(f"buffer_store_dwordx4 {vr(v_t,4)}, v{v_t+4}, {WSS}, s{s_t2} offen offset:{(i%4)*1024} sc1")
    a.e("v_cmp_gt_u32 vcc, 32, v0")
    a.e(f"s_and_saveexec_b64 s[{s_c0}:{s_c0+1}], vcc")
    a.e(f"s_add_u32 s{s_t2}, s{s_t2}, 4096")
    a.e(f"buffer_store_dwordx4 {vr(v_t,4)}, v{v_t+4}, {WSS}, s{s_t2} offen sc1")
    a.e("s_waitcnt vmcnt(0)")
    a.e("v_cmp_eq_u32 vcc, 0, v0")
    a.e("s_and_b64 exec, exec, vcc")
    a.e(f"s_lshl_b32 s{s_t2}, s{s_hq}, 2")
    a.e(f"v_mov_b32 v{v_t+4}, s{s_t2}"); a.e(f"v_mov_b32 v{v_t+5}, 1")
    a.e(f"buffer_store_dword v{v_t+5}, v{v_t+4}, {srd_s(SRD_DB)}, 0 offen offset:64 sc1")
    a.e(f"s_mov_b64 exec, s[{s_c0}:{s_c0+1}]")
    a.lab("P1_NOZERO")
    T(1)
    a.e("s_waitcnt vmcnt(0)")
    T(2)
    layernorm([])
    T(3)
    C = VAlloc(common_end)
    acc = C(48, 4); v_xa = C(4); v_xb = C(4); v_wad = C(1); fx_ = C(8, 4); fw = C(24, 4); v_t = C(8, 4)
    a.e(f"v_and_b32 v{v_t}, 31, v0"); a.e(f"v_lshrrev_b32 v{v_t+1}, 5, v0")
    a.e(f"v_lshrrev_b32 v{v_t+2}, 1, v{v_t}"); a.e(f"v_and_b32 v{v_t+2}, 7, v{v_t+2}"); a.e(f"v_xor_b32 v{v_t+1}, v{v_t+1}, v{v_t+2}")
    a.e(f"v_lshlrev_b32 v{v_t}, 7, v{v_t}"); a.e(f"v_lshl_add_u32 v{v_xb}, v{v_t+1}, 4, v{v_t}")
    a.e(f"s_lshl_b32 s{s_t2}, s{s_tb}, 12"); a.e(f"s_add_u32 s{s_t2}, s{s_t2}, {XR}"); a.e(f"v_add_u32 v{v_xb}, s{s_t2}, v{v_xb}")
    for t in range(1, 4): a.e(f"v_xor_b32 v{v_xb+t}, {t<<5}, v{v_xb}")
    a.e(f"s_mov_b32 s{s_blk}, s{s_rot}")
    def set_xblk():
        a.e(f"s_lshl_b32 s{s_t2}, s{s_blk}, 13")
        for t in range(4): a.e(f"v_add_u32 v{v_xa+t}, s{s_t2}, v{v_xb+t}")
        a.e(f"s_add_u32 s{s_blk}, s{s_blk}, 1"); a.e(f"s_and_b32 s{s_blk}, s{s_blk}, 7")
    set_xblk()
    a.e(f"v_lshrrev_b32 v{v_t}, 5, v0"); a.e(f"v_lshlrev_b32 v{v_t}, 3, v{v_t}")
    a.e(f"v_bfe_u32 v{v_t+1}, v0, 2, 2"); a.e(f"v_add_u32 v{v_t}, v{v_t}, v{v_t+1}"); a.e(f"v_mul_u32_u24 v{v_t}, 384, v{v_t}")
    a.e(f"v_bfe_u32 v{v_t+1}, v0, 3, 1"); a.e(f"v_xor_b32 v{v_t+1}, s{s_hp}, v{v_t+1}"); a.e(f"v_lshl_add_u32 v{v_t}, v{v_t+1}, 6, v{v_t}")
    a.e(f"v_and_b32 v{v_t+1}, 1, v0"); a.e(f"v_lshl_add_u32 v{v_t}, v{v_t+1}, 5, v{v_t}")
    a.e(f"v_bfe_u32 v{v_t+1}, v0, 1, 1"); a.e(f"v_bfe_u32 v{v_t+2}, v0, 4, 1"); a.e(f"v_lshl_add_u32 v{v_t+1}, v{v_t+2}, 1, v{v_t+1}")
    a.e(f"v_lshl_add_u32 v{v_wad}, v{v_t+1}, 3, v{v_t}"); a.e(f"v_add_u32 v{v_wad}, {WR}, v{v_wad}")
    for i in range(48): a.e(f"v_mov_b32 v{acc+i}, 0")
    LG = Cnt(a, "lgkmcnt", 15)
    def reads(s, t):
        p = t & 1; o = []
        o.append(lambda: LG.op(f"ds_read_b128 {vr(fx_+4*p,4)}, v{v_xa+t}", ("x", s, t)))
        for cb in range(3):
            for k in range(2):
                o.append(lambda cb=cb, k=k: LG.op(f"ds_read_b64_tr_b16 {vr(fw+12*p+4*cb+2*k,2)}, v{v_wad} offset:{t*6144+cb*128+k*1536}", ("w", s, t, cb)))
        return o
    def step(s, t, nxt_):
        p = t & 1
        def m(cb):
            LG.need(("x", s, t), ("w", s, t, cb))
            a.e(f"{MF} {vr(acc+16*cb,16)}, {vr(fw+12*p+4*cb,4)}, {vr(fx_+4*p,4)}, {vr(acc+16*cb,16)}")
        if t < 3:
            f = nxt_
            m(0); f[0](); f[1](); f[2](); m(1); f[3](); f[4](); m(2); f[5](); f[6]()
        else:
            m(0)
            if nxt_ is not None:
                LG.drain()
                a.e("s_barrier")
                delta = WSLOT if (s + 1) % NST != 0 else -(NST - 1) * WSLOT
                a.e(f"v_add_u32 v{v_wad}, {delta & 0xffffffff:#x}, v{v_wad}")
                set_xblk()
                f = nxt_
                f[0](); f[1](); f[2](); m(1); f[3](); f[4](); m(2); f[5](); f[6]()
            else:
                m(1); m(2)
    a.e("s_waitcnt lgkmcnt(0)")
    a.e("s_barrier")
    T(4)
    for f in reads(0, 0): f()
    wphi_frags(v_tmp)
    LG.q += [("wa", k) for k in range(4)]
    for s in range(NSTG):
        for t in range(4):
            nx = reads(s, t + 1) if t < 3 else (reads(s + 1, 0) if s + 1 < NSTG else None)
            step(s, t, nx)
    T(5)
    a.e("s_barrier")
    a.e(f"s_lshl_b32 s{s_t2}, s{s_j}, 11")
    a.e(f"v_lshlrev_b32 v{v_t}, 4, v0"); a.e(f"v_add_u32 v{v_t}, s{s_t2}, v{v_t}")
    a.e("s_nop 7")
    for i in range(8): a.e(f"v_cvt_pk_bf16_f32 v{v_x0+i}, v{acc+2*i}, v{acc+2*i+1}")
    a.e(f"ds_write_b128 v{v_t}, {vr(v_x0,4)} offset:{QX}")
    a.e(f"ds_write_b128 v{v_t}, {vr(v_x0+4,4)} offset:{QX+1024}")
    a.e("s_waitcnt lgkmcnt(0)")
    a.e("s_barrier")
    T(6)
    a.e(f"s_lshl_b32 s{s_t2}, s{s_hq}, 2"); a.e(f"v_mov_b32 v{v_t+6}, s{s_t2}")
    a.e(f"buffer_load_dword v{v_t+7}, v{v_t+6}, {srd_s(SRD_DB)}, 0 offen offset:64 sc1")
    for i in range(8): a.e(f"v_cvt_pk_bf16_f32 v{v_x0+i}, v{acc+16+2*i}, v{acc+16+2*i+1}")
    for i in range(8): a.e(f"v_cvt_pk_bf16_f32 v{acc+32+i}, v{acc+32+2*i}, v{acc+32+2*i+1}")
    a.e(f"v_and_b32 v{v_t}, 31, v0"); a.e(f"s_lshl_b32 s{s_t2}, s{s_tb}, 5"); a.e(f"v_add_u32 v{v_t}, s{s_t2}, v{v_t}")
    a.e(f"v_mul_u32_u24 v{v_t}, 160, v{v_t}")
    a.e(f"v_lshrrev_b32 v{v_t+1}, 5, v0"); a.e(f"s_lshl_b32 s{s_t2}, s{s_hp}, 6")
    a.e(f"v_lshl_add_u32 v{v_t+2}, v{v_t+1}, 5, v{v_t}"); a.e(f"v_add_u32 v{v_t+2}, s{s_t2}, v{v_t+2}")
    a.e(f"ds_write_b128 v{v_t+2}, {vr(acc+32,4)} offset:{VV}")
    a.e(f"ds_write_b128 v{v_t+2}, {vr(acc+36,4)} offset:{VV+16}")
    a.e(f"v_lshl_add_u32 v{v_t+2}, v{v_t+1}, 4, v{v_t}")
    for i in range(4): a.e(f"v_mov_b32 v{acc+40+i}, 0x3f803f80")
    a.e(f"ds_write_b128 v{v_t+2}, {vr(acc+40,4)} offset:{VV+128}")
    a.e(f"s_mov_b32 s{s_role}, 0")
    a.lab("P1_SOFTMAX")
    softmax_block(a, v_wa, v_x0, v_p, v_en, v_pk, v_tmp, v_c)
    a.e(f"s_cmp_eq_u32 s{s_role}, 0")
    a.e("s_cbranch_scc1 P1_CONS2")
    a.e(f"s_lshl_b32 s{s_t0}, s{s_rb}, 1"); a.e(f"s_and_b32 s{s_t1}, s{s_j}, 1"); a.e(f"s_add_u32 s{s_t0}, s{s_t0}, s{s_t1}")
    a.e(f"s_lshl_b32 s{s_t0}, s{s_t0}, 5"); a.e(f"s_lshl_b32 s{s_t1}, s{s_hq}, 2"); a.e(f"s_add_u32 s{s_t0}, s{s_t0}, s{s_t1}")
    a.e(f"s_lshr_b32 s{s_t1}, s{s_j}, 1"); a.e(f"s_lshl_b32 s{s_t1}, s{s_t1}, 1"); a.e(f"s_add_u32 s{s_t0}, s{s_t0}, s{s_t1}")
    a.e(f"s_lshl_b32 s{s_t0}, s{s_t0}, 11"); a.e(f"s_add_u32 s{s_t0}, s{s_t0}, {OFF_PHIQ}")
    a.e(f"v_and_b32 v{v_tmp}, 31, v0"); a.e(f"v_lshrrev_b32 v{v_tmp+1}, 5, v0")
    a.e(f"v_lshlrev_b32 v{v_tmp}, 4, v{v_tmp}"); a.e(f"v_lshl_add_u32 v{v_tmp}, v{v_tmp+1}, 11, v{v_tmp}")
    for i in range(4):
        VM.op(f"buffer_store_dwordx4 {vr(v_pk+4*i,4)}, v{v_tmp}, {WSS}, s{s_t0} offen offset:{(i>>1)*1024+(i&1)*512}{SC1}", "phst")
    T(10)
    cs_process()
    T(11); T.real(14); T.dump(S_WS, s_w, v_tmp)
    a.e("s_branch P1_DONE")
    a.lab("P1_CONS2")
    t0 = v_tmp
    a.e(f"v_and_b32 v{t0}, 3, v0"); a.e(f"v_lshlrev_b32 v{t0}, 2, v{t0}")
    a.e(f"v_and_b32 v{t0+1}, 2, v0"); a.e(f"v_or_b32 v{t0}, v{t0}, v{t0+1}")
    a.e(f"v_bfe_u32 v{t0+1}, v0, 2, 1"); a.e(f"v_or_b32 v{t0}, v{t0}, v{t0+1}")
    a.e(f"v_lshrrev_b32 v{t0+1}, 5, v0"); a.e(f"s_lshl_b32 s{s_t2}, s{s_hp}, 1"); a.e(f"v_add_u32 v{t0+1}, s{s_t2}, v{t0+1}")
    a.e(f"v_lshlrev_b32 v{t0+1}, 2, v{t0+1}"); a.e(f"v_xor_b32 v{t0}, v{t0}, v{t0+1}")
    a.e(f"v_and_b32 v{t0+1}, 31, v0"); a.e(f"s_lshl_b32 s{s_t2}, s{s_tb}, 5"); a.e(f"v_add_u32 v{t0+1}, s{s_t2}, v{t0+1}")
    a.e(f"v_lshlrev_b32 v{t0+1}, 8, v{t0+1}"); a.e(f"v_lshl_add_u32 v{t0}, v{t0}, 4, v{t0+1}")
    for i in range(4):
        if i: a.e(f"v_xor_b32 v{t0+1}, {i<<4}, v{t0}")
        a.e(f"ds_write_b128 v{t0 if i == 0 else t0+1}, {vr(v_pk+4*i,4)} offset:{PHIK}")
    a.e("s_waitcnt lgkmcnt(0)")
    T(7)
    a.e(f"v_mov_b32 v{t0+6}, {ZERO+16}"); a.e(f"v_mov_b32 v{t0+7}, 1")
    a.e("v_cmp_eq_u32 vcc, 0, v0"); a.e(f"s_and_saveexec_b64 s[{s_c0}:{s_c0+1}], vcc")
    a.e(f"ds_add_u32 v{t0+6}, v{t0+7}")
    a.e(f"s_mov_b64 exec, s[{s_c0}:{s_c0+1}]")
    a.lab("P1_RDV")
    a.e(f"ds_read_b32 v{t0+7}, v{t0+6}")
    a.e("s_waitcnt lgkmcnt(0)")
    a.e(f"v_readfirstlane_b32 s{s_t2}, v{t0+7}")
    a.e("s_nop 3")
    a.e(f"s_cmp_lt_u32 s{s_t2}, 4")
    a.e("s_cbranch_scc1 P1_RDV")
    T(8)
    kvacc = v_p; fa = v_en; fb = v_en + 8
    a.e(f"v_lshrrev_b32 v{t0}, 5, v0"); a.e(f"v_lshlrev_b32 v{t0}, 3, v{t0}")
    a.e(f"v_bfe_u32 v{t0+1}, v0, 2, 2"); a.e(f"v_add_u32 v{t0}, v{t0}, v{t0+1}")
    a.e(f"v_and_b32 v{t0+2}, 3, v0")
    a.e(f"v_mul_u32_u24 v{t0+3}, 160, v{t0}"); a.e(f"v_lshl_add_u32 v{t0+3}, v{t0+2}, 3, v{t0+3}")
    a.e(f"s_lshl_b32 s{s_t2}, s{s_w}, 5"); a.e(f"v_mov_b32 v{t0+4}, s{s_t2}")
    a.e(f"v_bfe_u32 v{t0+5}, v0, 4, 1"); a.e(f"v_cmp_eq_u32 vcc, 1, v{t0+5}")
    a.e(f"v_mov_b32 v{t0+6}, 128")
    a.e("s_nop 0")
    a.e(f"v_cndmask_b32 v{t0+4}, v{t0+4}, v{t0+6}, vcc"); a.e(f"v_add_u32 v{t0+3}, v{t0+3}, v{t0+4}")
    a.e(f"v_lshrrev_b32 v{t0+4}, 1, v{t0+2}"); a.e(f"v_lshl_add_u32 v{t0+4}, v{t0+5}, 1, v{t0+4}")
    a.e(f"s_lshl_b32 s{s_t2}, s{s_w}, 2"); a.e(f"v_add_u32 v{t0+4}, s{s_t2}, v{t0+4}")
    a.e(f"v_lshlrev_b32 v{t0+5}, 2, v{t0+1}"); a.e(f"v_and_b32 v{t0+6}, 2, v{t0+1}"); a.e(f"v_or_b32 v{t0+5}, v{t0+5}, v{t0+6}")
    a.e(f"v_xor_b32 v{t0+4}, v{t0+4}, v{t0+5}")
    a.e(f"v_lshlrev_b32 v{t0+4}, 4, v{t0+4}"); a.e(f"v_lshl_add_u32 v{t0+4}, v{t0}, 8, v{t0+4}")
    a.e(f"v_and_b32 v{t0+5}, 1, v{t0+2}"); a.e(f"v_lshl_add_u32 v{t0+4}, v{t0+5}, 3, v{t0+4}")
    a.e(f"v_xor_b32 v{t0+5}, 16, v{t0+4}")
    def kv_rd(u, buf):
        a.e(f"ds_read_b64_tr_b16 {vr(fa+4*buf,2)}, v{t0+3} offset:{VV+u*2560}")
        a.e(f"ds_read_b64_tr_b16 {vr(fa+4*buf+2,2)}, v{t0+3} offset:{VV+u*2560+640}")
        a.e(f"ds_read_b64_tr_b16 {vr(fb+4*buf,2)}, v{t0+4} offset:{PHIK+u*4096}")
        a.e(f"ds_read_b64_tr_b16 {vr(fb+4*buf+2,2)}, v{t0+5} offset:{PHIK+u*4096+1024}")
    kv_rd(0, 0)
    for u in range(4):
        if u < 3: kv_rd(u + 1, (u + 1) & 1); a.e("s_waitcnt lgkmcnt(4)")
        else: a.e("s_waitcnt lgkmcnt(0)")
        a.e(f"{MF} {vr(kvacc,16)}, {vr(fa+4*(u&1),4)}, {vr(fb+4*(u&1),4)}, {'0' if u == 0 else vr(kvacc,16)}")
    T(9)
    a.e("s_waitcnt vmcnt(0)")
    a.e(f"s_mov_b32 s{s_t3}, 0")
    a.lab("P1_POLL")
    a.e(f"v_readfirstlane_b32 s{s_t2}, v{v_t+7}")
    a.e(f"s_add_u32 s{s_t3}, s{s_t3}, 1")
    a.e("s_nop 2")
    a.e(f"s_cmp_lg_u32 s{s_t2}, 0")
    a.e("s_cbranch_scc1 P1_GO")
    a.e(f"s_cmp_ge_u32 s{s_t3}, 40000"); a.e("s_cbranch_scc1 P1_GO")
    a.e(f"buffer_load_dword v{v_t+7}, v{v_t+6}, {srd_s(SRD_DB)}, 0 offen offset:64 sc1")
    a.e("s_waitcnt vmcnt(0)")
    a.e("s_branch P1_POLL")
    a.lab("P1_GO")
    a.e(f"s_lshl_b32 s{s_t2}, s{s_hq}, 2"); a.e(f"s_add_u32 s{s_t2}, s{s_t2}, s{s_w}")
    a.e(f"s_mul_i32 s{s_t2}, s{s_t2}, {17*128}"); a.e(f"s_add_u32 s{s_t2}, s{s_t2}, {OFF_KV}")
    a.e(f"v_and_b32 v{t0}, 31, v0"); a.e(f"v_lshlrev_b32 v{t0}, 2, v{t0}")
    a.e(f"v_lshrrev_b32 v{t0+1}, 5, v0"); a.e(f"v_lshl_add_u32 v{t0+2}, v{t0+1}, 9, v{t0}")
    a.e("s_nop 7")
    for r in range(8):
        a.e(f"buffer_atomic_add_f32 v{kvacc+r}, v{t0+2}, {WSS}, s{s_t2} offen offset:{((r&3)+8*(r>>2))*128}")
    a.e("v_cmp_gt_u32 vcc, 32, v0")
    a.e(f"s_and_saveexec_b64 s[{s_c0}:{s_c0+1}], vcc")
    a.e(f"buffer_atomic_add_f32 v{kvacc+8}, v{t0}, {WSS}, s{s_t2} offen offset:{16*128}")
    a.e(f"s_mov_b64 exec, s[{s_c0}:{s_c0+1}]")
    T(10); T.real(14); T.dump(S_WS, s_w, v_tmp)
    a.lab("P1_DONE")
    return max(H.hi, C.hi, Cp.hi, L.hi)

def phase2(a, dbg, opt):
    T = Stamps(a, dbg, 1)
    WO = 73728; KVB = 8192; RED = 73728
    SRD_X, SRD_WO = SRD_B, SRD_C
    s_rb, s_cb = 56, 57
    s_pb, s_wb, s_m, s_ph, s_a, s_b = 58, 59, 60, 61, 62, 63
    T.real(15); T(0)
    a.e(f"s_and_b32 s{s_t0}, s2, 7"); a.e(f"s_lshr_b32 s{s_t1}, s2, 3")
    a.e(f"s_lshl_b32 s{s_rb}, s{s_t0}, 2"); a.e(f"s_and_b32 s{s_t2}, s{s_t1}, 3"); a.e(f"s_add_u32 s{s_rb}, s{s_rb}, s{s_t2}")
    a.e(f"s_lshr_b32 s{s_cb}, s{s_t1}, 2")
    def all_wgs(a, v): a.e(f"v_mov_b32 v{v}, v0")
    a.e(f"s_cmp_ge_u32 s{s_w}, 4")
    a.e("s_cbranch_scc0 P2_CONS")
    H = VAlloc(2)
    v_dma = H(1); v_l16 = H(1); v_kw = H(1); v_t = H(4); v_kv = H(68, 4)
    a.e(f"v_lshrrev_b32 v{v_t}, 3, v0"); a.e(f"v_lshlrev_b32 v{v_t}, 10, v{v_t}")
    a.e(f"v_bfe_u32 v{v_t+1}, v0, 4, 1"); a.e(f"v_lshlrev_b32 v{v_t+1}, 2, v{v_t+1}")
    a.e(f"v_and_b32 v{v_t+2}, 7, v0"); a.e(f"v_xor_b32 v{v_t+1}, v{v_t+1}, v{v_t+2}")
    a.e(f"v_lshl_add_u32 v{v_dma}, v{v_t+1}, 4, v{v_t}")
    a.e(f"v_lshlrev_b32 v{v_l16}, 4, v0")
    srd(a, SRD_WO, S_WO, 512*1024)
    VM = Cnt(a, "vmcnt", 63)
    def wo_dma():
        a.e(f"s_lshl_b32 s{s_wb}, s{s_j}, 17"); a.e(f"s_lshl_b32 s{s_t2}, s{s_cb}, 7"); a.e(f"s_add_u32 s{s_wb}, s{s_wb}, s{s_t2}")
        a.e(f"s_lshl_b32 s{s_m}, s{s_j}, 14")
        for hd in range(8):
            a.e(f"s_add_u32 s{s_ph}, s{s_cb}, {hd}"); a.e(f"s_and_b32 s{s_ph}, s{s_ph}, 7")
            a.e(f"s_lshl_b32 s{s_a}, s{s_ph}, 14"); a.e(f"s_add_u32 s{s_a}, s{s_a}, s{s_wb}")
            for i in range(2):
                a.e(f"s_add_u32 m0, s{s_m}, {WO + (hd*2+i)*1024}")
                if i: a.e(f"s_add_u32 s{s_a}, s{s_a}, 8192")
                else: a.e("s_nop 0")
                VM.op(f"buffer_load_dwordx4 v{v_dma}, {srd_s(SRD_WO)}, s{s_a} offen lds", "wo")
    signal(a, 0, v_t, "1H", pub=False)
    wo_dma()
    waitflags(a, 0, v_t, "1H", all_wgs, nper=4, poller=False)
    T(1)
    s_kc = s_ph
    a.e(f"s_mul_i32 s{s_t0}, s{s_j}, 17408"); a.e(f"s_add_u32 s{s_t0}, s{s_t0}, {OFF_KV}")
    a.e(f"s_lshr_b32 s{s_t3}, s2, 3"); a.e(f"s_cmp_ge_u32 s{s_t3}, 17"); a.e(f"s_cselect_b32 s{s_t2}, 17, 0"); a.e(f"s_sub_u32 s{s_t3}, s{s_t3}, s{s_t2}")
    a.e(f"s_mov_b32 s{s_kc}, s{s_t3}")
    for i in range(17):
        a.e(f"s_lshl_b32 s{s_t1}, s{s_kc}, 10"); a.e(f"s_add_u32 s{s_t1}, s{s_t1}, s{s_t0}")
        VM.op(f"buffer_load_dwordx4 {vr(v_kv+4*i,4)}, v{v_l16}, {WSS}, s{s_t1} offen{SC1}", "kv")
        a.e(f"s_add_u32 s{s_kc}, s{s_kc}, 1"); a.e(f"s_cmp_eq_u32 s{s_kc}, 17"); a.e(f"s_cselect_b32 s{s_kc}, 0, s{s_kc}")
    a.e(f"s_mul_i32 s{s_t0}, s{s_j}, 8704"); a.e(f"s_add_u32 s{s_t0}, s{s_t0}, {KVB}")
    a.e(f"v_lshlrev_b32 v{v_kw}, 3, v0"); a.e(f"v_add_u32 v{v_kw}, s{s_t0}, v{v_kw}")
    a.e(f"s_mov_b32 s{s_kc}, s{s_t3}")
    for i in range(17):
        if i % 4 == 0 or i == 16: a.e(f"s_waitcnt vmcnt({17 - min(i + 4, 17)})")
        b = v_kv + 4*i
        a.e(f"s_lshl_b32 s{s_t1}, s{s_kc}, 9"); a.e(f"v_add_u32 v{v_t}, s{s_t1}, v{v_kw}")
        a.e(f"v_cvt_pk_bf16_f32 v{b}, v{b}, v{b+1}"); a.e(f"v_cvt_pk_bf16_f32 v{b+1}, v{b+2}, v{b+3}")
        a.e(f"ds_write_b64 v{v_t}, {vr(b,2)}")
        a.e(f"s_add_u32 s{s_kc}, s{s_kc}, 1"); a.e(f"s_cmp_eq_u32 s{s_kc}, 17"); a.e(f"s_cselect_b32 s{s_kc}, 0, s{s_kc}")
    a.e("s_waitcnt vmcnt(0) lgkmcnt(0)")
    T(2)
    a.e("s_barrier")
    a.e("s_barrier")
    if opt.get("pf3", False): pass
    a.e("s_barrier")
    T(3); T.real(14); T.dump(S_WS, s_w, v_t)
    a.e("s_branch P2_DONE")
    a.lab("P2_CONS")
    V = VAlloc(2)
    v_l16 = V(1); v_ka = V(1); v_wa0 = V(1); v_wa1 = V(1); v_t = V(8, 2)
    v_xr = V(8, 4); acc = V(64, 4); D = V(64, 4); kA = V(16, 4); wA = V(16, 4); oF = V(8, 4)
    AH = 2; NPH = AH + 1
    PHI = V(16 * NPH, 4)
    a.e(f"v_lshlrev_b32 v{v_l16}, 4, v0")
    srd(a, SRD_X, S_X, 2048*1024)
    VM = Cnt(a, "vmcnt", 63); LG = Cnt(a, "lgkmcnt", 15)
    signal(a, 0, v_t, "1C")
    s_tbg, s_cn = 50, 51
    a.e(f"v_and_b32 v{v_t}, 31, v0"); a.e(f"v_lshlrev_b32 v{v_t}, 10, v{v_t}")
    a.e(f"v_lshrrev_b32 v{v_t+1}, 5, v0"); a.e(f"v_lshl_add_u32 v{v_t}, v{v_t+1}, 4, v{v_t}")
    a.e(f"s_and_b32 s{s_t0}, s{s_w}, 1"); a.e(f"s_lshl_b32 s{s_tbg}, s{s_rb}, 1"); a.e(f"s_add_u32 s{s_tbg}, s{s_tbg}, s{s_t0}")
    a.e(f"s_lshl_b32 s{s_t1}, s{s_tbg}, 15")
    a.e(f"s_lshr_b32 s{s_t2}, s{s_w}, 1"); a.e(f"s_lshl_b32 s{s_cn}, s{s_cb}, 1"); a.e(f"s_add_u32 s{s_cn}, s{s_cn}, s{s_t2}")
    a.e(f"s_lshl_b32 s{s_t2}, s{s_cn}, 6"); a.e(f"s_add_u32 s{s_t1}, s{s_t1}, s{s_t2}")
    for i in range(2): a.e(f"buffer_load_dwordx4 {vr(v_xr+4*i,4)}, v{v_t}, {srd_s(SRD_X)}, s{s_t1} offen offset:{32*i}")
    a.e(f"s_mul_i32 s{s_t0}, s{s_w}, 8704"); a.e(f"s_add_u32 s{s_t0}, s{s_t0}, {KVB}")
    a.e(f"v_and_b32 v{v_t+2}, 31, v0"); a.e(f"v_min_u32 v{v_t+2}, 16, v{v_t+2}"); a.e(f"v_lshlrev_b32 v{v_t+2}, 6, v{v_t+2}")
    a.e(f"v_lshrrev_b32 v{v_t+3}, 5, v0"); a.e(f"v_lshl_add_u32 v{v_t+2}, v{v_t+3}, 4, v{v_t+2}")
    a.e(f"v_add_u32 v{v_ka}, s{s_t0}, v{v_t+2}")
    a.e(f"v_lshrrev_b32 v{v_t+2}, 5, v0"); a.e(f"v_lshlrev_b32 v{v_t+2}, 2, v{v_t+2}")
    a.e(f"v_bfe_u32 v{v_t+3}, v0, 2, 2"); a.e(f"v_add_u32 v{v_t+2}, v{v_t+2}, v{v_t+3}")
    a.e(f"v_lshlrev_b32 v{v_t+2}, 7, v{v_t+2}")
    a.e(f"v_bfe_u32 v{v_t+3}, v0, 3, 1"); a.e(f"v_lshl_add_u32 v{v_t+2}, v{v_t+3}, 6, v{v_t+2}")
    a.e(f"v_bfe_u32 v{v_t+3}, v0, 4, 1"); a.e(f"v_lshl_add_u32 v{v_t+2}, v{v_t+3}, 5, v{v_t+2}")
    a.e(f"v_and_b32 v{v_t+3}, 1, v0"); a.e(f"v_lshl_add_u32 v{v_t+2}, v{v_t+3}, 4, v{v_t+2}")
    a.e(f"v_bfe_u32 v{v_t+3}, v0, 1, 1"); a.e(f"v_lshl_add_u32 v{v_t+2}, v{v_t+3}, 3, v{v_t+2}")
    a.e(f"s_lshl_b32 s{s_t0}, s{s_w}, 14"); a.e(f"s_add_u32 s{s_t0}, s{s_t0}, {WO}")
    a.e(f"v_add_u32 v{v_wa0}, s{s_t0}, v{v_t+2}"); a.e(f"v_xor_b32 v{v_wa1}, 64, v{v_wa0}")
    for i in range(64): a.e(f"v_mov_b32 v{acc+i}, 0")
    a.e(f"s_lshl_b32 s{s_pb}, s{s_rb}, 6"); a.e(f"s_lshl_b32 s{s_t0}, s{s_w}, 3"); a.e(f"s_add_u32 s{s_pb}, s{s_pb}, s{s_t0}")
    a.e(f"s_lshl_b32 s{s_pb}, s{s_pb}, 11"); a.e(f"s_add_u32 s{s_pb}, s{s_pb}, {OFF_PHIQ}")
    waitflags(a, 0, v_t, "1C", all_wgs, nper=4)
    T(1)
    def issue_head(hd):
        a.e(f"s_add_u32 s{s_ph}, s{s_cb}, {hd}"); a.e(f"s_and_b32 s{s_ph}, s{s_ph}, 7")
        a.e(f"s_lshl_b32 s{s_a}, s{s_ph}, 11"); a.e(f"s_add_u32 s{s_a}, s{s_a}, s{s_pb}")
        a.e(f"s_add_u32 s{s_b}, s{s_a}, {32*2048}")
        for tb in range(2):
            for s in range(2):
                sp = s_a if tb == 0 else s_b
                VM.op(f"buffer_load_dwordx4 {vr(PHI+16*(hd%NPH)+(tb*2+s)*4,4)}, v{v_l16}, {WSS}, s{sp} offen offset:{s*1024}{SC1}", ("phi", hd))
    for hd in range(AH): issue_head(hd)
    a.e("s_barrier")
    T(2)
    def rd_k(hd):
        p = hd & 1
        a.e(f"s_add_u32 s{s_ph}, s{s_cb}, {hd}"); a.e(f"s_and_b32 s{s_ph}, s{s_ph}, 7"); a.e(f"s_mul_i32 s{s_ph}, s{s_ph}, 1088")
        a.e(f"v_add_u32 v{v_t+6}, s{s_ph}, v{v_ka}")
        for s in range(2): LG.op(f"ds_read_b128 {vr(kA+8*p+4*s,4)}, v{v_t+6} offset:{s*32}", ("k", hd))
    def rd_w(hd):
        p = hd & 1
        for nb in range(2):
            va = v_wa0 if nb == 0 else v_wa1
            LG.op(f"ds_read_b64_tr_b16 {vr(wA+8*p+4*nb,2)}, v{va} offset:{hd*2048}", ("w", hd))
            LG.op(f"ds_read_b64_tr_b16 {vr(wA+8*p+4*nb+2,2)}, v{va} offset:{hd*2048+1024}", ("w", hd))
    def num(hd):
        p = hd & 1
        VM.need(("phi", hd)); LG.need(("k", hd))
        for s in range(2):
            for tb in range(2):
                d = D + 32*p + 16*tb
                a.e(f"{MF} {vr(d,16)}, {vr(kA+8*p+4*s,4)}, {vr(PHI+16*(hd%NPH)+(tb*2+s)*4,4)}, {'0' if s == 0 else vr(d,16)}")
    def fin(hd):
        p = hd & 1
        for tb in range(2):
            d = D + 32*p + 16*tb
            a.e(f"v_add_f32 v{d+8}, {fx(1e-6)}, v{d+8}"); a.e(f"v_rcp_f32 v{d+8}, v{d+8}")
        a.e("s_nop 0")
        for tb in range(2):
            d = D + 32*p + 16*tb
            for i in range(0, 8, 2): a.e(f"v_pk_mul_f32 {vr(d+i,2)}, {vr(d+i,2)}, {vr(d+8,2)} op_sel_hi:[1,0]")
        for tb in range(2):
            d = D + 32*p + 16*tb
            for i in range(4): a.e(f"v_cvt_pk_bf16_f32 v{oF+4*tb+i}, v{d+2*i}, v{d+2*i+1}")
        LG.need(("w", hd))
        a.e("s_nop 1")
        for nb in range(2):
            for tb in range(2):
                ti = tb + 2*nb
                a.e(f"{MF} {vr(acc+16*ti,16)}, {vr(wA+8*p+4*nb,4)}, {vr(oF+4*tb,4)}, {vr(acc+16*ti,16)}")
    rd_k(0)
    for hd in range(8):
        num(hd)
        if hd + AH < 8: issue_head(hd + AH)
        if hd < 7: rd_k(hd + 1)
        rd_w(hd)
        if hd >= 1: fin(hd - 1)
    a.e("s_nop 7"); a.e("s_nop 3")
    fin(7)
    T(3)
    a.e("s_barrier")
    a.e(f"s_lshl_b32 s{s_t0}, s{s_w}, 12"); a.e(f"s_add_u32 s{s_t0}, s{s_t0}, {RED}")
    a.e(f"v_add_u32 v{v_t}, s{s_t0}, v{v_l16}")
    a.e("s_nop 7"); a.e("s_nop 3")
    for ti in range(4):
        for q in range(4): a.e(f"ds_write_b128 v{v_t}, {vr(acc+16*ti+4*q,4)} offset:{ti*16384+q*1024}")
    a.e("s_waitcnt lgkmcnt(0)")
    a.e("s_barrier")
    T(4)
    a.e(f"s_lshl_b32 s{s_t0}, s{s_w}, 14"); a.e(f"s_add_u32 s{s_t0}, s{s_t0}, {RED}")
    a.e(f"v_add_u32 v{v_t}, s{s_t0}, v{v_l16}")
    for sw in range(4):
        for q in range(4): a.e(f"ds_read_b128 {vr(acc+16*sw+4*q,4)}, v{v_t} offset:{sw*4096+q*1024}")
    a.e("s_waitcnt vmcnt(0) lgkmcnt(0)")
    for i in range(0, 16, 2):
        a.e(f"v_pk_add_f32 {vr(acc+i,2)}, {vr(acc+i,2)}, {vr(acc+16+i,2)}"); a.e(f"v_pk_add_f32 {vr(acc+32+i,2)}, {vr(acc+32+i,2)}, {vr(acc+48+i,2)}")
    for i in range(0, 16, 2): a.e(f"v_pk_add_f32 {vr(acc+i,2)}, {vr(acc+i,2)}, {vr(acc+32+i,2)}")
    for i in range(8):
        a.e(f"v_lshlrev_b32 v{v_t+2}, 16, v{v_xr+i}"); a.e(f"v_and_b32 v{v_t+3}, 0xffff0000, v{v_xr+i}")
        a.e(f"v_pk_add_f32 {vr(acc+2*i,2)}, {vr(acc+2*i,2)}, {vr(v_t+2,2)}")
        a.e(f"v_cvt_pk_bf16_f32 v{v_xr+i}, v{acc+2*i}, v{acc+2*i+1}")
    a.e(f"s_lshl_b32 s{s_t0}, s{s_tbg}, 5"); a.e(f"s_lshl_b32 s{s_t1}, s{s_cn}, 1"); a.e(f"s_add_u32 s{s_t0}, s{s_t0}, s{s_t1}")
    a.e(f"s_lshl_b32 s{s_t0}, s{s_t0}, 10"); a.e(f"s_add_u32 s{s_t0}, s{s_t0}, {OFF_H}")
    for i in range(2): a.e(f"buffer_store_dwordx4 {vr(v_xr+4*i,4)}, v{v_l16}, {WSS}, s{s_t0} offen offset:{i*1024}{SC1}")
    for i in range(8):
        a.e(f"v_lshlrev_b32 v{v_t+2}, 16, v{v_xr+i}"); a.e(f"v_and_b32 v{v_t+3}, 0xffff0000, v{v_xr+i}")
        if i == 0:
            a.e(f"v_mov_b32 v{v_t+4}, v{v_t+2}"); a.e(f"v_mov_b32 v{v_t+5}, v{v_t+3}"); a.e(f"v_pk_mul_f32 {vr(v_t+6,2)}, {vr(v_t+2,2)}, {vr(v_t+2,2)}")
        else:
            a.e(f"v_pk_add_f32 {vr(v_t+4,2)}, {vr(v_t+4,2)}, {vr(v_t+2,2)}"); a.e(f"v_pk_fma_f32 {vr(v_t+6,2)}, {vr(v_t+2,2)}, {vr(v_t+2,2)}, {vr(v_t+6,2)}")
    a.e(f"v_add_f32 v{v_t}, v{v_t+4}, v{v_t+5}"); a.e(f"v_add_f32 v{v_t+1}, v{v_t+6}, v{v_t+7}")
    xhalf_sum(a, v_t, v_t+3); xhalf_sum(a, v_t+1, v_t+4)
    a.e(f"s_lshl_b32 s{s_t0}, s{s_tbg}, 8"); a.e(f"s_lshl_b32 s{s_t1}, s{s_cn}, 14"); a.e(f"s_add_u32 s{s_t0}, s{s_t0}, s{s_t1}")
    a.e(f"s_add_u32 s{s_t0}, s{s_t0}, {OFF_ST2}")
    a.e(f"v_and_b32 v{v_t+2}, 31, v0"); a.e(f"v_lshlrev_b32 v{v_t+2}, 3, v{v_t+2}")
    a.e("v_cmp_gt_u32 vcc, 32, v0")
    a.e(f"s_and_saveexec_b64 s[{s_c0}:{s_c0+1}], vcc")
    a.e(f"buffer_store_dwordx2 {vr(v_t,2)}, v{v_t+2}, {WSS}, s{s_t0} offen{SC1}")
    a.e(f"s_mov_b64 exec, s[{s_c0}:{s_c0+1}]")
    T(5); T.real(14); T.dump(S_WS, s_w, v_t+4)
    a.lab("P2_DONE")
    return max(H.hi, V.hi), v_xr

def phase3(a, dbg, opt):
    T = Stamps(a, dbg, 2)
    NWG = 224
    STAT = 0; CSX = 1024
    RB = 8192; XB = 16384; SLOT = 49152; NST = 3; NSTG = 8
    SRD_G, SRD_U = SRD_B, SRD_C
    s_rb, s_cg, s_rot = 56, 57, 58
    T.real(15); T(0)
    a.e(f"s_and_b32 s{s_t0}, s2, 7"); a.e(f"s_lshr_b32 s{s_t1}, s2, 3")
    a.e(f"s_and_b32 s{s_rb}, s{s_t0}, 3"); a.e(f"s_lshl_b32 s{s_rb}, s{s_rb}, 2"); a.e(f"s_and_b32 s{s_t2}, s{s_t1}, 3"); a.e(f"s_add_u32 s{s_rb}, s{s_rb}, s{s_t2}")
    a.e(f"s_lshr_b32 s{s_cg}, s{s_t0}, 2"); a.e(f"s_mul_i32 s{s_cg}, s{s_cg}, 7"); a.e(f"s_lshr_b32 s{s_t2}, s{s_t1}, 2"); a.e(f"s_add_u32 s{s_cg}, s{s_cg}, s{s_t2}")
    a.e(f"s_and_b32 s{s_rot}, s{s_t1}, 3"); a.e(f"s_lshl_b32 s{s_rot}, s{s_rot}, 1"); a.e(f"s_add_u32 s{s_rot}, s{s_rot}, s{s_t2}"); a.e(f"s_and_b32 s{s_rot}, s{s_rot}, 7")
    def producers(a, v):
        a.e(f"v_and_b32 v{v+1}, 1, v0"); a.e(f"s_lshl_b32 s{s_t2}, s{s_rb}, 1"); a.e(f"v_add_u32 v{v+1}, s{s_t2}, v{v+1}")
        a.e(f"v_bfe_u32 v{v}, v0, 1, 3"); a.e(f"v_lshlrev_b32 v{v}, 2, v{v}"); a.e(f"v_and_b32 v{v+2}, 3, v{v+1}"); a.e(f"v_or_b32 v{v}, v{v}, v{v+2}")
        a.e(f"v_lshlrev_b32 v{v}, 3, v{v}"); a.e(f"v_lshrrev_b32 v{v+1}, 2, v{v+1}"); a.e(f"v_or_b32 v{v}, v{v}, v{v+1}")
    a.e(f"s_cmp_ge_u32 s{s_w}, 4")
    a.e("s_cbranch_scc0 P3_CONS")
    H = VAlloc(2)
    v_dum = H(1); v_l16 = H(1); v_g = H(1); v_u = H(1); v_st = H(16, 4); v_t = H(8, 2); v_cp = H(16, 4)
    signal(a, 1, v_t, "2H", pub=False)
    a.e(f"s_cmp_ge_u32 s2, {NWG}"); a.e("s_cbranch_scc1 P3_DONE")
    a.e(f"v_lshlrev_b32 v{v_l16}, 4, v0")
    a.e(f"v_lshrrev_b32 v{v_t}, 4, v0"); a.e(f"v_bfe_u32 v{v_t+1}, v0, 1, 3"); a.e(f"v_xor_b32 v{v_t+1}, v{v_t+1}, v{v_t}")
    a.e(f"v_mul_u32_u24 v{v_t+2}, 3584, v{v_t}"); a.e(f"v_and_b32 v{v_t+3}, 1, v0"); a.e(f"v_lshl_add_u32 v{v_t+2}, v{v_t+3}, 4, v{v_t+2}")
    a.e(f"v_lshl_add_u32 v{v_g}, v{v_t+1}, 5, v{v_t+2}"); a.e(f"v_xor_b32 v{v_t+1}, 4, v{v_t+1}"); a.e(f"v_lshl_add_u32 v{v_u}, v{v_t+1}, 5, v{v_t+2}")
    srd(a, SRD_G, S_WG, 512*3584); srd(a, SRD_U, S_WU, 512*3584)
    VM = Cnt(a, "vmcnt", 63)
    s_xb, s_wb, s_xl, s_wl, s_kx, s_kw, s_xo, s_wo = 59, 60, 61, 62, 63, 3, 27, 50
    a.e(f"s_lshl_b32 s{s_xb}, s{s_rb}, 2"); a.e(f"s_add_u32 s{s_xb}, s{s_xb}, s{s_j}")
    a.e(f"s_lshl_b32 s{s_xb}, s{s_xb}, 15"); a.e(f"s_add_u32 s{s_xb}, s{s_xb}, {OFF_H}")
    a.e(f"s_mul_i32 s{s_wb}, s{s_j}, {16*3584}"); a.e(f"s_lshl_b32 s{s_t2}, s{s_cg}, 8"); a.e(f"s_add_u32 s{s_wb}, s{s_wb}, s{s_t2}")
    a.e(f"s_lshl_b32 s{s_xl}, s{s_j}, 12")
    a.e(f"s_lshl_b32 s{s_wl}, s{s_j}, 12"); a.e(f"s_add_u32 s{s_wl}, s{s_wl}, {XB}")
    a.e(f"s_mov_b32 s{s_kx}, s{s_rot}"); a.e(f"s_mov_b32 s{s_kw}, s{s_rot}")
    def issue_x(st):
        slot = st % NST
        a.e(f"s_lshl_b32 s{s_xo}, s{s_kx}, 12"); a.e(f"s_add_u32 s{s_xo}, s{s_xo}, s{s_xb}")
        a.e(f"s_add_u32 m0, s{s_xl}, {RB+slot*SLOT}")
        a.e(f"s_add_u32 s{s_kx}, s{s_kx}, 1")
        for i in range(4):
            VM.op(f"buffer_load_dwordx4 v{v_l16}, {WSS}, s{s_xo} offen offset:{i*1024}{SC1} lds", ("st", st))
        a.e(f"s_and_b32 s{s_kx}, s{s_kx}, 7")
    def issue_w(st):
        slot = st % NST
        a.e(f"s_mul_i32 s{s_wo}, s{s_kw}, {64*3584}"); a.e(f"s_add_u32 s{s_wo}, s{s_wo}, s{s_wb}")
        a.e(f"s_add_u32 s{s_kw}, s{s_kw}, 1"); a.e(f"s_and_b32 s{s_kw}, s{s_kw}, 7")
        for i in range(4):
            a.e(f"s_add_u32 m0, s{s_wl}, {RB+slot*SLOT+i*1024}"); a.e("s_nop 0")
            VM.op(f"buffer_load_dwordx4 v{v_g}, {srd_s(SRD_G)}, s{s_wo} offen lds", ("st", st))
            a.e(f"s_add_u32 m0, s{s_wl}, {RB+slot*SLOT+16384+i*1024}"); a.e("s_nop 0")
            VM.op(f"buffer_load_dwordx4 v{v_u}, {srd_s(SRD_U)}, s{s_wo} offen lds", ("st", st))
            if i < 3: a.e(f"s_add_u32 s{s_wo}, s{s_wo}, {4*3584}")
    for st in range(NST): issue_w(st)
    waitflags(a, 1, v_t, "2H", producers, poller=False)
    T(1)
    for st in range(2): issue_x(st)
    nx = 2; nw = NST
    def load_stats():
        a.e(f"v_and_b32 v{v_t}, 15, v0"); a.e(f"v_lshlrev_b32 v{v_t}, 4, v{v_t}")
        a.e(f"v_lshrrev_b32 v{v_t+1}, 4, v0"); a.e(f"v_lshl_add_u32 v{v_t}, v{v_t+1}, 16, v{v_t}")
        a.e(f"s_lshl_b32 s{s_t0}, s{s_rb}, 2"); a.e(f"s_add_u32 s{s_t0}, s{s_t0}, s{s_j}"); a.e(f"s_lshl_b32 s{s_t0}, s{s_t0}, 8"); a.e(f"s_add_u32 s{s_t0}, s{s_t0}, {OFF_ST2}")
        for i in range(4):
            VM.op(f"buffer_load_dwordx4 {vr(v_st+4*i,4)}, v{v_t}, {WSS}, s{s_t0} offen{SC1}", "stat")
            if i < 3: a.e(f"s_add_u32 s{s_t0}, s{s_t0}, 16384")
        a.e(f"v_and_b32 v{v_t+2}, 31, v0"); a.e(f"v_lshlrev_b32 v{v_t+2}, 4, v{v_t+2}")
        a.e(f"v_lshrrev_b32 v{v_t+3}, 5, v0"); a.e(f"v_mul_u32_u24 v{v_t+3}, {1792*4}, v{v_t+3}"); a.e(f"v_add_u32 v{v_t+2}, v{v_t+2}, v{v_t+3}")
        a.e(f"s_mul_i32 s{s_t1}, s{s_j}, {4*3584*4}"); a.e(f"s_lshl_b32 s{s_t2}, s{s_cg}, 9"); a.e(f"s_add_u32 s{s_t1}, s{s_t1}, s{s_t2}"); a.e(f"s_add_u32 s{s_t1}, s{s_t1}, {OFF_CS}")
        for i in range(4):
            VM.op(f"buffer_load_dwordx4 {vr(v_cp+4*i,4)}, v{v_t+2}, {WSS}, s{s_t1} offen{SC1}", "stat")
            if i < 3: a.e(f"s_add_u32 s{s_t1}, s{s_t1}, {3584*4}")
    def process_stats():
        VM.need("stat")
        for i in range(1, 4):
            a.e(f"v_pk_add_f32 {vr(v_cp,2)}, {vr(v_cp,2)}, {vr(v_cp+4*i,2)}"); a.e(f"v_pk_add_f32 {vr(v_cp+2,2)}, {vr(v_cp+2,2)}, {vr(v_cp+4*i+2,2)}")
            a.e(f"v_pk_add_f32 {vr(v_st,2)}, {vr(v_st,2)}, {vr(v_st+4*i,2)}"); a.e(f"v_pk_add_f32 {vr(v_st+2,2)}, {vr(v_st+2,2)}, {vr(v_st+4*i+2,2)}")
        a.e(f"v_lshlrev_b32 v{v_t+2}, 6, v0"); a.e(f"s_lshl_b32 s{s_t1}, s{s_j}, 2"); a.e(f"v_add_u32 v{v_t+2}, s{s_t1}, v{v_t+2}")
        for e in range(4): a.e(f"ds_write_b32 v{v_t+2}, v{v_cp+e} offset:{CSX+16*e}")
        for op in ("v_permlane16_swap_b32", "v_permlane32_swap_b32"):
            for e in range(4): a.e(f"v_mov_b32 v{v_st+4+e}, v{v_st+e}")
            a.e("s_nop 1")
            for e in range(4): a.e(f"{op} v{v_st+e}, v{v_st+4+e}")
            a.e("s_nop 1")
            for e in range(4): a.e(f"v_add_f32 v{v_st+e}, v{v_st+e}, v{v_st+4+e}")
        for e in (0, 2): finish_stats(a, v_st+e, v_st+e+1)
        a.e(f"v_and_b32 v{v_t}, 15, v0"); a.e(f"v_lshlrev_b32 v{v_t}, 4, v{v_t}")
        a.e(f"s_lshl_b32 s{s_t2}, s{s_j}, 8"); a.e(f"v_add_u32 v{v_t}, s{s_t2}, v{v_t}")
        a.e(f"ds_write_b128 v{v_t}, {vr(v_st,4)} offset:{STAT}")
    for s in range(NSTG):
        VM.need(("st", s))
        a.e("s_barrier")
        T(2+s)
        lim = min(NSTG - 1, s - 1 + NST)
        while nx <= lim:
            issue_x(nx); nx += 1
            while nw < nx:
                issue_w(nw); nw += 1
        if s == 3: load_stats()
        if s == NSTG - NST and opt.get("pfwd", True):
            srd(a, 52, S_WD, 1792*1024)
            a.e(f"v_lshlrev_b32 v{v_t+4}, 7, v0")
            a.e(f"s_lshr_b32 s{s_t1}, s2, 3"); a.e(f"s_lshl_b32 s{s_t1}, s{s_t1}, 2"); a.e(f"s_add_u32 s{s_t1}, s{s_t1}, s{s_j}")
            touch_contig(a, 52, 0, 128, s_t1, v_t+4, 255, s_t2, VM)
        if s == NSTG - 1:
            process_stats(); a.e("s_waitcnt lgkmcnt(0)")
    a.e("s_barrier")
    T(10); T.real(14); T.dump(S_WS, s_w, v_t)
    a.e("s_branch P3_DONE")
    a.lab("P3_CONS")
    C = VAlloc(2)
    acc = C(128, 4); fxr = C(16, 4); fw = C(32, 4)
    v_xa = C(1); v_wa = C(4); v_l16 = C(1)
    v_t = C(8, 4); aux = C(4, 4); auw = C(16, 4); st = C(4, 2); P = C(8, 4); csr = C(16, 4); cc = C(4, 2)
    s_tbp, s_fh, s_hb = 59, 60, 61
    signal(a, 1, v_t, "2C")
    a.e(f"s_cmp_ge_u32 s2, {NWG}"); a.e("s_cbranch_scc1 P3_DONE")
    a.e(f"s_and_b32 s{s_tbp}, s{s_w}, 1"); a.e(f"s_lshr_b32 s{s_fh}, s{s_w}, 1")
    a.e(f"v_lshlrev_b32 v{v_l16}, 4, v0")
    a.e(f"s_lshl_b32 s{s_t0}, s{s_tbp}, 13"); a.e(f"s_add_u32 s{s_t0}, s{s_t0}, {RB}")
    a.e(f"v_add_u32 v{v_xa}, s{s_t0}, v{v_l16}")
    a.e(f"v_bfe_u32 v{v_t}, v0, 2, 2"); a.e(f"v_lshrrev_b32 v{v_t+1}, 5, v0"); a.e(f"v_lshl_add_u32 v{v_t+1}, v{v_t+1}, 3, v{v_t}")
    a.e(f"v_lshlrev_b32 v{v_t+1}, 8, v{v_t+1}"); a.e(f"v_bfe_u32 v{v_t+2}, v0, 1, 1"); a.e(f"v_lshl_add_u32 v{v_t+1}, v{v_t+2}, 14, v{v_t+1}")
    a.e(f"v_lshl_or_b32 v{v_t+2}, v{v_t+2}, 2, v{v_t}"); a.e(f"v_lshl_add_u32 v{v_t+1}, v{v_t+2}, 5, v{v_t+1}")
    a.e(f"v_and_b32 v{v_t+2}, 1, v0"); a.e(f"v_lshl_add_u32 v{v_t+1}, v{v_t+2}, 4, v{v_t+1}")
    a.e(f"v_bfe_u32 v{v_t+2}, v0, 4, 1"); a.e(f"v_lshl_add_u32 v{v_t+1}, v{v_t+2}, 3, v{v_t+1}")
    a.e(f"s_lshl_b32 s{s_t0}, s{s_fh}, 2")
    for lt in range(4):
        a.e(f"s_add_u32 s{s_t1}, s{s_t0}, {lt}"); a.e(f"s_lshl_b32 s{s_t1}, s{s_t1}, 5")
        a.e(f"v_xor_b32 v{v_wa+lt}, s{s_t1}, v{v_t+1}"); a.e(f"v_add_u32 v{v_wa+lt}, {RB+XB}, v{v_wa+lt}")
    for i in range(128): a.e(f"v_mov_b32 v{acc+i}, 0")
    waitflags(a, 1, v_t, "2C", producers, nlanes=16)
    LG = Cnt(a, "lgkmcnt", 15)
    def reads(s, t):
        p = t & 1; out = []
        for tbl in range(2):
            out.append(lambda tbl=tbl: LG.op(f"ds_read_b128 {vr(fxr+8*p+4*tbl,4)}, v{v_xa} offset:{tbl*4096+t*1024}", ("x", s, t, tbl)))
        for lt in range(4):
            for k in range(2):
                out.append(lambda lt=lt, k=k: LG.op(f"ds_read_b64_tr_b16 {vr(fw+16*p+4*lt+2*k,2)}, v{v_wa+lt} offset:{t*4096+k*1024}", ("w", s, t, lt)))
        return [out[0], out[2], out[3], out[1]] + out[4:]
    def step(s, t, nxt):
        p = t & 1
        mf = []
        for lt in range(4):
            for tbl in range(2):
                def m(lt=lt, tbl=tbl):
                    LG.need(("x", s, t, tbl), ("w", s, t, lt))
                    d = acc + 16*(lt*2+tbl)
                    a.e(f"{MF} {vr(d,16)}, {vr(fw+16*p+4*lt,4)}, {vr(fxr+8*p+4*tbl,4)}, {vr(d,16)}")
                mf.append(m)
        if t < 3:
            fill = nxt; k = 0
            for i, m in enumerate(mf):
                m()
                upto = (len(fill) * (i + 1) + 7) // 8
                while k < upto: fill[k](); k += 1
        else:
            for i in range(3): mf[i]()
            if nxt is not None:
                LG.drain()
                a.e("s_barrier")
                delta = SLOT if (s + 1) % NST != 0 else -(NST - 1) * SLOT
                a.e(f"v_add_u32 v{v_xa}, {delta & 0xffffffff:#x}, v{v_xa}")
                for lt in range(4): a.e(f"v_add_u32 v{v_wa+lt}, {delta & 0xffffffff:#x}, v{v_wa+lt}")
            k = 0; fill = nxt or []
            for i in range(3, 8):
                mf[i]()
                upto = (len(fill) * (i - 2) + 4) // 5
                while k < upto: fill[k](); k += 1
    T(1)
    a.e("s_barrier")
    T(2)
    for f in reads(0, 0): f()
    for s in range(NSTG):
        for t in range(4):
            nx_ = reads(s, t + 1) if t < 3 else (reads(s + 1, 0) if s + 1 < NSTG else None)
            step(s, t, nx_)
    T(3)
    a.e("s_barrier")
    T(4)
    a.e(f"v_bfe_u32 v{v_t}, v0, 3, 1"); a.e(f"v_lshlrev_b32 v{v_t}, 7, v{v_t}")
    a.e(f"v_bfe_u32 v{v_t+1}, v0, 2, 1"); a.e(f"v_lshl_add_u32 v{v_t}, v{v_t+1}, 3, v{v_t}")
    a.e(f"v_bfe_u32 v{v_t+1}, v0, 4, 1"); a.e(f"v_lshl_add_u32 v{v_t}, v{v_t+1}, 2, v{v_t}")
    a.e(f"v_and_b32 v{v_t+1}, 3, v0"); a.e(f"v_add_u32 v{v_t}, v{v_t}, v{v_t+1}"); a.e(f"v_lshlrev_b32 v{v_t}, 4, v{v_t}")
    a.e(f"s_lshl_b32 s{s_t0}, s{s_fh}, 2")
    for lt in range(4):
        a.e(f"s_add_u32 s{s_t1}, s{s_t0}, {lt}"); a.e(f"s_lshl_b32 s{s_t1}, s{s_t1}, 8"); a.e(f"v_add_u32 v{v_t+1}, s{s_t1}, v{v_t}")
        a.e(f"ds_read_b128 {vr(csr+4*lt,4)}, v{v_t+1} offset:{CSX}")
    a.e(f"v_and_b32 v{v_t}, 31, v0"); a.e(f"v_lshlrev_b32 v{v_t}, 3, v{v_t}")
    a.e(f"s_lshl_b32 s{s_t1}, s{s_tbp}, 9"); a.e(f"v_add_u32 v{v_t}, s{s_t1}, v{v_t}")
    a.e(f"ds_read_b64 {vr(st,2)}, v{v_t} offset:{STAT}"); a.e(f"ds_read_b64 {vr(st+2,2)}, v{v_t} offset:{STAT+256}")
    a.e("v_cmp_gt_u32 vcc, 32, v0")
    for lt in range(4): a.e(f"v_mov_b32 v{auw+4*lt+2}, 0"); a.e(f"v_mov_b32 v{auw+4*lt+3}, 0")
    a.e(f"v_mov_b32 v{aux+2}, 0"); a.e(f"v_mov_b32 v{aux+3}, 0")
    a.e("s_waitcnt lgkmcnt(0)")
    for lt in range(4):
        src = csr + 4*lt
        a.e(f"v_add_f32 v{src}, v{src}, v{src+1}"); a.e(f"v_add_f32 v{src+2}, v{src+2}, v{src+3}"); a.e(f"v_add_f32 v{src}, v{src}, v{src+2}")
        a.e(f"v_cndmask_b32 v{src}, 0, v{src}, vcc")
        split_aug_w(a, src, auw+4*lt, v_t+4)
    for tbl in range(2):
        a.e(f"v_cndmask_b32 v{v_t+5}, 0, v{st+2*tbl}, vcc"); a.e(f"v_sub_f32 v{v_t+5}, 0, v{v_t+5}")
        split_aug_x(a, v_t+5, aux, v_t+4)
        a.e("s_nop 1")
        for lt in range(4):
            d = acc + 16*(lt*2+tbl)
            a.e(f"{MF} {vr(d,16)}, {vr(auw+4*lt,4)}, {vr(aux,4)}, {vr(d,16)}")
        if tbl == 0: a.e("s_nop 3")
    for tbl in range(2):
        a.e(f"v_mul_f32 v{cc+2*tbl}, {fx(-LOG2E)}, v{st+2*tbl+1}"); a.e(f"v_mov_b32 v{cc+2*tbl+1}, v{st+2*tbl+1}")
    a.e(f"s_lshl_b32 s{s_hb}, s{s_rb}, 2"); a.e(f"s_lshl_b32 s{s_t1}, s{s_tbp}, 1"); a.e(f"s_add_u32 s{s_hb}, s{s_hb}, s{s_t1}")
    a.e(f"s_mul_i32 s{s_hb}, s{s_hb}, 112"); a.e(f"s_lshl_b32 s{s_t1}, s{s_cg}, 3"); a.e(f"s_add_u32 s{s_hb}, s{s_hb}, s{s_t1}")
    a.e(f"s_add_u32 s{s_hb}, s{s_hb}, s{s_t0}")
    a.e(f"s_lshl_b32 s{s_hb}, s{s_hb}, 10"); a.e(f"s_add_u32 s{s_hb}, s{s_hb}, {OFF_HH}")
    a.e("s_nop 7")
    T(5)
    for tbl in range(2):
        for lt in range(4):
            d = acc + 16*(lt*2+tbl)
            pk = P + 4*((tbl*4+lt) & 1)
            gp = [d, d+2, d+8, d+10]; up = [d+4, d+6, d+12, d+14]
            for g in gp: a.e(f"v_pk_mul_f32 {vr(g,2)}, {vr(g,2)}, {vr(cc+2*tbl,2)} op_sel_hi:[1,0]")
            for g in gp: a.e(f"v_exp_f32 v{g}, v{g}"); a.e(f"v_exp_f32 v{g+1}, v{g+1}")
            for u in up: a.e(f"v_pk_mul_f32 {vr(u,2)}, {vr(u,2)}, {vr(cc+2*tbl,2)} op_sel:[0,1]")
            for g in gp: a.e(f"v_pk_add_f32 {vr(g,2)}, {vr(g,2)}, 1.0 op_sel_hi:[1,0]")
            for g in gp: a.e(f"v_rcp_f32 v{g}, v{g}"); a.e(f"v_rcp_f32 v{g+1}, v{g+1}")
            a.e("s_nop 0")
            for g, u in zip(gp, up): a.e(f"v_pk_mul_f32 {vr(g,2)}, {vr(g,2)}, {vr(u,2)}")
            for i, g in enumerate(gp): a.e(f"v_cvt_pk_bf16_f32 v{pk+i}, v{g}, v{g+1}")
            a.e(f"s_add_u32 s{s_t1}, s{s_hb}, {lt*1024 + tbl*112*1024}")
            a.e(f"buffer_store_dwordx4 {vr(pk,4)}, v{v_l16}, {WSS}, s{s_t1} offen{SC1}")
    T(6); T.real(14); T.dump(S_WS, s_w, v_t)
    a.lab("P3_DONE")
    return max(H.hi, C.hi)

def phase4(a, dbg, opt):
    T = Stamps(a, dbg, 3)
    RB = 8192; XB = 16384; SLOT = 32768; NST = 4; NSTG = 14
    SRD_W, SRD_O = SRD_B, SRD_C
    s_rb, s_cb, s_rot = 56, 57, 58
    T.real(15); T(0)
    a.e(f"s_and_b32 s{s_t0}, s2, 7"); a.e(f"s_lshr_b32 s{s_t1}, s2, 3")
    a.e(f"s_lshl_b32 s{s_rb}, s{s_t0}, 2"); a.e(f"s_and_b32 s{s_t2}, s{s_t1}, 3"); a.e(f"s_add_u32 s{s_rb}, s{s_rb}, s{s_t2}")
    a.e(f"s_lshr_b32 s{s_cb}, s{s_t1}, 2")
    a.e(f"s_and_b32 s{s_rot}, s{s_t1}, 3"); a.e(f"s_mul_i32 s{s_rot}, s{s_rot}, 2"); a.e(f"s_add_u32 s{s_rot}, s{s_rot}, s{s_cb}")
    def producers(a, v):
        a.e(f"s_lshr_b32 s{s_t2}, s{s_rb}, 1")
        a.e(f"v_cmp_lt_u32 vcc, 6, v0"); a.e(f"v_mov_b32 v{v+1}, 0"); a.e(f"v_mov_b32 v{v+2}, 1"); a.e(f"v_cndmask_b32 v{v+1}, v{v+1}, v{v+2}, vcc")
        a.e(f"v_mul_u32_u24 v{v+2}, 7, v{v+1}"); a.e(f"v_sub_u32 v{v}, v0, v{v+2}")
        a.e(f"v_lshlrev_b32 v{v}, 2, v{v}"); a.e(f"s_and_b32 s{s_t3}, s{s_t2}, 3"); a.e(f"v_or_b32 v{v}, s{s_t3}, v{v}")
        a.e(f"v_lshlrev_b32 v{v}, 3, v{v}"); a.e(f"v_lshlrev_b32 v{v+1}, 2, v{v+1}"); a.e(f"s_lshr_b32 s{s_t3}, s{s_t2}, 2")
        a.e(f"v_or_b32 v{v}, v{v}, v{v+1}"); a.e(f"v_or_b32 v{v}, s{s_t3}, v{v}")
        a.e(f"v_min_u32 v{v}, 255, v{v}")
    a.e(f"s_cmp_ge_u32 s{s_w}, 4")
    a.e("s_cbranch_scc0 P4_CONS")
    H = VAlloc(2)
    v_l16 = H(1); v_wd = H(1); v_t = H(4)
    signal(a, 2, v_t, "3H", pub=False)
    a.e(f"v_lshlrev_b32 v{v_l16}, 4, v0")
    a.e(f"v_lshrrev_b32 v{v_t}, 3, v0"); a.e(f"v_lshlrev_b32 v{v_t}, 10, v{v_t}")
    a.e(f"v_bfe_u32 v{v_t+1}, v0, 4, 1"); a.e(f"v_lshlrev_b32 v{v_t+1}, 2, v{v_t+1}")
    a.e(f"v_and_b32 v{v_t+2}, 7, v0"); a.e(f"v_xor_b32 v{v_t+1}, v{v_t+1}, v{v_t+2}")
    a.e(f"v_lshl_add_u32 v{v_wd}, v{v_t+1}, 4, v{v_t}")
    srd(a, SRD_W, S_WD, 1792*1024)
    VM = Cnt(a, "vmcnt", 63)
    s_xb, s_wb, s_xl, s_wl, s_kx, s_kw, s_xo, s_wo = 59, 60, 61, 62, 63, 3, 27, 50
    a.e(f"s_and_b32 s{s_t0}, s{s_j}, 1"); a.e(f"s_lshr_b32 s{s_t1}, s{s_j}, 1")
    a.e(f"s_lshl_b32 s{s_xb}, s{s_rb}, 1"); a.e(f"s_add_u32 s{s_xb}, s{s_xb}, s{s_t0}")
    a.e(f"s_mul_i32 s{s_xb}, s{s_xb}, {112*1024}"); a.e(f"s_lshl_b32 s{s_t2}, s{s_t1}, 12"); a.e(f"s_add_u32 s{s_xb}, s{s_xb}, s{s_t2}")
    a.e(f"s_add_u32 s{s_xb}, s{s_xb}, {OFF_HH}")
    a.e(f"s_lshl_b32 s{s_xl}, s{s_t0}, 13"); a.e(f"s_add_u32 s{s_xl}, s{s_xl}, s{s_t2}")
    a.e(f"s_lshl_b32 s{s_wb}, s{s_j}, 15"); a.e(f"s_lshl_b32 s{s_t2}, s{s_cb}, 7"); a.e(f"s_add_u32 s{s_wb}, s{s_wb}, s{s_t2}")
    a.e(f"s_lshl_b32 s{s_wl}, s{s_j}, 12"); a.e(f"s_add_u32 s{s_wl}, s{s_wl}, {XB}")
    a.e(f"s_mov_b32 s{s_kx}, s{s_rot}"); a.e(f"s_mov_b32 s{s_kw}, s{s_rot}")
    def issue_x(st):
        slot = st % NST
        a.e(f"s_lshl_b32 s{s_xo}, s{s_kx}, 13"); a.e(f"s_add_u32 s{s_xo}, s{s_xo}, s{s_xb}")
        a.e(f"s_add_u32 m0, s{s_xl}, {RB+slot*SLOT}")
        a.e(f"s_add_u32 s{s_kx}, s{s_kx}, 1")
        for i in range(4): VM.op(f"buffer_load_dwordx4 v{v_l16}, {WSS}, s{s_xo} offen offset:{i*1024}{SC1} lds", ("st", st))
        a.e(f"s_cmp_eq_u32 s{s_kx}, {NSTG}"); a.e(f"s_cselect_b32 s{s_kx}, 0, s{s_kx}")
    def issue_w(st):
        slot = st % NST
        a.e(f"s_lshl_b32 s{s_wo}, s{s_kw}, 17"); a.e(f"s_add_u32 s{s_wo}, s{s_wo}, s{s_wb}")
        a.e(f"s_add_u32 s{s_kw}, s{s_kw}, 1"); a.e(f"s_cmp_eq_u32 s{s_kw}, {NSTG}"); a.e(f"s_cselect_b32 s{s_kw}, 0, s{s_kw}")
        for i in range(4):
            a.e(f"s_add_u32 m0, s{s_wl}, {RB+slot*SLOT+i*1024}"); a.e("s_nop 0")
            VM.op(f"buffer_load_dwordx4 v{v_wd}, {srd_s(SRD_W)}, s{s_wo} offen lds", ("st", st))
            if i < 3: a.e(f"s_add_u32 s{s_wo}, s{s_wo}, 8192")
    for st in range(NST): issue_w(st)
    waitflags(a, 2, v_t, "3H", producers, poller=False)
    T(1)
    for st in range(2): issue_x(st)
    nx = 2; nw = NST
    for s in range(NSTG):
        VM.need(("st", s))
        a.e("s_barrier")
        if s < 8: T(2+s)
        lim = min(NSTG - 1, s - 1 + NST, s + 2)
        while nx <= lim:
            issue_x(nx); nx += 1
            while nw < nx:
                issue_w(nw); nw += 1
    T(10); T.real(14); T.dump(S_WS, s_w, v_t)
    a.e("s_endpgm")
    a.lab("P4_CONS")
    C = VAlloc(2)
    acc = C(16, 4); fxr = C(16, 4); fw = C(16, 4)
    v_xa = C(1); v_wa = C(1); v_l16 = C(1); v_t = C(8, 4); v_h = C(8, 4)
    s_tb, s_nb, s_cn, s_oo = 59, 60, 61, 62
    signal(a, 2, v_t, "3C")
    a.e(f"s_and_b32 s{s_tb}, s{s_w}, 1"); a.e(f"s_lshr_b32 s{s_nb}, s{s_w}, 1")
    a.e(f"v_lshlrev_b32 v{v_l16}, 4, v0")
    a.e(f"s_lshl_b32 s{s_t0}, s{s_tb}, 13"); a.e(f"s_add_u32 s{s_t0}, s{s_t0}, {RB}"); a.e(f"v_add_u32 v{v_xa}, s{s_t0}, v{v_l16}")
    a.e(f"v_lshrrev_b32 v{v_t}, 5, v0"); a.e(f"v_lshlrev_b32 v{v_t}, 3, v{v_t}")
    a.e(f"v_bfe_u32 v{v_t+1}, v0, 2, 2"); a.e(f"v_add_u32 v{v_t}, v{v_t}, v{v_t+1}"); a.e(f"v_lshlrev_b32 v{v_t}, 7, v{v_t}")
    a.e(f"v_bfe_u32 v{v_t+1}, v0, 3, 1"); a.e(f"v_lshl_add_u32 v{v_t}, v{v_t+1}, 6, v{v_t}")
    a.e(f"v_bfe_u32 v{v_t+1}, v0, 4, 1"); a.e(f"v_lshl_add_u32 v{v_t}, v{v_t+1}, 5, v{v_t}")
    a.e(f"v_and_b32 v{v_t+1}, 1, v0"); a.e(f"v_lshl_add_u32 v{v_t}, v{v_t+1}, 4, v{v_t}")
    a.e(f"v_bfe_u32 v{v_t+1}, v0, 1, 1"); a.e(f"v_lshl_add_u32 v{v_t}, v{v_t+1}, 3, v{v_t}")
    a.e(f"s_lshl_b32 s{s_t0}, s{s_nb}, 6"); a.e(f"v_xor_b32 v{v_wa}, s{s_t0}, v{v_t}"); a.e(f"v_add_u32 v{v_wa}, {RB+XB}, v{v_wa}")
    for i in range(16): a.e(f"v_mov_b32 v{acc+i}, 0")
    srd(a, SRD_O, S_OUT, 2048*1024)
    a.e(f"s_lshl_b32 s{s_t0}, s{s_rb}, 1"); a.e(f"s_add_u32 s{s_t0}, s{s_t0}, s{s_tb}")
    a.e(f"s_lshl_b32 s{s_cn}, s{s_cb}, 1"); a.e(f"s_add_u32 s{s_cn}, s{s_cn}, s{s_nb}")
    a.e(f"s_lshl_b32 s{s_t1}, s{s_t0}, 5"); a.e(f"s_lshl_b32 s{s_t2}, s{s_cn}, 1"); a.e(f"s_add_u32 s{s_t1}, s{s_t1}, s{s_t2}")
    a.e(f"s_lshl_b32 s{s_t1}, s{s_t1}, 10"); a.e(f"s_add_u32 s{s_t1}, s{s_t1}, {OFF_H}")
    for i in range(2): a.e(f"buffer_load_dwordx4 {vr(v_h+4*i,4)}, v{v_l16}, {WSS}, s{s_t1} offen offset:{i*1024}{SC1}")
    a.e(f"s_lshl_b32 s{s_oo}, s{s_t0}, 15"); a.e(f"s_lshl_b32 s{s_t2}, s{s_cn}, 6"); a.e(f"s_add_u32 s{s_oo}, s{s_oo}, s{s_t2}")
    waitflags(a, 2, v_t, "3C", producers, nlanes=14)
    LG = Cnt(a, "lgkmcnt", 15)
    NSTEP = NSTG * 8; DEPTH = 3
    def rd(g):
        s, t = divmod(g, 8); p = g & 3
        LG.op(f"ds_read_b128 {vr(fxr+4*p,4)}, v{v_xa} offset:{t*1024}", ("f", g))
        LG.op(f"ds_read_b64_tr_b16 {vr(fw+4*p,2)}, v{v_wa} offset:{t*2048}", ("f", g))
        LG.op(f"ds_read_b64_tr_b16 {vr(fw+4*p+2,2)}, v{v_wa} offset:{t*2048+512}", ("f", g))
    def cross(s):
        LG.drain()
        a.e("s_barrier")
        delta = SLOT if s % NST != 0 else -(NST - 1) * SLOT
        a.e(f"v_add_u32 v{v_xa}, {delta & 0xffffffff:#x}, v{v_xa}"); a.e(f"v_add_u32 v{v_wa}, {delta & 0xffffffff:#x}, v{v_wa}")
    T(1)
    a.e("s_barrier")
    T(2)
    for g in range(DEPTH): rd(g)
    for g in range(NSTEP):
        n = g + DEPTH
        if n < NSTEP:
            if n % 8 == 0: cross(n // 8)
            rd(n)
        LG.need(("f", g))
        p = g & 3
        a.e(f"{MF} {vr(acc,16)}, {vr(fw+4*p,4)}, {vr(fxr+4*p,4)}, {vr(acc,16)}")
    T(3)
    a.e("s_waitcnt vmcnt(0)")
    a.e("s_nop 7"); a.e("s_nop 3")
    for i in range(8):
        a.e(f"v_lshlrev_b32 v{v_t}, 16, v{v_h+i}"); a.e(f"v_and_b32 v{v_t+1}, 0xffff0000, v{v_h+i}")
        a.e(f"v_pk_add_f32 {vr(acc+2*i,2)}, {vr(acc+2*i,2)}, {vr(v_t,2)}")
        a.e(f"v_cvt_pk_bf16_f32 v{v_h+i}, v{acc+2*i}, v{acc+2*i+1}")
    a.e(f"v_and_b32 v{v_t}, 31, v0"); a.e(f"v_lshlrev_b32 v{v_t}, 10, v{v_t}")
    a.e(f"v_lshrrev_b32 v{v_t+1}, 5, v0"); a.e(f"v_lshl_add_u32 v{v_t}, v{v_t+1}, 4, v{v_t}")
    for i in range(2): a.e(f"buffer_store_dwordx4 {vr(v_h+4*i,4)}, v{v_t}, {srd_s(SRD_O)}, s{s_oo} offen offset:{32*i}")
    a.e("s_cmp_eq_u32 s2, 0"); a.e("s_cbranch_scc0 P4_NOEP")
    a.e(f"s_cmp_eq_u32 s{s_w}, 0"); a.e("s_cbranch_scc0 P4_NOEP")
    a.e(f"v_mov_b32 v{v_t+2}, {OFF_NONCE}"); a.e(f"v_mov_b32 v{v_t+3}, s{s_ep}")
    a.e("v_cmp_eq_u32 vcc, 0, v0"); a.e(f"s_and_saveexec_b64 s[{s_c0}:{s_c0+1}], vcc")
    a.e(f"buffer_store_dword v{v_t+3}, v{v_t+2}, {WSS}, 0 offen sc1")
    a.e(f"s_mov_b64 exec, s[{s_c0}:{s_c0+1}]")
    a.lab("P4_NOEP")
    if dbg:
        T(4); a.e("s_waitcnt vmcnt(0)"); T(5); T.real(14); T.dump(S_WS, s_w, v_t+2)
    return max(H.hi, C.hi)

def gen_mega(dbg=False, opt={}):
    a = Asm()
    a.raw(HEADER.rstrip("\n"))
    a.raw("; @launch grid=(256,1,1) block=(512,1,1) lds=163840")
    a.raw('.amdgcn_target "amdgcn-amd-amdhsa--gfx950"')
    kernel_begin(a, KNAME)
    a.e("s_cmp_ge_u32 s2, 256")
    a.e("s_cbranch_scc1 ALL_EXIT")
    a.e("s_load_dwordx8 s[4:11], s[0:1], 0")
    a.e("s_load_dwordx8 s[12:19], s[0:1], 40")
    a.e("s_load_dwordx4 s[20:23], s[0:1], 72")
    a.e("v_lshrrev_b32 v1, 6, v0")
    a.e("v_and_b32 v0, 63, v0")
    a.e(f"v_readfirstlane_b32 s{s_w}, v1")
    a.e("s_nop 3")
    a.e(f"s_and_b32 s{s_j}, s{s_w}, 3")
    n1 = phase1(a, dbg, opt)
    n2, _ = phase2(a, dbg, opt)
    n3 = phase3(a, dbg, opt)
    n4 = phase4(a, dbg, opt)
    a.lab("ALL_EXIT")
    a.e("s_endpgm")
    a.lab("ALL_END")
    nv = max(n1, n2, n3, n4)
    assert nv <= 255, nv
    nv = 256
    kernel_desc(a, KNAME, nv, 102, 256)
    return a.text()

if __name__ == "__main__":
    out = sys.argv[1]; dbg = "dbg" in sys.argv
    opt = {}
    for x in sys.argv[2:]:
        if "=" in x:
            k, v = x.split("="); opt[k] = int(v)
    open(out, "w").write(gen_mega(dbg, opt))
```

```python
import sys
from glib import *

OFF_FLAG = 0x7C0000
OFF_NONCE = 0x7F0000
KNAME = NAME + "_kernel"

S_X, S_WQKV, S_WPHI, S_WO, S_WG, S_WU, S_WD, S_OUT, S_DBG, S_WS = 4, 6, 8, 10, 12, 14, 16, 18, 20, 22
s_w, s_j, s_ep = 24, 25, 26
SRD_WS, SRD_B, SRD_C, SRD_D = 28, 32, 36, 40
s_t0, s_t1, s_t2, s_t3 = 44, 45, 46, 47
s_c0 = 48
WSS = f"s[{SRD_WS}:{SRD_WS+3}]"
SC1 = " sc1"

def srd_s(d): return f"s[{d}:{d+3}]"

def signal(a, ph, vt, tag, pub=True, slot=None):
    a.e("s_waitcnt vmcnt(0)")
    a.e("s_barrier")
    if not pub:
        a.e("s_barrier")
        return
    a.e(f"s_cmp_eq_u32 s{s_w}, 0"); a.e(f"s_cbranch_scc0 SIG{tag}")
    a.e(f"s_lshl_b32 s{s_t0}, s{2 if slot is None else slot}, 7"); a.e(f"s_add_u32 s{s_t0}, s{s_t0}, {OFF_FLAG + ph*32768}")
    a.e(f"v_mov_b32 v{vt}, 0"); a.e(f"v_mov_b32 v{vt+1}, s{s_ep}")
    a.e("v_cmp_eq_u32 vcc, 0, v0"); a.e(f"s_and_saveexec_b64 s[{s_c0}:{s_c0+1}], vcc")
    a.e(f"buffer_store_dword v{vt+1}, v{vt}, {WSS}, s{s_t0} offen sc1")
    a.e(f"s_mov_b64 exec, s[{s_c0}:{s_c0+1}]")
    a.lab(f"SIG{tag}")
    a.e("s_barrier")

def waitflags(a, ph, vt, tag, lane_wg, nper=1, nlanes=64, poller=True):
    if not poller:
        a.e("s_barrier"); return
    a.e(f"s_cmp_eq_u32 s{s_w}, 0"); a.e(f"s_cbranch_scc0 WAI{tag}")
    lane_wg(a, vt)
    a.e(f"v_lshlrev_b32 v{vt}, 7, v{vt}")
    a.e(f"s_mov_b32 s{s_t0}, {OFF_FLAG + ph*32768}")
    a.e(f"s_mov_b32 s{s_t1}, 0")
    def loads(b):
        for k in range(nper):
            if k: a.e(f"s_add_u32 s{s_t2}, s{s_t0}, {k*8192}")
            a.e(f"buffer_load_dword v{b+k}, v{vt}, {WSS}, s{s_t2 if k else s_t0} offen sc1")
    def check(b):
        a.e(f"v_cmp_ne_u32 vcc, s{s_ep}, v{b}")
        for k in range(1, nper):
            a.e(f"v_cmp_ne_u32 s[{s_c0}:{s_c0+1}], s{s_ep}, v{b+k}"); a.e("s_nop 1"); a.e(f"s_or_b64 vcc, vcc, s[{s_c0}:{s_c0+1}]")
        a.e("s_nop 1")
        if nlanes < 64: a.e(f"s_and_b64 vcc, vcc, {(1 << nlanes) - 1:#x}")
        a.e("s_cmp_eq_u64 vcc, 0"); a.e(f"s_cbranch_scc1 WAD{tag}")
    A_, B_ = vt + 1, vt + 1 + nper
    loads(A_)
    a.lab(f"POL{tag}")
    loads(B_); a.e(f"s_waitcnt vmcnt({nper})"); check(A_)
    loads(A_); a.e(f"s_waitcnt vmcnt({nper})"); check(B_)
    a.e(f"s_add_u32 s{s_t1}, s{s_t1}, 1")
    a.e(f"s_cmp_lt_u32 s{s_t1}, 20000"); a.e(f"s_cbranch_scc1 POL{tag}")
    a.lab(f"WAD{tag}")
    a.lab(f"WAI{tag}")
    a.e("s_barrier")

def w_tile_map(a, tmp, colm):
    pass

def wait_group(a, ph, tag, s_grp, n, poller=True):
    if not poller:
        a.e("s_barrier"); return
    F = [32,33,34,35,36,37,38,39,40,41,42,43,50,51,52,53][:n]
    a.e(f"s_cmp_eq_u32 s{s_w}, 0"); a.e(f"s_cbranch_scc0 WAI{tag}")
    a.e(f"s_lshl_b32 s{s_t2}, s{s_grp}, 11"); a.e(f"s_add_u32 s{s_t2}, s{s_t2}, {OFF_FLAG + ph*32768}")
    a.e(f"s_add_u32 s{s_t0}, s{S_WS}, s{s_t2}"); a.e(f"s_addc_u32 s{s_t1}, s{S_WS+1}, 0")
    a.e("s_mov_b32 s54, 0")
    a.lab(f"POL{tag}")
    for k, f in enumerate(F): a.e(f"s_load_dword s{f}, s[{s_t0}:{s_t0+1}], {k*128} glc")
    a.e("s_waitcnt lgkmcnt(0)")
    a.e(f"s_xor_b32 s{s_t2}, s{F[0]}, s{s_ep}")
    for f in F[1:]:
        a.e(f"s_xor_b32 s{f}, s{f}, s{s_ep}"); a.e(f"s_or_b32 s{s_t2}, s{s_t2}, s{f}")
    a.e(f"s_cmp_eq_u32 s{s_t2}, 0"); a.e(f"s_cbranch_scc1 WAI{tag}")
    a.e("s_add_u32 s54, s54, 1")
    a.e("s_cmp_lt_u32 s54, 40000"); a.e(f"s_cbranch_scc1 POL{tag}")
    a.lab(f"WAI{tag}")
    a.e("s_barrier")

def softmax_block(a, v_wa, v_x0, v_p, v_en, v_pk, v_tmp, v_c):
    a.e("s_nop 1")
    a.e(f"{MF} {vr(v_p,16)}, {vr(v_wa,4)}, {vr(v_x0,4)}, 0")
    a.e(f"{MF} {vr(v_p,16)}, {vr(v_wa+4,4)}, {vr(v_x0+4,4)}, {vr(v_p,16)}")
    a.e("s_nop 15")
    mx, mn = v_tmp, v_tmp + 1
    a.e(f"v_max3_f32 v{mx}, v{v_p}, v{v_p+1}, v{v_p+2}"); a.e(f"v_min3_f32 v{mn}, v{v_p}, v{v_p+1}, v{v_p+2}")
    for i in range(3, 15, 2):
        a.e(f"v_max3_f32 v{mx}, v{mx}, v{v_p+i}, v{v_p+i+1}"); a.e(f"v_min3_f32 v{mn}, v{mn}, v{v_p+i}, v{v_p+i+1}")
    a.e(f"v_max_f32 v{mx}, v{mx}, v{v_p+15}"); a.e(f"v_min_f32 v{mn}, v{mn}, v{v_p+15}")
    a.e(f"v_mul_f32 v{mx}, v{v_c}, v{mx}"); a.e(f"v_mul_f32 v{mn}, v{v_c}, v{mn}")
    for i in range(16):
        a.e(f"v_fma_f32 v{v_en+i}, -v{v_p+i}, v{v_c}, v{mn}")
        a.e(f"v_fma_f32 v{v_p+i}, v{v_p+i}, v{v_c}, -v{mx}")
    for i in range(16):
        a.e(f"v_exp_f32 v{v_p+i}, v{v_p+i}"); a.e(f"v_exp_f32 v{v_en+i}, v{v_en+i}")
    sp, sn = v_tmp + 2, v_tmp + 4
    a.e(f"v_pk_add_f32 {vr(sp,2)}, {vr(v_p,2)}, {vr(v_p+2,2)}"); a.e(f"v_pk_add_f32 {vr(sn,2)}, {vr(v_en,2)}, {vr(v_en+2,2)}")
    for i in range(4, 16, 2):
        a.e(f"v_pk_add_f32 {vr(sp,2)}, {vr(sp,2)}, {vr(v_p+i,2)}"); a.e(f"v_pk_add_f32 {vr(sn,2)}, {vr(sn,2)}, {vr(v_en+i,2)}")
    a.e(f"v_add_f32 v{sp}, v{sp}, v{sp+1}"); a.e(f"v_add_f32 v{sn}, v{sn}, v{sn+1}")
    a.e(f"v_rcp_f32 v{sp}, v{sp}"); a.e(f"v_rcp_f32 v{sn}, v{sn}")
    a.e("s_nop 0")
    for i in range(0, 16, 2):
        a.e(f"v_pk_mul_f32 {vr(v_p+i,2)}, {vr(v_p+i,2)}, {vr(sp,2)} op_sel_hi:[1,0]")
        a.e(f"v_pk_mul_f32 {vr(v_en+i,2)}, {vr(v_en+i,2)}, {vr(sn,2)} op_sel_hi:[1,0]")
    for i in range(8):
        a.e(f"v_cvt_pk_bf16_f32 v{v_pk+i}, v{v_p+2*i}, v{v_p+2*i+1}"); a.e(f"v_cvt_pk_bf16_f32 v{v_pk+8+i}, v{v_en+2*i}, v{v_en+2*i+1}")

def finish_stats(a, s, q, eps=1e-5):
    a.e(f"v_mul_f32 v{s}, {fx(1/512)}, v{s}"); a.e(f"v_mul_f32 v{q}, {fx(1/512)}, v{q}")
    a.e(f"v_fma_f32 v{q}, -v{s}, v{s}, v{q}")
    a.e(f"v_max_f32 v{q}, 0, v{q}"); a.e(f"v_add_f32 v{q}, {fx(eps)}, v{q}")
    a.e(f"v_rsq_f32 v{q}, v{q}")
    a.e("s_nop 0")

def phase1(a, dbg, opt):
    T = Stamps(a, dbg, 0)
    WPHI = 0; ZERO = 2048
    XR = 8192; WR = XR + 65536; WSLOT = 24576; NST = 3; NSTG = 8
    QX = XR; PHIK = XR + 8192; VV = XR + 8192 + 16384
    SRD_X, SRD_W, SRD_P, SRD_DB = SRD_B, SRD_C, SRD_D, 52
    s_rb, s_hq, s_rot, s_role = 56, 57, 58, 59
    T.real(15); T(0)
    a.e(f"s_and_b32 s{s_t0}, s2, 7"); a.e(f"s_lshr_b32 s{s_t1}, s2, 3")
    a.e(f"s_and_b32 s{s_rb}, s{s_t0}, 3"); a.e(f"s_lshl_b32 s{s_rb}, s{s_rb}, 3"); a.e(f"s_and_b32 s{s_t2}, s{s_t1}, 7"); a.e(f"s_add_u32 s{s_rb}, s{s_rb}, s{s_t2}")
    a.e(f"s_lshr_b32 s{s_hq}, s{s_t0}, 2"); a.e(f"s_lshl_b32 s{s_hq}, s{s_hq}, 2"); a.e(f"s_lshr_b32 s{s_t3}, s{s_t1}, 3"); a.e(f"s_add_u32 s{s_hq}, s{s_hq}, s{s_t3}")
    a.e(f"s_and_b32 s{s_rot}, s{s_t2}, {opt.get('rotmask', 7)}")
    V = VAlloc(2)
    v_dum = V(2, 2); v_tmp = V(8, 2); v_c = V(1); v_wa = V(8, 4); v_x0 = V(8, 4); v_p = V(16, 4); v_en = V(16, 4); v_pk = V(16, 4)
    common_end = V.mark()
    L = VAlloc(common_end)
    v_xl0 = L(64, 4); v_xu = L(64, 4); v_s = L(2, 2); v_q = L(2, 2); v_lt = L(6, 2)
    ln_end = L.mark()
    def wphi_frags(tmp):
        a.e(f"v_lshrrev_b32 v{tmp}, 5, v0")
        a.e(f"v_bfe_u32 v{tmp+1}, v0, 2, 2"); a.e(f"v_lshlrev_b32 v{tmp+1}, 5, v{tmp+1}")
        a.e(f"v_lshl_add_u32 v{tmp+1}, v{tmp}, 9, v{tmp+1}")
        a.e(f"v_bfe_u32 v{tmp+2}, v0, 1, 1"); a.e(f"v_bfe_u32 v{tmp+3}, v0, 4, 1")
        a.e(f"v_lshl_add_u32 v{tmp+2}, v{tmp+3}, 1, v{tmp+2}")
        a.e(f"v_lshl_add_u32 v{tmp+1}, v{tmp+2}, 3, v{tmp+1}")
        a.e(f"s_lshr_b32 s{s_t2}, s{s_j}, 1"); a.e(f"s_lshl_b32 s{s_t2}, s{s_t2}, 10"); a.e(f"s_add_u32 s{s_t2}, s{s_t2}, {WPHI}")
        a.e(f"v_add_u32 v{tmp+1}, s{s_t2}, v{tmp+1}")
        a.e(f"v_and_b32 v{tmp+2}, 1, v0")
        a.e(f"v_cmp_eq_u32 vcc, v{tmp+2}, v{tmp}")
        a.e(f"v_mov_b32 v{tmp+3}, {ZERO}")
        a.e("s_nop 0")
        for k in range(4):
            off = (8*(k>>1) + 4*(k&1)) * 32
            a.e(f"v_add_u32 v{tmp+2}, {off}, v{tmp+1}")
            a.e(f"v_cndmask_b32 v{tmp+2}, v{tmp+3}, v{tmp+2}, vcc")
            a.e(f"ds_read_b64_tr_b16 {vr(v_wa+4*(k>>1)+2*(k&1),2)}, v{tmp+2}")
    s_xo = 3
    def x_loads():
        a.e(f"v_lshrrev_b32 v{v_lt}, 3, v0"); a.e(f"v_lshlrev_b32 v{v_lt}, 10, v{v_lt}")
        a.e(f"v_and_b32 v{v_lt+1}, 7, v0"); a.e(f"v_lshl_add_u32 v{v_lt}, v{v_lt+1}, 4, v{v_lt}")
        a.e(f"s_lshl_b32 s{s_xo}, s{s_rb}, 2"); a.e(f"s_add_u32 s{s_xo}, s{s_xo}, s{s_j}"); a.e(f"s_lshl_b32 s{s_xo}, s{s_xo}, 14")
        for g in range(2):
            for s in range(8): a.e(f"buffer_load_dwordx4 {vr(v_xl0+32*g+4*s,4)}, v{v_lt}, {srd_s(SRD_X)}, s{s_xo} offen offset:{s*128}")
            if g == 0: a.e(f"s_add_u32 s{s_xo}, s{s_xo}, 8192")
    def layernorm(g):
        v_xl = v_xl0 + 32*g
        for i in range(32):
            a.e(f"v_lshlrev_b32 v{v_xu+2*i}, 16, v{v_xl+i}"); a.e(f"v_and_b32 v{v_xu+2*i+1}, 0xffff0000, v{v_xl+i}")
            if i == 0:
                a.e(f"v_pk_mul_f32 {vr(v_q,2)}, {vr(v_xu,2)}, {vr(v_xu,2)}"); a.e(f"v_mov_b32 v{v_s}, v{v_xu}"); a.e(f"v_mov_b32 v{v_s+1}, v{v_xu+1}")
            else:
                a.e(f"v_pk_add_f32 {vr(v_s,2)}, {vr(v_s,2)}, {vr(v_xu+2*i,2)}"); a.e(f"v_pk_fma_f32 {vr(v_q,2)}, {vr(v_xu+2*i,2)}, {vr(v_xu+2*i,2)}, {vr(v_q,2)}")
        a.e(f"v_add_f32 v{v_s}, v{v_s}, v{v_s+1}"); a.e(f"v_add_f32 v{v_q}, v{v_q}, v{v_q+1}")
        for ctl in ("quad_perm:[1,0,3,2]", "quad_perm:[2,3,0,1]", "row_half_mirror"):
            a.e("s_nop 1")
            a.e(f"v_add_f32_dpp v{v_s}, v{v_s}, v{v_s} {ctl} row_mask:0xf bank_mask:0xf"); a.e(f"v_add_f32_dpp v{v_q}, v{v_q}, v{v_q} {ctl} row_mask:0xf bank_mask:0xf")
        finish_stats(a, v_s, v_q)
        a.e(f"v_lshrrev_b32 v{v_lt}, 4, v0"); a.e(f"v_add_u32 v{v_lt}, {4*g}, v{v_lt}")
        a.e(f"v_mul_f32 v{v_s}, v{v_s}, v{v_q}"); a.e(f"v_sub_f32 v{v_s}, 0, v{v_s}")
        a.e(f"v_xor_b32 v{v_lt}, v{v_lt}, v0"); a.e(f"v_and_b32 v{v_lt}, 7, v{v_lt}")
        a.e(f"v_lshrrev_b32 v{v_lt+1}, 3, v0"); a.e(f"v_lshlrev_b32 v{v_lt+1}, 7, v{v_lt+1}"); a.e(f"v_lshl_add_u32 v{v_lt}, v{v_lt}, 4, v{v_lt+1}")
        a.e(f"s_lshl_b32 s{s_t0}, s{s_j}, 11"); a.e(f"s_add_u32 s{s_t0}, s{s_t0}, {XR + 1024*g}"); a.e(f"v_add_u32 v{v_lt}, s{s_t0}, v{v_lt}")
        for s in range(8):
            for r in range(4):
                i = 4*s + r
                a.e(f"v_pk_fma_f32 {vr(v_xu+2*i,2)}, {vr(v_xu+2*i,2)}, {vr(v_q,2)}, {vr(v_s,2)} op_sel_hi:[1,0,0]")
                a.e(f"v_cvt_pk_bf16_f32 v{v_xl+i}, v{v_xu+2*i}, v{v_xu+2*i+1}")
            a.e(f"ds_write_b128 v{v_lt}, {vr(v_xl+4*s,4)} offset:{s*8192}")
    a.e(f"v_mov_b32 v{v_c}, {fx(LOG2E)}")
    a.e(f"s_cmp_ge_u32 s{s_w}, 4")
    a.e("s_cbranch_scc0 P1_CONS")
    H = VAlloc(common_end)
    v_wo = H(3); v_h0 = H(4); v_csl = H(16, 4); csa = H(16, 4)
    for i in range(3):
        a.e(f"v_lshrrev_b32 v{v_h0}, 3, v0"); a.e(f"v_add_u32 v{v_h0}, {8*i}, v{v_h0}")
        a.e(f"v_mul_u32_u24 v{v_h0+1}, 43, v{v_h0}"); a.e(f"v_lshrrev_b32 v{v_h0+1}, 7, v{v_h0+1}")
        a.e(f"v_mul_u32_u24 v{v_h0+2}, 3, v{v_h0+1}"); a.e(f"v_sub_u32 v{v_h0}, v{v_h0}, v{v_h0+2}")
        a.e(f"v_bfe_u32 v{v_h0+2}, v{v_h0+1}, 1, 1"); a.e(f"v_lshlrev_b32 v{v_h0+2}, 2, v{v_h0+2}")
        a.e(f"v_and_b32 v{v_h0+3}, 7, v0"); a.e(f"v_xor_b32 v{v_h0+2}, v{v_h0+2}, v{v_h0+3}")
        a.e(f"v_mul_u32_u24 v{v_h0+1}, 3072, v{v_h0+1}")
        a.e(f"v_lshl_add_u32 v{v_h0+1}, v{v_h0}, 10, v{v_h0+1}")
        a.e(f"v_lshl_add_u32 v{v_wo+i}, v{v_h0+2}, 4, v{v_h0+1}")
    s_wb, s_wl, s_kst, s_wo = 60, 61, 62, 63
    a.e(f"s_mul_i32 s{s_wb}, s{s_j}, {16*3072}"); a.e(f"s_lshl_b32 s{s_t2}, s{s_hq}, 7"); a.e(f"s_add_u32 s{s_wb}, s{s_wb}, s{s_t2}")
    a.e(f"s_mul_i32 s{s_wl}, s{s_j}, 6144"); a.e(f"s_add_u32 s{s_wl}, s{s_wl}, {WR}")
    a.e(f"s_mov_b32 s{s_kst}, s{s_rot}")
    a.e("s_waitcnt lgkmcnt(0)")
    srd(a, SRD_X, S_X, 2048*1024); srd(a, SRD_W, S_WQKV, 512*3072); srd(a, SRD_P, S_WPHI, 32*512); srd(a, SRD_WS, S_WS, WS_BYTES)
    VM = Cnt(a, "vmcnt", 63)
    def one(st, i, track=True):
        def f():
            slot = st % NST
            if i == 0:
                a.e(f"s_mul_i32 s{s_wo}, s{s_kst}, {64*3072}"); a.e(f"s_add_u32 s{s_wo}, s{s_wo}, s{s_wb}")
                a.e(f"s_add_u32 s{s_kst}, s{s_kst}, 1"); a.e(f"s_and_b32 s{s_kst}, s{s_kst}, 7")
            a.e(f"s_add_u32 m0, s{s_wl}, {slot*WSLOT+i*1024}")
            if i == 3: a.e(f"s_add_u32 s{s_wo}, s{s_wo}, {8*3072}")
            else: a.e("s_nop 0")
            VM.op(f"buffer_load_dwordx4 v{v_wo+i%3}, {srd_s(SRD_W)}, s{s_wo} offen lds", ("st", st))
        return f
    def issue(st):
        for i in range(6): one(st, i)()
    a.e("s_barrier")
    issue(0)
    a.e(f"s_and_b32 s{s_t2}, s{s_j}, 1"); a.e(f"s_lshl_b32 s{s_t2}, s{s_t2}, 10")
    a.e(f"s_add_u32 m0, s{s_t2}, {WPHI}")
    a.e(f"v_lshlrev_b32 v{v_h0}, 4, v0")
    a.e(f"s_lshl_b32 s{s_t3}, s{s_hq}, 11"); a.e(f"s_add_u32 s{s_t2}, s{s_t2}, s{s_t3}")
    VM.op(f"buffer_load_dwordx4 v{v_h0}, {srd_s(SRD_P)}, s{s_t2} offen lds", ("st", 0))
    issue(1)
    nxt = 2
    T(1)
    def prefetch_weights():
        def gu(k):
            a.e(f"v_add_u32 v{v_h0}, {64*k}, v0"); a.e(f"v_mul_u32_u24 v{v_h0+1}, 2341, v{v_h0}"); a.e(f"v_lshrrev_b32 v{v_h0+1}, 15, v{v_h0+1}")
            a.e(f"v_mul_u32_u24 v{v_h0+2}, 14, v{v_h0+1}"); a.e(f"v_sub_u32 v{v_h0}, v{v_h0}, v{v_h0+2}")
            a.e(f"v_mul_u32_u24 v{v_h0+1}, 3584, v{v_h0+1}"); a.e(f"v_lshl_add_u32 v{v_h0}, v{v_h0}, 7, v{v_h0+1}")
        a.e(f"s_lshr_b32 s{s_t3}, s2, 3")
        a.e(f"s_cmp_eq_u32 s{s_j}, 0"); a.e("s_cbranch_scc0 P1_PF1")
        srd(a, SRD_P, S_WO, 524288)
        a.e(f"v_lshlrev_b32 v{v_h0}, 7, v0")
        touch_contig(a, SRD_P, 0, 128, s_t3, v_h0, 255, s_t2)
        srd(a, SRD_P, S_WD, 1792*1024)
        a.e(f"s_mov_b32 s{s_t3}, s2")
        a.e("v_cmp_gt_u32 vcc, 56, v0"); a.e(f"s_and_saveexec_b64 s[{s_c0}:{s_c0+1}], vcc")
        touch_contig(a, SRD_P, 0, 56, s_t3, v_h0, 255, s_t2)
        a.e(f"s_mov_b64 exec, s[{s_c0}:{s_c0+1}]")
        a.e("s_branch P1_PFE")
        a.lab("P1_PF1")
        if not opt.get("pf_gu", 0):
            a.e(f"v_lshlrev_b32 v{v_h0}, 7, v0"); a.e("v_cmp_eq_u32 vcc, 0, v0"); a.e(f"s_and_saveexec_b64 s[{s_c0}:{s_c0+1}], vcc")
            srd(a, SRD_P, S_WO, 524288)
            for _ in range(3): a.e(f"buffer_load_dword v255, v{v_h0}, {srd_s(SRD_P)}, 0 offen")
            a.e(f"s_mov_b64 exec, s[{s_c0}:{s_c0+1}]")
            a.e("s_branch P1_PFE")
        a.e(f"s_mul_i32 s{s_t2}, s{s_t3}, {16*3584}"); a.e(f"s_bfe_u32 s{s_t3}, s2, 0x10002"); a.e(f"s_mul_i32 s{s_t3}, s{s_t3}, 1792"); a.e(f"s_add_u32 s{s_t2}, s{s_t2}, s{s_t3}")
        a.e(f"s_cmp_eq_u32 s{s_j}, 3"); a.e("s_cbranch_scc1 P1_PF3")
        a.e(f"s_cmp_eq_u32 s{s_j}, 1"); a.e(f"s_cselect_b32 s54, s{S_WG}, s{S_WU}"); a.e(f"s_cselect_b32 s55, s{S_WG+1}, s{S_WU+1}")
        srd(a, SRD_P, 54, 512*3584)
        for k in range(3):
            gu(k); a.e(f"buffer_load_dword v255, v{v_h0}, {srd_s(SRD_P)}, s{s_t2} offen")
        a.e("s_branch P1_PFE")
        a.lab("P1_PF3")
        gu(3)
        a.e("v_cmp_gt_u32 vcc, 32, v0"); a.e(f"s_and_saveexec_b64 s[{s_c0}:{s_c0+1}], vcc")
        srd(a, SRD_P, S_WG, 512*3584); a.e(f"buffer_load_dword v255, v{v_h0}, {srd_s(SRD_P)}, s{s_t2} offen")
        srd(a, SRD_P, S_WU, 512*3584); a.e(f"buffer_load_dword v255, v{v_h0}, {srd_s(SRD_P)}, s{s_t2} offen")
        a.e("s_and_b64 exec, exec, 1")
        a.e(f"buffer_load_dword v255, v{v_h0}, {srd_s(SRD_P)}, s{s_t2} offen")
        a.e(f"s_mov_b64 exec, s[{s_c0}:{s_c0+1}]")
        a.lab("P1_PFE")
        VM.q += ["pf"] * 3
    s_cs = 51
    def cs_loads():
        a.e(f"s_lshr_b32 s{s_t1}, s2, 3")
        a.e(f"s_cmp_ge_u32 s{s_t1}, 14"); a.e(f"s_cselect_b32 s{s_t2}, 14, 0"); a.e(f"s_cselect_b32 s{s_t0}, 1, 0")
        a.e(f"s_cselect_b32 s54, s{S_WU}, s{S_WG}"); a.e(f"s_cselect_b32 s55, s{S_WU+1}, s{S_WG+1}")
        a.e(f"s_sub_u32 s{s_t2}, s{s_t1}, s{s_t2}")
        srd(a, SRD_P, 54, 512*3584)
        a.e(f"s_bfe_u32 s{s_t3}, s2, 0x10002"); a.e(f"s_mul_i32 s{s_t3}, s{s_t3}, 14"); a.e(f"s_add_u32 s{s_t2}, s{s_t2}, s{s_t3}")
        a.e(f"s_and_b32 s{s_t3}, s2, 3"); a.e(f"s_lshl_b32 s{s_t3}, s{s_t3}, 2"); a.e(f"s_add_u32 s{s_t3}, s{s_t3}, s{s_j}")
        a.e(f"s_mul_i32 s{s_cs}, s{s_t3}, 3584"); a.e(f"s_mul_i32 s{s_t0}, s{s_t0}, 1792"); a.e(f"s_add_u32 s{s_cs}, s{s_cs}, s{s_t0}")
        a.e(f"s_lshl_b32 s{s_t0}, s{s_t2}, 6"); a.e(f"s_add_u32 s{s_cs}, s{s_cs}, s{s_t0}"); a.e(f"s_lshl_b32 s{s_cs}, s{s_cs}, 2"); a.e(f"s_add_u32 s{s_cs}, s{s_cs}, {OFF_CS}")
        a.e(f"s_mul_i32 s{s_t3}, s{s_t3}, {32*3584}"); a.e(f"s_lshl_b32 s{s_t2}, s{s_t2}, 7"); a.e(f"s_add_u32 s{s_t3}, s{s_t3}, s{s_t2}")
        a.e(f"v_lshrrev_b32 v{v_h0}, 3, v0"); a.e(f"v_mul_u32_u24 v{v_h0}, 3584, v{v_h0}"); a.e(f"v_and_b32 v{v_h0+1}, 7, v0"); a.e(f"v_lshl_add_u32 v{v_h0}, v{v_h0+1}, 4, v{v_h0}")
        a.e(f"s_cmp_ge_u32 s{s_t1}, 28"); a.e(f"s_cselect_b32 s{s_t3}, 0x7f000000, s{s_t3}"); a.e(f"s_cselect_b32 s{s_cs}, 0x7f000000, s{s_cs}")
        for k in range(4):
            VM.op(f"buffer_load_dwordx4 {vr(v_csl+4*k,4)}, v{v_h0}, {srd_s(SRD_P)}, s{s_t3} offen", "cs")
            if k < 3: a.e(f"s_add_u32 s{s_t3}, s{s_t3}, {8*3584}")
    def cs_process():
        VM.need("cs")
        cs = csa; t = csa + 8
        for k in range(4):
            for r in range(4):
                x = v_csl + 4*k + r
                a.e(f"v_lshlrev_b32 v{t}, 16, v{x}"); a.e(f"v_and_b32 v{t+1}, 0xffff0000, v{x}")
                if k == 0: a.e(f"v_mov_b32 v{cs+2*r}, v{t}"); a.e(f"v_mov_b32 v{cs+2*r+1}, v{t+1}")
                else: a.e(f"v_pk_add_f32 {vr(cs+2*r,2)}, {vr(cs+2*r,2)}, {vr(t,2)}")
        a.e("s_nop 1")
        for j in range(8): a.e(f"v_add_f32_dpp v{cs+j}, v{cs+j}, v{cs+j} row_ror:8 row_mask:0xf bank_mask:0xf")
        for op in ("v_permlane16_swap_b32", "v_permlane32_swap_b32"):
            for j in range(8): a.e(f"v_mov_b32 v{t+j}, v{cs+j}")
            a.e("s_nop 1")
            for j in range(8): a.e(f"{op} v{cs+j}, v{t+j}")
            a.e("s_nop 1")
            for j in range(8): a.e(f"v_add_f32 v{cs+j}, v{cs+j}, v{t+j}")
        a.e(f"v_lshlrev_b32 v{t}, 5, v0")
        a.e("v_cmp_gt_u32 vcc, 8, v0"); a.e(f"s_and_saveexec_b64 s[{s_c0}:{s_c0+1}], vcc")
        for q in range(2): VM.op(f"buffer_store_dwordx4 {vr(cs+4*q,4)}, v{t}, {WSS}, s{s_cs} offen offset:{16*q}{SC1}", "csst")
        a.e(f"s_mov_b64 exec, s[{s_c0}:{s_c0+1}]")
    for s in range(NSTG):
        VM.need(("st", s))
        if s == 0: a.e("s_waitcnt lgkmcnt(0)")
        a.e("s_barrier")
        if s % 2 == 0: T(4 + s // 2)
        lim = min(NSTG - 1, s - 1 + NST)
        while nxt <= lim:
            issue(nxt); nxt += 1
        if s == 0: wphi_frags(v_tmp)
        if s == opt.get("cs_stage", 5): cs_loads()
        if s == NSTG - 1:
            if opt.get("prefetch", True): prefetch_weights()
    a.e(f"s_lshl_b32 s{s_t2}, s{s_j}, 11")
    a.e(f"v_lshlrev_b32 v{v_h0}, 4, v0"); a.e(f"v_add_u32 v{v_h0}, s{s_t2}, v{v_h0}")
    a.e(f"s_mov_b32 s{s_role}, 1")
    T(8)
    a.e("s_barrier")
    a.e("s_barrier")
    T(9)
    a.e(f"ds_read_b128 {vr(v_x0,4)}, v{v_h0} offset:{QX}")
    a.e(f"ds_read_b128 {vr(v_x0+4,4)}, v{v_h0} offset:{QX+1024}")
    a.e("s_waitcnt lgkmcnt(0)")
    a.e("s_branch P1_SOFTMAX")
    a.lab("P1_CONS")
    Cp = VAlloc(ln_end)
    v_t = Cp(8, 4)
    s_tb, s_hp, s_blk, s_zf = 60, 61, 50, 51
    a.e(f"s_and_b32 s{s_tb}, s{s_w}, 1"); a.e(f"s_lshr_b32 s{s_hp}, s{s_w}, 1")
    for i in range(4): a.e(f"v_mov_b32 v{v_t+i}, 0")
    a.e(f"v_mov_b32 v{v_t+4}, {ZERO}")
    a.e(f"ds_write_b128 v{v_t+4}, {vr(v_t,4)}")
    a.e(f"ds_write_b32 v{v_t+4}, v{v_t} offset:16")
    a.e("s_waitcnt lgkmcnt(0)")
    srd(a, SRD_X, S_X, 2048*1024); srd(a, SRD_WS, S_WS, WS_BYTES); srd(a, SRD_DB, S_DBG, 256)
    x_loads()
    a.e("s_barrier")
    if opt.get("codepf", True):
        a.e(f"s_cmp_eq_u32 s{s_w}, 1"); a.e("s_cbranch_scc0 P1_NOCPF")
        a.e("s_getpc_b64 s[62:63]")
        a.lab("P1_PC")
        a.e(f"s_sub_u32 s62, s62, P1_PC-{KNAME}"); a.e("s_subb_u32 s63, s63, 0")
        a.e(f"s_lshr_b32 s{s_t2}, s2, 3"); a.e(f"s_mul_i32 s{s_t2}, s{s_t2}, 12"); a.e(f"v_add_u32 v{v_dum+1}, s{s_t2}, v0"); a.e(f"v_lshlrev_b32 v{v_dum+1}, 7, v{v_dum+1}")
        a.e(f"v_cmp_gt_u32 vcc, 12, v0"); a.e(f"s_and_saveexec_b64 s[{s_c0}:{s_c0+1}], vcc")
        a.e(f"s_mov_b32 s{s_t2}, ALL_END-{KNAME}")
        a.e(f"v_cmp_gt_u32 vcc, s{s_t2}, v{v_dum+1}"); a.e("s_and_b64 exec, exec, vcc")
        a.e("s_cbranch_execz P1_CPFX")
        a.e(f"global_load_dword v255, v{v_dum+1}, s[62:63]")
        a.lab("P1_CPFX")
        a.e(f"s_mov_b64 exec, s[{s_c0}:{s_c0+1}]")
        a.lab("P1_NOCPF")
    a.e(f"s_cmp_eq_u32 s{s_w}, 0")
    a.e("s_cbranch_scc0 P1_NOTK")
    a.e(f"v_mov_b32 v{v_t+6}, {OFF_NONCE}")
    a.e(f"buffer_load_dword v{v_t+7}, v{v_t+6}, {WSS}, 0 offen sc1")
    a.e(f"s_lshl_b32 s{s_t2}, s{s_hq}, 2")
    a.e(f"v_mov_b32 v{v_t+4}, s{s_t2}"); a.e(f"v_mov_b32 v{v_t+5}, 1")
    a.e("v_cmp_eq_u32 vcc, 0, v0")
    a.e(f"s_and_saveexec_b64 s[{s_c0}:{s_c0+1}], vcc")
    a.e(f"buffer_atomic_add v{v_t+5}, v{v_t+4}, {srd_s(SRD_DB)}, 0 offen sc0")
    a.e(f"s_mov_b64 exec, s[{s_c0}:{s_c0+1}]")
    a.lab("P1_NOTK")
    T(1)
    a.e("s_waitcnt vmcnt(8)")
    T(2)
    layernorm(0)
    a.e(f"s_cmp_eq_u32 s{s_w}, 0"); a.e("s_cbranch_scc1 P1_W0")
    a.e(f"s_cmp_eq_u32 s{s_w}, 1"); a.e("s_cbranch_scc1 P1_W1")
    a.e("s_waitcnt vmcnt(0)"); a.e("s_branch P1_W2")
    a.lab("P1_W0"); a.e("s_waitcnt vmcnt(2)"); a.e("s_branch P1_W2")
    a.lab("P1_W1"); a.e("s_waitcnt vmcnt(0)")
    a.lab("P1_W2")
    layernorm(1)
    T(3)
    a.e(f"s_cmp_eq_u32 s{s_w}, 0")
    a.e("s_cbranch_scc0 P1_NOZERO")
    a.e("s_waitcnt vmcnt(0)")
    a.e(f"v_readfirstlane_b32 s{s_ep}, v{v_t+7}")
    a.e(f"v_readfirstlane_b32 s{s_t2}, v{v_t+5}")
    a.e("s_nop 3")
    a.e(f"s_add_u32 s{s_ep}, s{s_ep}, 1")
    a.e(f"s_cmp_eq_u32 s{s_t2}, 0")
    a.e("s_cbranch_scc0 P1_NOZERO")
    a.e(f"s_mul_i32 s{s_t2}, s{s_hq}, 8704"); a.e(f"s_add_u32 s{s_t2}, s{s_t2}, {OFF_KV}")
    a.e(f"v_lshlrev_b32 v{v_t+4}, 4, v0")
    for i in range(8):
        if i == 4: a.e(f"s_add_u32 s{s_t2}, s{s_t2}, 4096")
        a.e(f"buffer_store_dwordx4 {vr(v_t,4)}, v{v_t+4}, {WSS}, s{s_t2} offen offset:{(i%4)*1024} sc1")
    a.e("v_cmp_gt_u32 vcc, 32, v0")
    a.e(f"s_and_saveexec_b64 s[{s_c0}:{s_c0+1}], vcc")
    a.e(f"s_add_u32 s{s_t2}, s{s_t2}, 4096")
    a.e(f"buffer_store_dwordx4 {vr(v_t,4)}, v{v_t+4}, {WSS}, s{s_t2} offen sc1")
    a.e(f"s_mov_b64 exec, s[{s_c0}:{s_c0+1}]")
    a.e(f"s_mov_b32 s{s_zf}, 1")
    a.e("s_branch P1_ZD")
    a.lab("P1_NOZERO")
    a.e(f"s_mov_b32 s{s_zf}, 0")
    a.lab("P1_ZD")
    C = VAlloc(common_end)
    acc = C(48, 4); v_xa = C(4); v_xb = C(4); v_wad = C(1); fx_ = C(8, 4); fw = C(24, 4); v_t = C(8, 4)
    a.e(f"v_and_b32 v{v_t}, 31, v0"); a.e(f"v_lshrrev_b32 v{v_t+1}, 5, v0")
    a.e(f"v_lshrrev_b32 v{v_t+2}, 1, v{v_t}"); a.e(f"v_and_b32 v{v_t+2}, 7, v{v_t+2}"); a.e(f"v_xor_b32 v{v_t+1}, v{v_t+1}, v{v_t+2}")
    a.e(f"v_lshlrev_b32 v{v_t}, 7, v{v_t}"); a.e(f"v_lshl_add_u32 v{v_xb}, v{v_t+1}, 4, v{v_t}")
    a.e(f"s_lshl_b32 s{s_t2}, s{s_tb}, 12"); a.e(f"s_add_u32 s{s_t2}, s{s_t2}, {XR}"); a.e(f"v_add_u32 v{v_xb}, s{s_t2}, v{v_xb}")
    for t in range(1, 4): a.e(f"v_xor_b32 v{v_xb+t}, {t<<5}, v{v_xb}")
    a.e(f"s_mov_b32 s{s_blk}, s{s_rot}")
    def set_xblk():
        a.e(f"s_lshl_b32 s{s_t2}, s{s_blk}, 13")
        for t in range(4): a.e(f"v_add_u32 v{v_xa+t}, s{s_t2}, v{v_xb+t}")
        a.e(f"s_add_u32 s{s_blk}, s{s_blk}, 1"); a.e(f"s_and_b32 s{s_blk}, s{s_blk}, 7")
    set_xblk()
    a.e(f"v_lshrrev_b32 v{v_t}, 5, v0"); a.e(f"v_lshlrev_b32 v{v_t}, 3, v{v_t}")
    a.e(f"v_bfe_u32 v{v_t+1}, v0, 2, 2"); a.e(f"v_add_u32 v{v_t}, v{v_t}, v{v_t+1}"); a.e(f"v_mul_u32_u24 v{v_t}, 384, v{v_t}")
    a.e(f"v_bfe_u32 v{v_t+1}, v0, 3, 1"); a.e(f"v_xor_b32 v{v_t+1}, s{s_hp}, v{v_t+1}"); a.e(f"v_lshl_add_u32 v{v_t}, v{v_t+1}, 6, v{v_t}")
    a.e(f"v_and_b32 v{v_t+1}, 1, v0"); a.e(f"v_lshl_add_u32 v{v_t}, v{v_t+1}, 5, v{v_t}")
    a.e(f"v_bfe_u32 v{v_t+1}, v0, 1, 1"); a.e(f"v_bfe_u32 v{v_t+2}, v0, 4, 1"); a.e(f"v_lshl_add_u32 v{v_t+1}, v{v_t+2}, 1, v{v_t+1}")
    a.e(f"v_lshl_add_u32 v{v_wad}, v{v_t+1}, 3, v{v_t}"); a.e(f"v_add_u32 v{v_wad}, {WR}, v{v_wad}")
    for i in range(48): a.e(f"v_mov_b32 v{acc+i}, 0")
    LG = Cnt(a, "lgkmcnt", 15)
    def reads(s, t):
        p = t & 1; o = []
        o.append(lambda: LG.op(f"ds_read_b128 {vr(fx_+4*p,4)}, v{v_xa+t}", ("x", s, t)))
        for cb in range(3):
            for k in range(2):
                o.append(lambda cb=cb, k=k: LG.op(f"ds_read_b64_tr_b16 {vr(fw+12*p+4*cb+2*k,2)}, v{v_wad} offset:{t*6144+cb*128+k*1536}", ("w", s, t, cb)))
        return o
    def step(s, t, nxt_):
        p = t & 1
        def m(cb):
            LG.need(("x", s, t), ("w", s, t, cb))
            a.e(f"{MF} {vr(acc+16*cb,16)}, {vr(fw+12*p+4*cb,4)}, {vr(fx_+4*p,4)}, {vr(acc+16*cb,16)}")
        if t < 3:
            f = nxt_
            m(0); f[0](); f[1](); f[2](); m(1); f[3](); f[4](); m(2); f[5](); f[6]()
        else:
            m(0)
            if nxt_ is not None:
                LG.drain()
                a.e("s_barrier")
                delta = WSLOT if (s + 1) % NST != 0 else -(NST - 1) * WSLOT
                a.e(f"v_add_u32 v{v_wad}, {delta & 0xffffffff:#x}, v{v_wad}")
                set_xblk()
                f = nxt_
                f[0](); f[1](); f[2](); m(1); f[3](); f[4](); m(2); f[5](); f[6]()
            else:
                m(1); m(2)
    a.e("s_waitcnt lgkmcnt(0)")
    a.e("s_barrier")
    T(4)
    for f in reads(0, 0): f()
    wphi_frags(v_tmp)
    LG.q += [("wa", k) for k in range(4)]
    v_zf = C(2, 2)
    for s in range(NSTG):
        for t in range(4):
            nx = reads(s, t + 1) if t < 3 else (reads(s + 1, 0) if s + 1 < NSTG else None)
            step(s, t, nx)
        if s == 1:
            a.e(f"s_cmp_eq_u32 s{s_zf}, 1"); a.e("s_cbranch_scc0 P1_NOPUB")
            a.e("s_waitcnt vmcnt(0)")
            a.e(f"s_lshl_b32 s{s_t2}, s{s_hq}, 2"); a.e(f"v_mov_b32 v{v_zf}, s{s_t2}"); a.e(f"v_mov_b32 v{v_zf+1}, 1")
            a.e("v_cmp_eq_u32 vcc, 0, v0"); a.e(f"s_and_saveexec_b64 s[{s_c0}:{s_c0+1}], vcc")
            a.e(f"buffer_store_dword v{v_zf+1}, v{v_zf}, {srd_s(SRD_DB)}, 0 offen offset:64 sc1")
            a.e(f"s_mov_b64 exec, s[{s_c0}:{s_c0+1}]")
            a.lab("P1_NOPUB")
        if s == 5:
            a.e(f"s_lshl_b32 s{s_t2}, s{s_hq}, 2"); a.e(f"v_mov_b32 v{v_zf}, s{s_t2}")
            a.e(f"buffer_load_dword v{v_zf+1}, v{v_zf}, {srd_s(SRD_DB)}, 0 offen offset:64 sc1")
    T(5)
    a.e("s_barrier")
    a.e(f"s_lshl_b32 s{s_t2}, s{s_j}, 11")
    a.e(f"v_lshlrev_b32 v{v_t}, 4, v0"); a.e(f"v_add_u32 v{v_t}, s{s_t2}, v{v_t}")
    a.e("s_nop 7")
    for i in range(8): a.e(f"v_cvt_pk_bf16_f32 v{v_x0+i}, v{acc+2*i}, v{acc+2*i+1}")
    a.e(f"ds_write_b128 v{v_t}, {vr(v_x0,4)} offset:{QX}")
    a.e(f"ds_write_b128 v{v_t}, {vr(v_x0+4,4)} offset:{QX+1024}")
    a.e("s_waitcnt lgkmcnt(0)")
    a.e("s_barrier")
    T(6)
    for i in range(8): a.e(f"v_cvt_pk_bf16_f32 v{v_x0+i}, v{acc+16+2*i}, v{acc+16+2*i+1}")
    for i in range(8): a.e(f"v_cvt_pk_bf16_f32 v{acc+32+i}, v{acc+32+2*i}, v{acc+32+2*i+1}")
    a.e(f"v_and_b32 v{v_t}, 31, v0"); a.e(f"s_lshl_b32 s{s_t2}, s{s_tb}, 5"); a.e(f"v_add_u32 v{v_t}, s{s_t2}, v{v_t}")
    a.e(f"v_mul_u32_u24 v{v_t}, 160, v{v_t}")
    a.e(f"v_lshrrev_b32 v{v_t+1}, 5, v0"); a.e(f"s_lshl_b32 s{s_t2}, s{s_hp}, 6")
    a.e(f"v_lshl_add_u32 v{v_t+2}, v{v_t+1}, 5, v{v_t}"); a.e(f"v_add_u32 v{v_t+2}, s{s_t2}, v{v_t+2}")
    a.e(f"ds_write_b128 v{v_t+2}, {vr(acc+32,4)} offset:{VV}")
    a.e(f"ds_write_b128 v{v_t+2}, {vr(acc+36,4)} offset:{VV+16}")
    a.e(f"v_lshl_add_u32 v{v_t+2}, v{v_t+1}, 4, v{v_t}")
    for i in range(4): a.e(f"v_mov_b32 v{acc+40+i}, 0x3f803f80")
    a.e(f"ds_write_b128 v{v_t+2}, {vr(acc+40,4)} offset:{VV+128}")
    a.e(f"s_mov_b32 s{s_role}, 0")
    a.lab("P1_SOFTMAX")
    softmax_block(a, v_wa, v_x0, v_p, v_en, v_pk, v_tmp, v_c)
    a.e(f"s_cmp_eq_u32 s{s_role}, 0")
    a.e("s_cbranch_scc1 P1_CONS2")
    a.e(f"s_lshl_b32 s{s_t0}, s{s_rb}, 1"); a.e(f"s_and_b32 s{s_t1}, s{s_j}, 1"); a.e(f"s_add_u32 s{s_t0}, s{s_t0}, s{s_t1}")
    a.e(f"s_lshl_b32 s{s_t0}, s{s_t0}, 5"); a.e(f"s_lshl_b32 s{s_t1}, s{s_hq}, 2"); a.e(f"s_add_u32 s{s_t0}, s{s_t0}, s{s_t1}")
    a.e(f"s_lshr_b32 s{s_t1}, s{s_j}, 1"); a.e(f"s_lshl_b32 s{s_t1}, s{s_t1}, 1"); a.e(f"s_add_u32 s{s_t0}, s{s_t0}, s{s_t1}")
    a.e(f"s_lshl_b32 s{s_t0}, s{s_t0}, 11"); a.e(f"s_add_u32 s{s_t0}, s{s_t0}, {OFF_PHIQ}")
    a.e(f"v_and_b32 v{v_tmp}, 31, v0"); a.e(f"v_lshrrev_b32 v{v_tmp+1}, 5, v0")
    a.e(f"v_lshlrev_b32 v{v_tmp}, 4, v{v_tmp}"); a.e(f"v_lshl_add_u32 v{v_tmp}, v{v_tmp+1}, 11, v{v_tmp}")
    for i in range(4):
        VM.op(f"buffer_store_dwordx4 {vr(v_pk+4*i,4)}, v{v_tmp}, {WSS}, s{s_t0} offen offset:{(i>>1)*1024+(i&1)*512}{SC1}", "phst")
    T(10)
    cs_process()
    T(11); T.real(14); T.dump(S_WS, s_w, v_tmp)
    a.e("s_branch P1_DONE")
    a.lab("P1_CONS2")
    t0 = v_tmp
    a.e(f"v_and_b32 v{t0}, 3, v0"); a.e(f"v_lshlrev_b32 v{t0}, 2, v{t0}")
    a.e(f"v_and_b32 v{t0+1}, 2, v0"); a.e(f"v_or_b32 v{t0}, v{t0}, v{t0+1}")
    a.e(f"v_bfe_u32 v{t0+1}, v0, 2, 1"); a.e(f"v_or_b32 v{t0}, v{t0}, v{t0+1}")
    a.e(f"v_lshrrev_b32 v{t0+1}, 5, v0"); a.e(f"s_lshl_b32 s{s_t2}, s{s_hp}, 1"); a.e(f"v_add_u32 v{t0+1}, s{s_t2}, v{t0+1}")
    a.e(f"v_lshlrev_b32 v{t0+1}, 2, v{t0+1}"); a.e(f"v_xor_b32 v{t0}, v{t0}, v{t0+1}")
    a.e(f"v_and_b32 v{t0+1}, 31, v0"); a.e(f"s_lshl_b32 s{s_t2}, s{s_tb}, 5"); a.e(f"v_add_u32 v{t0+1}, s{s_t2}, v{t0+1}")
    a.e(f"v_lshlrev_b32 v{t0+1}, 8, v{t0+1}"); a.e(f"v_lshl_add_u32 v{t0}, v{t0}, 4, v{t0+1}")
    for i in range(4):
        if i: a.e(f"v_xor_b32 v{t0+1}, {i<<4}, v{t0}")
        a.e(f"ds_write_b128 v{t0 if i == 0 else t0+1}, {vr(v_pk+4*i,4)} offset:{PHIK}")
    a.e("s_waitcnt lgkmcnt(0)")
    T(7)
    a.e(f"v_mov_b32 v{t0+6}, {ZERO+16}"); a.e(f"v_mov_b32 v{t0+7}, 1")
    a.e("v_cmp_eq_u32 vcc, 0, v0"); a.e(f"s_and_saveexec_b64 s[{s_c0}:{s_c0+1}], vcc")
    a.e(f"ds_add_u32 v{t0+6}, v{t0+7}")
    a.e(f"s_mov_b64 exec, s[{s_c0}:{s_c0+1}]")
    a.lab("P1_RDV")
    a.e(f"ds_read_b32 v{t0+7}, v{t0+6}")
    a.e("s_waitcnt lgkmcnt(0)")
    a.e(f"v_readfirstlane_b32 s{s_t2}, v{t0+7}")
    a.e("s_nop 3")
    a.e(f"s_cmp_lt_u32 s{s_t2}, 4")
    a.e("s_cbranch_scc1 P1_RDV")
    T(8)
    kvacc = v_p; fa = v_en; fb = v_en + 8
    a.e(f"v_lshrrev_b32 v{t0}, 5, v0"); a.e(f"v_lshlrev_b32 v{t0}, 3, v{t0}")
    a.e(f"v_bfe_u32 v{t0+1}, v0, 2, 2"); a.e(f"v_add_u32 v{t0}, v{t0}, v{t0+1}")
    a.e(f"v_and_b32 v{t0+2}, 3, v0")
    a.e(f"v_mul_u32_u24 v{t0+3}, 160, v{t0}"); a.e(f"v_lshl_add_u32 v{t0+3}, v{t0+2}, 3, v{t0+3}")
    a.e(f"s_lshl_b32 s{s_t2}, s{s_w}, 5"); a.e(f"v_mov_b32 v{t0+4}, s{s_t2}")
    a.e(f"v_bfe_u32 v{t0+5}, v0, 4, 1"); a.e(f"v_cmp_eq_u32 vcc, 1, v{t0+5}")
    a.e(f"v_mov_b32 v{t0+6}, 128")
    a.e("s_nop 0")
    a.e(f"v_cndmask_b32 v{t0+4}, v{t0+4}, v{t0+6}, vcc"); a.e(f"v_add_u32 v{t0+3}, v{t0+3}, v{t0+4}")
    a.e(f"v_lshrrev_b32 v{t0+4}, 1, v{t0+2}"); a.e(f"v_lshl_add_u32 v{t0+4}, v{t0+5}, 1, v{t0+4}")
    a.e(f"s_lshl_b32 s{s_t2}, s{s_w}, 2"); a.e(f"v_add_u32 v{t0+4}, s{s_t2}, v{t0+4}")
    a.e(f"v_lshlrev_b32 v{t0+5}, 2, v{t0+1}"); a.e(f"v_and_b32 v{t0+6}, 2, v{t0+1}"); a.e(f"v_or_b32 v{t0+5}, v{t0+5}, v{t0+6}")
    a.e(f"v_xor_b32 v{t0+4}, v{t0+4}, v{t0+5}")
    a.e(f"v_lshlrev_b32 v{t0+4}, 4, v{t0+4}"); a.e(f"v_lshl_add_u32 v{t0+4}, v{t0}, 8, v{t0+4}")
    a.e(f"v_and_b32 v{t0+5}, 1, v{t0+2}"); a.e(f"v_lshl_add_u32 v{t0+4}, v{t0+5}, 3, v{t0+4}")
    a.e(f"v_xor_b32 v{t0+5}, 16, v{t0+4}")
    def kv_rd(u, buf):
        a.e(f"ds_read_b64_tr_b16 {vr(fa+4*buf,2)}, v{t0+3} offset:{VV+u*2560}")
        a.e(f"ds_read_b64_tr_b16 {vr(fa+4*buf+2,2)}, v{t0+3} offset:{VV+u*2560+640}")
        a.e(f"ds_read_b64_tr_b16 {vr(fb+4*buf,2)}, v{t0+4} offset:{PHIK+u*4096}")
        a.e(f"ds_read_b64_tr_b16 {vr(fb+4*buf+2,2)}, v{t0+5} offset:{PHIK+u*4096+1024}")
    kv_rd(0, 0)
    for u in range(4):
        if u < 3: kv_rd(u + 1, (u + 1) & 1); a.e("s_waitcnt lgkmcnt(4)")
        else: a.e("s_waitcnt lgkmcnt(0)")
        a.e(f"{MF} {vr(kvacc,16)}, {vr(fa+4*(u&1),4)}, {vr(fb+4*(u&1),4)}, {'0' if u == 0 else vr(kvacc,16)}")
    T(9)
    a.e("s_waitcnt vmcnt(0)")
    a.e(f"s_mov_b32 s{s_t3}, 0")
    a.lab("P1_POLL")
    a.e(f"v_readfirstlane_b32 s{s_t2}, v{v_zf+1}")
    a.e(f"s_add_u32 s{s_t3}, s{s_t3}, 1")
    a.e("s_nop 2")
    a.e(f"s_cmp_lg_u32 s{s_t2}, 0")
    a.e("s_cbranch_scc1 P1_GO")
    a.e(f"s_cmp_ge_u32 s{s_t3}, 40000"); a.e("s_cbranch_scc1 P1_GO")
    a.e(f"buffer_load_dword v{v_zf+1}, v{v_zf}, {srd_s(SRD_DB)}, 0 offen offset:64 sc1")
    a.e("s_waitcnt vmcnt(0)")
    a.e("s_branch P1_POLL")
    a.lab("P1_GO")
    a.e(f"s_lshl_b32 s{s_t2}, s{s_hq}, 2"); a.e(f"s_add_u32 s{s_t2}, s{s_t2}, s{s_w}")
    a.e(f"s_mul_i32 s{s_t2}, s{s_t2}, {17*128}"); a.e(f"s_add_u32 s{s_t2}, s{s_t2}, {OFF_KV}")
    a.e(f"v_and_b32 v{t0}, 31, v0"); a.e(f"v_lshlrev_b32 v{t0}, 2, v{t0}")
    a.e(f"v_lshrrev_b32 v{t0+1}, 5, v0"); a.e(f"v_lshl_add_u32 v{t0+2}, v{t0+1}, 9, v{t0}")
    a.e("s_nop 7")
    for r in range(8):
        a.e(f"buffer_atomic_add_f32 v{kvacc+r}, v{t0+2}, {WSS}, s{s_t2} offen offset:{((r&3)+8*(r>>2))*128}")
    a.e("v_cmp_gt_u32 vcc, 32, v0")
    a.e(f"s_and_saveexec_b64 s[{s_c0}:{s_c0+1}], vcc")
    a.e(f"buffer_atomic_add_f32 v{kvacc+8}, v{t0}, {WSS}, s{s_t2} offen offset:{16*128}")
    a.e(f"s_mov_b64 exec, s[{s_c0}:{s_c0+1}]")
    T(10); T.real(14); T.dump(S_WS, s_w, v_tmp)
    a.lab("P1_DONE")
    return max(H.hi, C.hi, Cp.hi, L.hi)

def phase2(a, dbg, opt):
    T = Stamps(a, dbg, 1)
    WO = 73728; KVB = 8192; RED = 73728
    SRD_X, SRD_WO = SRD_B, SRD_C
    s_rb, s_cb = 56, 57
    s_pb, s_wb, s_m, s_ph, s_a, s_b = 58, 59, 60, 61, 62, 63
    T.real(15); T(0)
    a.e(f"s_and_b32 s{s_t0}, s2, 7"); a.e(f"s_lshr_b32 s{s_t1}, s2, 3")
    a.e(f"s_lshl_b32 s{s_rb}, s{s_t0}, 2"); a.e(f"s_and_b32 s{s_t2}, s{s_t1}, 3"); a.e(f"s_add_u32 s{s_rb}, s{s_rb}, s{s_t2}")
    a.e(f"s_lshr_b32 s{s_cb}, s{s_t1}, 2")
    def all_wgs(a, v): a.e(f"v_mov_b32 v{v}, v0")
    a.e(f"s_cmp_ge_u32 s{s_w}, 4")
    a.e("s_cbranch_scc0 P2_CONS")
    H = VAlloc(2)
    v_dma = H(1); v_l16 = H(1); v_kw = H(1); v_t = H(4); v_kv = H(68, 4)
    a.e(f"v_lshrrev_b32 v{v_t}, 3, v0"); a.e(f"v_lshlrev_b32 v{v_t}, 10, v{v_t}")
    a.e(f"v_bfe_u32 v{v_t+1}, v0, 4, 1"); a.e(f"v_lshlrev_b32 v{v_t+1}, 2, v{v_t+1}")
    a.e(f"v_and_b32 v{v_t+2}, 7, v0"); a.e(f"v_xor_b32 v{v_t+1}, v{v_t+1}, v{v_t+2}")
    a.e(f"v_lshl_add_u32 v{v_dma}, v{v_t+1}, 4, v{v_t}")
    a.e(f"v_lshlrev_b32 v{v_l16}, 4, v0")
    srd(a, SRD_WO, S_WO, 512*1024)
    VM = Cnt(a, "vmcnt", 63)
    def wo_dma():
        a.e(f"s_lshl_b32 s{s_wb}, s{s_j}, 17"); a.e(f"s_lshl_b32 s{s_t2}, s{s_cb}, 7"); a.e(f"s_add_u32 s{s_wb}, s{s_wb}, s{s_t2}")
        a.e(f"s_lshl_b32 s{s_m}, s{s_j}, 14")
        for hd in range(8):
            a.e(f"s_add_u32 s{s_ph}, s{s_cb}, {hd}"); a.e(f"s_and_b32 s{s_ph}, s{s_ph}, 7")
            a.e(f"s_lshl_b32 s{s_a}, s{s_ph}, 14"); a.e(f"s_add_u32 s{s_a}, s{s_a}, s{s_wb}")
            for i in range(2):
                a.e(f"s_add_u32 m0, s{s_m}, {WO + (hd*2+i)*1024}")
                if i: a.e(f"s_add_u32 s{s_a}, s{s_a}, 8192")
                else: a.e("s_nop 0")
                VM.op(f"buffer_load_dwordx4 v{v_dma}, {srd_s(SRD_WO)}, s{s_a} offen lds", "wo")
    signal(a, 0, v_t, "1H", pub=False)
    wo_dma()
    waitflags(a, 0, v_t, "1H", all_wgs, nper=4, poller=False)
    T(1)
    s_kc = s_ph
    a.e(f"s_mul_i32 s{s_t0}, s{s_j}, 17408"); a.e(f"s_add_u32 s{s_t0}, s{s_t0}, {OFF_KV}")
    a.e(f"s_lshr_b32 s{s_t3}, s2, 3"); a.e(f"s_cmp_ge_u32 s{s_t3}, 17"); a.e(f"s_cselect_b32 s{s_t2}, 17, 0"); a.e(f"s_sub_u32 s{s_t3}, s{s_t3}, s{s_t2}")
    a.e(f"s_mov_b32 s{s_kc}, s{s_t3}")
    for i in range(17):
        a.e(f"s_lshl_b32 s{s_t1}, s{s_kc}, 10"); a.e(f"s_add_u32 s{s_t1}, s{s_t1}, s{s_t0}")
        VM.op(f"buffer_load_dwordx4 {vr(v_kv+4*i,4)}, v{v_l16}, {WSS}, s{s_t1} offen{SC1}", "kv")
        a.e(f"s_add_u32 s{s_kc}, s{s_kc}, 1"); a.e(f"s_cmp_eq_u32 s{s_kc}, 17"); a.e(f"s_cselect_b32 s{s_kc}, 0, s{s_kc}")
    a.e(f"s_mul_i32 s{s_t0}, s{s_j}, 8704"); a.e(f"s_add_u32 s{s_t0}, s{s_t0}, {KVB}")
    a.e(f"v_lshlrev_b32 v{v_kw}, 3, v0"); a.e(f"v_add_u32 v{v_kw}, s{s_t0}, v{v_kw}")
    a.e(f"s_mov_b32 s{s_kc}, s{s_t3}")
    for i in range(17):
        if i % 4 == 0 or i == 16: a.e(f"s_waitcnt vmcnt({17 - min(i + 4, 17)})")
        b = v_kv + 4*i
        a.e(f"s_lshl_b32 s{s_t1}, s{s_kc}, 9"); a.e(f"v_add_u32 v{v_t}, s{s_t1}, v{v_kw}")
        a.e(f"v_cvt_pk_bf16_f32 v{b}, v{b}, v{b+1}"); a.e(f"v_cvt_pk_bf16_f32 v{b+1}, v{b+2}, v{b+3}")
        a.e(f"ds_write_b64 v{v_t}, {vr(b,2)}")
        a.e(f"s_add_u32 s{s_kc}, s{s_kc}, 1"); a.e(f"s_cmp_eq_u32 s{s_kc}, 17"); a.e(f"s_cselect_b32 s{s_kc}, 0, s{s_kc}")
    a.e("s_waitcnt vmcnt(0) lgkmcnt(0)")
    T(2)
    a.e("s_barrier")
    a.e("s_barrier")
    if opt.get("pf3", False): pass
    a.e("s_barrier")
    T(3); T.real(14); T.dump(S_WS, s_w, v_t)
    a.e("s_branch P2_DONE")
    a.lab("P2_CONS")
    V = VAlloc(2)
    v_l16 = V(1); v_ka = V(1); v_wa0 = V(1); v_wa1 = V(1); v_t = V(8, 2)
    v_xr = V(8, 4); acc = V(64, 4); D = V(64, 4); kA = V(16, 4); wA = V(16, 4); oF = V(8, 4)
    AH = 2; NPH = AH + 1
    PHI = V(16 * NPH, 4)
    a.e(f"v_lshlrev_b32 v{v_l16}, 4, v0")
    srd(a, SRD_X, S_X, 2048*1024)
    VM = Cnt(a, "vmcnt", 63); LG = Cnt(a, "lgkmcnt", 15)
    signal(a, 0, v_t, "1C")
    s_tbg, s_cn = 50, 51
    a.e(f"v_and_b32 v{v_t}, 31, v0"); a.e(f"v_lshlrev_b32 v{v_t}, 10, v{v_t}")
    a.e(f"v_lshrrev_b32 v{v_t+1}, 5, v0"); a.e(f"v_lshl_add_u32 v{v_t}, v{v_t+1}, 4, v{v_t}")
    a.e(f"s_and_b32 s{s_t0}, s{s_w}, 1"); a.e(f"s_lshl_b32 s{s_tbg}, s{s_rb}, 1"); a.e(f"s_add_u32 s{s_tbg}, s{s_tbg}, s{s_t0}")
    a.e(f"s_lshl_b32 s{s_t1}, s{s_tbg}, 15")
    a.e(f"s_lshr_b32 s{s_t2}, s{s_w}, 1"); a.e(f"s_lshl_b32 s{s_cn}, s{s_cb}, 1"); a.e(f"s_add_u32 s{s_cn}, s{s_cn}, s{s_t2}")
    a.e(f"s_lshl_b32 s{s_t2}, s{s_cn}, 6"); a.e(f"s_add_u32 s{s_t1}, s{s_t1}, s{s_t2}")
    for i in range(2): a.e(f"buffer_load_dwordx4 {vr(v_xr+4*i,4)}, v{v_t}, {srd_s(SRD_X)}, s{s_t1} offen offset:{32*i}")
    a.e(f"s_mul_i32 s{s_t0}, s{s_w}, 8704"); a.e(f"s_add_u32 s{s_t0}, s{s_t0}, {KVB}")
    a.e(f"v_and_b32 v{v_t+2}, 31, v0"); a.e(f"v_min_u32 v{v_t+2}, 16, v{v_t+2}"); a.e(f"v_lshlrev_b32 v{v_t+2}, 6, v{v_t+2}")
    a.e(f"v_lshrrev_b32 v{v_t+3}, 5, v0"); a.e(f"v_lshl_add_u32 v{v_t+2}, v{v_t+3}, 4, v{v_t+2}")
    a.e(f"v_add_u32 v{v_ka}, s{s_t0}, v{v_t+2}")
    a.e(f"v_lshrrev_b32 v{v_t+2}, 5, v0"); a.e(f"v_lshlrev_b32 v{v_t+2}, 2, v{v_t+2}")
    a.e(f"v_bfe_u32 v{v_t+3}, v0, 2, 2"); a.e(f"v_add_u32 v{v_t+2}, v{v_t+2}, v{v_t+3}")
    a.e(f"v_lshlrev_b32 v{v_t+2}, 7, v{v_t+2}")
    a.e(f"v_bfe_u32 v{v_t+3}, v0, 3, 1"); a.e(f"v_lshl_add_u32 v{v_t+2}, v{v_t+3}, 6, v{v_t+2}")
    a.e(f"v_bfe_u32 v{v_t+3}, v0, 4, 1"); a.e(f"v_lshl_add_u32 v{v_t+2}, v{v_t+3}, 5, v{v_t+2}")
    a.e(f"v_and_b32 v{v_t+3}, 1, v0"); a.e(f"v_lshl_add_u32 v{v_t+2}, v{v_t+3}, 4, v{v_t+2}")
    a.e(f"v_bfe_u32 v{v_t+3}, v0, 1, 1"); a.e(f"v_lshl_add_u32 v{v_t+2}, v{v_t+3}, 3, v{v_t+2}")
    a.e(f"s_lshl_b32 s{s_t0}, s{s_w}, 14"); a.e(f"s_add_u32 s{s_t0}, s{s_t0}, {WO}")
    a.e(f"v_add_u32 v{v_wa0}, s{s_t0}, v{v_t+2}"); a.e(f"v_xor_b32 v{v_wa1}, 64, v{v_wa0}")
    for i in range(64): a.e(f"v_mov_b32 v{acc+i}, 0")
    a.e(f"s_lshl_b32 s{s_pb}, s{s_rb}, 6"); a.e(f"s_lshl_b32 s{s_t0}, s{s_w}, 3"); a.e(f"s_add_u32 s{s_pb}, s{s_pb}, s{s_t0}")
    a.e(f"s_lshl_b32 s{s_pb}, s{s_pb}, 11"); a.e(f"s_add_u32 s{s_pb}, s{s_pb}, {OFF_PHIQ}")
    waitflags(a, 0, D, "1C", all_wgs, nper=4)
    T(1)
    def issue_head(hd):
        a.e(f"s_add_u32 s{s_ph}, s{s_cb}, {hd}"); a.e(f"s_and_b32 s{s_ph}, s{s_ph}, 7")
        a.e(f"s_lshl_b32 s{s_a}, s{s_ph}, 11"); a.e(f"s_add_u32 s{s_a}, s{s_a}, s{s_pb}")
        a.e(f"s_add_u32 s{s_b}, s{s_a}, {32*2048}")
        for tb in range(2):
            for s in range(2):
                sp = s_a if tb == 0 else s_b
                VM.op(f"buffer_load_dwordx4 {vr(PHI+16*(hd%NPH)+(tb*2+s)*4,4)}, v{v_l16}, {WSS}, s{sp} offen offset:{s*1024}{SC1}", ("phi", hd))
    for hd in range(AH): issue_head(hd)
    a.e("s_barrier")
    T(2)
    def rd_k(hd):
        p = hd & 1
        a.e(f"s_add_u32 s{s_ph}, s{s_cb}, {hd}"); a.e(f"s_and_b32 s{s_ph}, s{s_ph}, 7"); a.e(f"s_mul_i32 s{s_ph}, s{s_ph}, 1088")
        a.e(f"v_add_u32 v{v_t+6}, s{s_ph}, v{v_ka}")
        for s in range(2): LG.op(f"ds_read_b128 {vr(kA+8*p+4*s,4)}, v{v_t+6} offset:{s*32}", ("k", hd))
    def rd_w(hd):
        p = hd & 1
        for nb in range(2):
            va = v_wa0 if nb == 0 else v_wa1
            LG.op(f"ds_read_b64_tr_b16 {vr(wA+8*p+4*nb,2)}, v{va} offset:{hd*2048}", ("w", hd))
            LG.op(f"ds_read_b64_tr_b16 {vr(wA+8*p+4*nb+2,2)}, v{va} offset:{hd*2048+1024}", ("w", hd))
    def num(hd):
        p = hd & 1
        VM.need(("phi", hd)); LG.need(("k", hd))
        for s in range(2):
            for tb in range(2):
                d = D + 32*p + 16*tb
                a.e(f"{MF} {vr(d,16)}, {vr(kA+8*p+4*s,4)}, {vr(PHI+16*(hd%NPH)+(tb*2+s)*4,4)}, {'0' if s == 0 else vr(d,16)}")
    def fin(hd):
        p = hd & 1
        for tb in range(2):
            d = D + 32*p + 16*tb
            a.e(f"v_add_f32 v{d+8}, {fx(1e-6)}, v{d+8}"); a.e(f"v_rcp_f32 v{d+8}, v{d+8}")
        a.e("s_nop 0")
        for tb in range(2):
            d = D + 32*p + 16*tb
            for i in range(0, 8, 2): a.e(f"v_pk_mul_f32 {vr(d+i,2)}, {vr(d+i,2)}, {vr(d+8,2)} op_sel_hi:[1,0]")
        for tb in range(2):
            d = D + 32*p + 16*tb
            for i in range(4): a.e(f"v_cvt_pk_bf16_f32 v{oF+4*tb+i}, v{d+2*i}, v{d+2*i+1}")
        LG.need(("w", hd))
        a.e("s_nop 1")
        for nb in range(2):
            for tb in range(2):
                ti = tb + 2*nb
                a.e(f"{MF} {vr(acc+16*ti,16)}, {vr(wA+8*p+4*nb,4)}, {vr(oF+4*tb,4)}, {vr(acc+16*ti,16)}")
    rd_k(0)
    for hd in range(8):
        num(hd)
        if hd + AH < 8: issue_head(hd + AH)
        if hd < 7: rd_k(hd + 1)
        rd_w(hd)
        if hd >= 1: fin(hd - 1)
    a.e("s_nop 7"); a.e("s_nop 3")
    fin(7)
    T(3)
    a.e("s_barrier")
    a.e(f"s_lshl_b32 s{s_t0}, s{s_w}, 12"); a.e(f"s_add_u32 s{s_t0}, s{s_t0}, {RED}")
    a.e(f"v_add_u32 v{v_t}, s{s_t0}, v{v_l16}")
    a.e("s_nop 7"); a.e("s_nop 3")
    for ti in range(4):
        for q in range(4): a.e(f"ds_write_b128 v{v_t}, {vr(acc+16*ti+4*q,4)} offset:{ti*16384+q*1024}")
    a.e("s_waitcnt lgkmcnt(0)")
    a.e("s_barrier")
    T(4)
    a.e(f"s_lshl_b32 s{s_t0}, s{s_w}, 14"); a.e(f"s_add_u32 s{s_t0}, s{s_t0}, {RED}")
    a.e(f"v_add_u32 v{v_t}, s{s_t0}, v{v_l16}")
    for sw in range(4):
        for q in range(4): a.e(f"ds_read_b128 {vr(acc+16*sw+4*q,4)}, v{v_t} offset:{sw*4096+q*1024}")
    a.e("s_waitcnt vmcnt(0) lgkmcnt(0)")
    for i in range(0, 16, 2):
        a.e(f"v_pk_add_f32 {vr(acc+i,2)}, {vr(acc+i,2)}, {vr(acc+16+i,2)}"); a.e(f"v_pk_add_f32 {vr(acc+32+i,2)}, {vr(acc+32+i,2)}, {vr(acc+48+i,2)}")
    for i in range(0, 16, 2): a.e(f"v_pk_add_f32 {vr(acc+i,2)}, {vr(acc+i,2)}, {vr(acc+32+i,2)}")
    for i in range(8):
        a.e(f"v_lshlrev_b32 v{v_t+2}, 16, v{v_xr+i}"); a.e(f"v_and_b32 v{v_t+3}, 0xffff0000, v{v_xr+i}")
        a.e(f"v_pk_add_f32 {vr(acc+2*i,2)}, {vr(acc+2*i,2)}, {vr(v_t+2,2)}")
        a.e(f"v_cvt_pk_bf16_f32 v{v_xr+i}, v{acc+2*i}, v{acc+2*i+1}")
    a.e(f"s_lshl_b32 s{s_t0}, s{s_tbg}, 5"); a.e(f"s_lshl_b32 s{s_t1}, s{s_cn}, 1"); a.e(f"s_add_u32 s{s_t0}, s{s_t0}, s{s_t1}")
    a.e(f"s_lshl_b32 s{s_t0}, s{s_t0}, 10"); a.e(f"s_add_u32 s{s_t0}, s{s_t0}, {OFF_H}")
    for i in range(2): a.e(f"buffer_store_dwordx4 {vr(v_xr+4*i,4)}, v{v_l16}, {WSS}, s{s_t0} offen offset:{i*1024}{SC1}")
    for i in range(8):
        a.e(f"v_lshlrev_b32 v{v_t+2}, 16, v{v_xr+i}"); a.e(f"v_and_b32 v{v_t+3}, 0xffff0000, v{v_xr+i}")
        if i == 0:
            a.e(f"v_mov_b32 v{v_t+4}, v{v_t+2}"); a.e(f"v_mov_b32 v{v_t+5}, v{v_t+3}"); a.e(f"v_pk_mul_f32 {vr(v_t+6,2)}, {vr(v_t+2,2)}, {vr(v_t+2,2)}")
        else:
            a.e(f"v_pk_add_f32 {vr(v_t+4,2)}, {vr(v_t+4,2)}, {vr(v_t+2,2)}"); a.e(f"v_pk_fma_f32 {vr(v_t+6,2)}, {vr(v_t+2,2)}, {vr(v_t+2,2)}, {vr(v_t+6,2)}")
    a.e(f"v_add_f32 v{v_t}, v{v_t+4}, v{v_t+5}"); a.e(f"v_add_f32 v{v_t+1}, v{v_t+6}, v{v_t+7}")
    xhalf_sum(a, v_t, v_t+3); xhalf_sum(a, v_t+1, v_t+4)
    a.e(f"s_lshl_b32 s{s_t0}, s{s_tbg}, 8"); a.e(f"s_lshl_b32 s{s_t1}, s{s_cn}, 14"); a.e(f"s_add_u32 s{s_t0}, s{s_t0}, s{s_t1}")
    a.e(f"s_add_u32 s{s_t0}, s{s_t0}, {OFF_ST2}")
    a.e(f"v_and_b32 v{v_t+2}, 31, v0"); a.e(f"v_lshlrev_b32 v{v_t+2}, 3, v{v_t+2}")
    a.e("v_cmp_gt_u32 vcc, 32, v0")
    a.e(f"s_and_saveexec_b64 s[{s_c0}:{s_c0+1}], vcc")
    a.e(f"buffer_store_dwordx2 {vr(v_t,2)}, v{v_t+2}, {WSS}, s{s_t0} offen{SC1}")
    a.e(f"s_mov_b64 exec, s[{s_c0}:{s_c0+1}]")
    T(5); T.real(14); T.dump(S_WS, s_w, v_t+4)
    a.lab("P2_DONE")
    return max(H.hi, V.hi), v_xr

def phase3(a, dbg, opt):
    T = Stamps(a, dbg, 2)
    NWG = 224
    STAT = 0; CSX = 1024
    RB = 8192; XB = 16384; SLOT = 49152; NST = 3; NSTG = 8
    SRD_G, SRD_U = SRD_B, SRD_C
    s_rb, s_cg, s_rot = 56, 57, 58
    T.real(15); T(0)
    a.e(f"s_and_b32 s{s_t0}, s2, 7"); a.e(f"s_lshr_b32 s{s_t1}, s2, 3")
    a.e(f"s_and_b32 s{s_rb}, s{s_t0}, 3"); a.e(f"s_lshl_b32 s{s_rb}, s{s_rb}, 2"); a.e(f"s_and_b32 s{s_t2}, s{s_t1}, 3"); a.e(f"s_add_u32 s{s_rb}, s{s_rb}, s{s_t2}")
    a.e(f"s_lshr_b32 s{s_cg}, s{s_t0}, 2"); a.e(f"s_mul_i32 s{s_cg}, s{s_cg}, 7"); a.e(f"s_lshr_b32 s{s_t2}, s{s_t1}, 2"); a.e(f"s_add_u32 s{s_cg}, s{s_cg}, s{s_t2}")
    a.e(f"s_and_b32 s{s_rot}, s{s_t1}, 3"); a.e(f"s_lshl_b32 s{s_rot}, s{s_rot}, 1"); a.e(f"s_add_u32 s{s_rot}, s{s_rot}, s{s_t2}"); a.e(f"s_and_b32 s{s_rot}, s{s_rot}, {opt.get('rot3', 7)}")
    s_slot = 55
    a.e(f"s_lshl_b32 s{s_slot}, s{s_t0}, 2"); a.e(f"s_and_b32 s{s_t2}, s{s_t1}, 3"); a.e(f"s_add_u32 s{s_slot}, s{s_slot}, s{s_t2}")
    a.e(f"s_and_b32 s{s_t2}, s{s_slot}, 1"); a.e(f"s_lshr_b32 s{s_slot}, s{s_slot}, 1"); a.e(f"s_lshl_b32 s{s_slot}, s{s_slot}, 4"); a.e(f"s_add_u32 s{s_slot}, s{s_slot}, s{s_t2}")
    a.e(f"s_lshr_b32 s{s_t2}, s{s_t1}, 2"); a.e(f"s_lshl_b32 s{s_t2}, s{s_t2}, 1"); a.e(f"s_add_u32 s{s_slot}, s{s_slot}, s{s_t2}")
    def producers(a, v):
        a.e(f"v_and_b32 v{v+1}, 1, v0"); a.e(f"s_lshl_b32 s{s_t2}, s{s_rb}, 1"); a.e(f"v_add_u32 v{v+1}, s{s_t2}, v{v+1}")
        a.e(f"v_bfe_u32 v{v}, v0, 1, 3"); a.e(f"v_lshlrev_b32 v{v}, 2, v{v}"); a.e(f"v_and_b32 v{v+2}, 3, v{v+1}"); a.e(f"v_or_b32 v{v}, v{v}, v{v+2}")
        a.e(f"v_lshlrev_b32 v{v}, 3, v{v}"); a.e(f"v_lshrrev_b32 v{v+1}, 2, v{v+1}"); a.e(f"v_or_b32 v{v}, v{v}, v{v+1}")
    a.e(f"s_cmp_ge_u32 s{s_w}, 4")
    a.e("s_cbranch_scc0 P3_CONS")
    H = VAlloc(2)
    v_dum = H(1); v_l16 = H(1); v_g = H(1); v_u = H(1); v_st = H(16, 4); v_t = H(8, 2); v_cp = H(16, 4)
    signal(a, 1, v_t, "2H", pub=False)
    a.e(f"s_cmp_ge_u32 s2, {NWG}"); a.e("s_cbranch_scc1 P3_DONE")
    a.e(f"v_lshlrev_b32 v{v_l16}, 4, v0")
    a.e(f"v_lshrrev_b32 v{v_t}, 4, v0"); a.e(f"v_bfe_u32 v{v_t+1}, v0, 1, 3"); a.e(f"v_xor_b32 v{v_t+1}, v{v_t+1}, v{v_t}")
    a.e(f"v_mul_u32_u24 v{v_t+2}, 3584, v{v_t}"); a.e(f"v_and_b32 v{v_t+3}, 1, v0"); a.e(f"v_lshl_add_u32 v{v_t+2}, v{v_t+3}, 4, v{v_t+2}")
    a.e(f"v_lshl_add_u32 v{v_g}, v{v_t+1}, 5, v{v_t+2}"); a.e(f"v_xor_b32 v{v_t+1}, 4, v{v_t+1}"); a.e(f"v_lshl_add_u32 v{v_u}, v{v_t+1}, 5, v{v_t+2}")
    srd(a, SRD_G, S_WG, 512*3584); srd(a, SRD_U, S_WU, 512*3584)
    VM = Cnt(a, "vmcnt", 63)
    s_xb, s_wb, s_xl, s_wl, s_kx, s_kw, s_xo, s_wo = 59, 60, 61, 62, 63, 3, 27, 50
    a.e(f"s_lshl_b32 s{s_xb}, s{s_rb}, 2"); a.e(f"s_add_u32 s{s_xb}, s{s_xb}, s{s_j}")
    a.e(f"s_lshl_b32 s{s_xb}, s{s_xb}, 15"); a.e(f"s_add_u32 s{s_xb}, s{s_xb}, {OFF_H}")
    a.e(f"s_mul_i32 s{s_wb}, s{s_j}, {16*3584}"); a.e(f"s_lshl_b32 s{s_t2}, s{s_cg}, 8"); a.e(f"s_add_u32 s{s_wb}, s{s_wb}, s{s_t2}")
    a.e(f"s_lshl_b32 s{s_xl}, s{s_j}, 12")
    a.e(f"s_lshl_b32 s{s_wl}, s{s_j}, 12"); a.e(f"s_add_u32 s{s_wl}, s{s_wl}, {XB}")
    a.e(f"s_mov_b32 s{s_kx}, s{s_rot}"); a.e(f"s_mov_b32 s{s_kw}, s{s_rot}")
    def issue_x(st):
        slot = st % NST
        a.e(f"s_lshl_b32 s{s_xo}, s{s_kx}, 12"); a.e(f"s_add_u32 s{s_xo}, s{s_xo}, s{s_xb}")
        a.e(f"s_add_u32 m0, s{s_xl}, {RB+slot*SLOT}")
        a.e(f"s_add_u32 s{s_kx}, s{s_kx}, 1")
        for i in range(4):
            VM.op(f"buffer_load_dwordx4 v{v_l16}, {WSS}, s{s_xo} offen offset:{i*1024}{SC1} lds", ("st", st))
        a.e(f"s_and_b32 s{s_kx}, s{s_kx}, 7")
    def issue_w(st):
        slot = st % NST
        a.e(f"s_mul_i32 s{s_wo}, s{s_kw}, {64*3584}"); a.e(f"s_add_u32 s{s_wo}, s{s_wo}, s{s_wb}")
        a.e(f"s_add_u32 s{s_kw}, s{s_kw}, 1"); a.e(f"s_and_b32 s{s_kw}, s{s_kw}, 7")
        for i in range(4):
            a.e(f"s_add_u32 m0, s{s_wl}, {RB+slot*SLOT+i*1024}"); a.e("s_nop 0")
            VM.op(f"buffer_load_dwordx4 v{v_g}, {srd_s(SRD_G)}, s{s_wo} offen lds", ("st", st))
            a.e(f"s_add_u32 m0, s{s_wl}, {RB+slot*SLOT+16384+i*1024}"); a.e("s_nop 0")
            VM.op(f"buffer_load_dwordx4 v{v_u}, {srd_s(SRD_U)}, s{s_wo} offen lds", ("st", st))
            if i < 3: a.e(f"s_add_u32 s{s_wo}, s{s_wo}, {4*3584}")
    for st in range(NST): issue_w(st)
    wait_group(a, 1, "2H", s_rb, 16, poller=False)
    T(1)
    for st in range(2): issue_x(st)
    nx = 2; nw = NST
    def load_stats():
        a.e(f"v_and_b32 v{v_t}, 15, v0"); a.e(f"v_lshlrev_b32 v{v_t}, 4, v{v_t}")
        a.e(f"v_lshrrev_b32 v{v_t+1}, 4, v0"); a.e(f"v_lshl_add_u32 v{v_t}, v{v_t+1}, 16, v{v_t}")
        a.e(f"s_lshl_b32 s{s_t0}, s{s_rb}, 2"); a.e(f"s_add_u32 s{s_t0}, s{s_t0}, s{s_j}"); a.e(f"s_lshl_b32 s{s_t0}, s{s_t0}, 8"); a.e(f"s_add_u32 s{s_t0}, s{s_t0}, {OFF_ST2}")
        for i in range(4):
            VM.op(f"buffer_load_dwordx4 {vr(v_st+4*i,4)}, v{v_t}, {WSS}, s{s_t0} offen{SC1}", "stat")
            if i < 3: a.e(f"s_add_u32 s{s_t0}, s{s_t0}, 16384")
        a.e(f"v_and_b32 v{v_t+2}, 31, v0"); a.e(f"v_lshlrev_b32 v{v_t+2}, 4, v{v_t+2}")
        a.e(f"v_lshrrev_b32 v{v_t+3}, 5, v0"); a.e(f"v_mul_u32_u24 v{v_t+3}, {1792*4}, v{v_t+3}"); a.e(f"v_add_u32 v{v_t+2}, v{v_t+2}, v{v_t+3}")
        a.e(f"s_mul_i32 s{s_t1}, s{s_j}, {4*3584*4}"); a.e(f"s_lshl_b32 s{s_t2}, s{s_cg}, 9"); a.e(f"s_add_u32 s{s_t1}, s{s_t1}, s{s_t2}"); a.e(f"s_add_u32 s{s_t1}, s{s_t1}, {OFF_CS}")
        for i in range(4):
            VM.op(f"buffer_load_dwordx4 {vr(v_cp+4*i,4)}, v{v_t+2}, {WSS}, s{s_t1} offen{SC1}", "stat")
            if i < 3: a.e(f"s_add_u32 s{s_t1}, s{s_t1}, {3584*4}")
    def process_stats():
        VM.need("stat")
        for i in range(1, 4):
            a.e(f"v_pk_add_f32 {vr(v_cp,2)}, {vr(v_cp,2)}, {vr(v_cp+4*i,2)}"); a.e(f"v_pk_add_f32 {vr(v_cp+2,2)}, {vr(v_cp+2,2)}, {vr(v_cp+4*i+2,2)}")
            a.e(f"v_pk_add_f32 {vr(v_st,2)}, {vr(v_st,2)}, {vr(v_st+4*i,2)}"); a.e(f"v_pk_add_f32 {vr(v_st+2,2)}, {vr(v_st+2,2)}, {vr(v_st+4*i+2,2)}")
        a.e(f"v_lshlrev_b32 v{v_t+2}, 6, v0"); a.e(f"s_lshl_b32 s{s_t1}, s{s_j}, 2"); a.e(f"v_add_u32 v{v_t+2}, s{s_t1}, v{v_t+2}")
        for e in range(4): a.e(f"ds_write_b32 v{v_t+2}, v{v_cp+e} offset:{CSX+16*e}")
        for op in ("v_permlane16_swap_b32", "v_permlane32_swap_b32"):
            for e in range(4): a.e(f"v_mov_b32 v{v_st+4+e}, v{v_st+e}")
            a.e("s_nop 1")
            for e in range(4): a.e(f"{op} v{v_st+e}, v{v_st+4+e}")
            a.e("s_nop 1")
            for e in range(4): a.e(f"v_add_f32 v{v_st+e}, v{v_st+e}, v{v_st+4+e}")
        for e in (0, 2): finish_stats(a, v_st+e, v_st+e+1)
        a.e(f"v_and_b32 v{v_t}, 15, v0"); a.e(f"v_lshlrev_b32 v{v_t}, 4, v{v_t}")
        a.e(f"s_lshl_b32 s{s_t2}, s{s_j}, 8"); a.e(f"v_add_u32 v{v_t}, s{s_t2}, v{v_t}")
        a.e(f"ds_write_b128 v{v_t}, {vr(v_st,4)} offset:{STAT}")
    for s in range(NSTG):
        VM.need(("st", s))
        a.e("s_barrier")
        T(2+s)
        lim = min(NSTG - 1, s - 1 + NST)
        while nx <= lim:
            issue_x(nx); nx += 1
            while nw < nx:
                issue_w(nw); nw += 1
        if s == 3: load_stats()
        if s == NSTG - NST and opt.get("pfwd", True):
            srd(a, 52, S_WD, 1792*1024)
            a.e(f"v_lshlrev_b32 v{v_t+4}, 7, v0")
            a.e(f"s_lshr_b32 s{s_t1}, s2, 3"); a.e(f"s_lshl_b32 s{s_t1}, s{s_t1}, 2"); a.e(f"s_add_u32 s{s_t1}, s{s_t1}, s{s_j}")
            touch_contig(a, 52, 0, 128, s_t1, v_t+4, 255, s_t2, VM)
        if s == NSTG - 1:
            process_stats(); a.e("s_waitcnt lgkmcnt(0)")
    a.e("s_barrier")
    T(10); T.real(14); T.dump(S_WS, s_w, v_t)
    a.e("s_branch P3_DONE")
    a.lab("P3_CONS")
    C = VAlloc(2)
    acc = C(128, 4); fxr = C(16, 4); fw = C(32, 4)
    v_xa = C(1); v_wa = C(4); v_l16 = C(1)
    v_t = C(8, 4); aux = C(4, 4); auw = C(16, 4); st = C(4, 2); P = C(8, 4); csr = C(16, 4); cc = C(4, 2)
    s_tbp, s_fh, s_hb = 59, 60, 61
    signal(a, 1, v_t, "2C", slot=s_slot)
    a.e(f"s_cmp_ge_u32 s2, {NWG}"); a.e("s_cbranch_scc1 P3_DONE")
    a.e(f"s_and_b32 s{s_tbp}, s{s_w}, 1"); a.e(f"s_lshr_b32 s{s_fh}, s{s_w}, 1")
    a.e(f"v_lshlrev_b32 v{v_l16}, 4, v0")
    a.e(f"s_lshl_b32 s{s_t0}, s{s_tbp}, 13"); a.e(f"s_add_u32 s{s_t0}, s{s_t0}, {RB}")
    a.e(f"v_add_u32 v{v_xa}, s{s_t0}, v{v_l16}")
    a.e(f"v_bfe_u32 v{v_t}, v0, 2, 2"); a.e(f"v_lshrrev_b32 v{v_t+1}, 5, v0"); a.e(f"v_lshl_add_u32 v{v_t+1}, v{v_t+1}, 3, v{v_t}")
    a.e(f"v_lshlrev_b32 v{v_t+1}, 8, v{v_t+1}"); a.e(f"v_bfe_u32 v{v_t+2}, v0, 1, 1"); a.e(f"v_lshl_add_u32 v{v_t+1}, v{v_t+2}, 14, v{v_t+1}")
    a.e(f"v_lshl_or_b32 v{v_t+2}, v{v_t+2}, 2, v{v_t}"); a.e(f"v_lshl_add_u32 v{v_t+1}, v{v_t+2}, 5, v{v_t+1}")
    a.e(f"v_and_b32 v{v_t+2}, 1, v0"); a.e(f"v_lshl_add_u32 v{v_t+1}, v{v_t+2}, 4, v{v_t+1}")
    a.e(f"v_bfe_u32 v{v_t+2}, v0, 4, 1"); a.e(f"v_lshl_add_u32 v{v_t+1}, v{v_t+2}, 3, v{v_t+1}")
    a.e(f"s_lshl_b32 s{s_t0}, s{s_fh}, 2")
    for lt in range(4):
        a.e(f"s_add_u32 s{s_t1}, s{s_t0}, {lt}"); a.e(f"s_lshl_b32 s{s_t1}, s{s_t1}, 5")
        a.e(f"v_xor_b32 v{v_wa+lt}, s{s_t1}, v{v_t+1}"); a.e(f"v_add_u32 v{v_wa+lt}, {RB+XB}, v{v_wa+lt}")
    for i in range(128): a.e(f"v_mov_b32 v{acc+i}, 0")
    wait_group(a, 1, "2C", s_rb, 16)
    LG = Cnt(a, "lgkmcnt", 15)
    def reads(s, t):
        p = t & 1; out = []
        for tbl in range(2):
            out.append(lambda tbl=tbl: LG.op(f"ds_read_b128 {vr(fxr+8*p+4*tbl,4)}, v{v_xa} offset:{tbl*4096+t*1024}", ("x", s, t, tbl)))
        for lt in range(4):
            for k in range(2):
                out.append(lambda lt=lt, k=k: LG.op(f"ds_read_b64_tr_b16 {vr(fw+16*p+4*lt+2*k,2)}, v{v_wa+lt} offset:{t*4096+k*1024}", ("w", s, t, lt)))
        return [out[0], out[2], out[3], out[1]] + out[4:]
    def step(s, t, nxt):
        p = t & 1
        mf = []
        for lt in range(4):
            for tbl in range(2):
                def m(lt=lt, tbl=tbl):
                    LG.need(("x", s, t, tbl), ("w", s, t, lt))
                    d = acc + 16*(lt*2+tbl)
                    a.e(f"{MF} {vr(d,16)}, {vr(fw+16*p+4*lt,4)}, {vr(fxr+8*p+4*tbl,4)}, {vr(d,16)}")
                mf.append(m)
        if t < 3:
            fill = nxt; k = 0
            for i, m in enumerate(mf):
                m()
                upto = (len(fill) * (i + 1) + 7) // 8
                while k < upto: fill[k](); k += 1
        else:
            for i in range(3): mf[i]()
            if nxt is not None:
                LG.drain()
                a.e("s_barrier")
                delta = SLOT if (s + 1) % NST != 0 else -(NST - 1) * SLOT
                a.e(f"v_add_u32 v{v_xa}, {delta & 0xffffffff:#x}, v{v_xa}")
                for lt in range(4): a.e(f"v_add_u32 v{v_wa+lt}, {delta & 0xffffffff:#x}, v{v_wa+lt}")
            k = 0; fill = nxt or []
            for i in range(3, 8):
                mf[i]()
                upto = (len(fill) * (i - 2) + 4) // 5
                while k < upto: fill[k](); k += 1
    T(1)
    a.e("s_barrier")
    T(2)
    for f in reads(0, 0): f()
    for s in range(NSTG):
        for t in range(4):
            nx_ = reads(s, t + 1) if t < 3 else (reads(s + 1, 0) if s + 1 < NSTG else None)
            step(s, t, nx_)
    T(3)
    a.e("s_waitcnt vmcnt(0)")
    a.e("s_barrier")
    T(4)
    a.e(f"v_bfe_u32 v{v_t}, v0, 3, 1"); a.e(f"v_lshlrev_b32 v{v_t}, 7, v{v_t}")
    a.e(f"v_bfe_u32 v{v_t+1}, v0, 2, 1"); a.e(f"v_lshl_add_u32 v{v_t}, v{v_t+1}, 3, v{v_t}")
    a.e(f"v_bfe_u32 v{v_t+1}, v0, 4, 1"); a.e(f"v_lshl_add_u32 v{v_t}, v{v_t+1}, 2, v{v_t}")
    a.e(f"v_and_b32 v{v_t+1}, 3, v0"); a.e(f"v_add_u32 v{v_t}, v{v_t}, v{v_t+1}"); a.e(f"v_lshlrev_b32 v{v_t}, 4, v{v_t}")
    a.e(f"s_lshl_b32 s{s_t0}, s{s_fh}, 2")
    for lt in range(4):
        a.e(f"s_add_u32 s{s_t1}, s{s_t0}, {lt}"); a.e(f"s_lshl_b32 s{s_t1}, s{s_t1}, 8"); a.e(f"v_add_u32 v{v_t+1}, s{s_t1}, v{v_t}")
        a.e(f"ds_read_b128 {vr(csr+4*lt,4)}, v{v_t+1} offset:{CSX}")
    a.e(f"v_and_b32 v{v_t}, 31, v0"); a.e(f"v_lshlrev_b32 v{v_t}, 3, v{v_t}")
    a.e(f"s_lshl_b32 s{s_t1}, s{s_tbp}, 9"); a.e(f"v_add_u32 v{v_t}, s{s_t1}, v{v_t}")
    a.e(f"ds_read_b64 {vr(st,2)}, v{v_t} offset:{STAT}"); a.e(f"ds_read_b64 {vr(st+2,2)}, v{v_t} offset:{STAT+256}")
    a.e("v_cmp_gt_u32 vcc, 32, v0")
    for lt in range(4): a.e(f"v_mov_b32 v{auw+4*lt+2}, 0"); a.e(f"v_mov_b32 v{auw+4*lt+3}, 0")
    a.e(f"v_mov_b32 v{aux+2}, 0"); a.e(f"v_mov_b32 v{aux+3}, 0")
    a.e("s_waitcnt lgkmcnt(0)")
    for lt in range(4):
        src = csr + 4*lt
        a.e(f"v_add_f32 v{src}, v{src}, v{src+1}"); a.e(f"v_add_f32 v{src+2}, v{src+2}, v{src+3}"); a.e(f"v_add_f32 v{src}, v{src}, v{src+2}")
        a.e(f"v_cndmask_b32 v{src}, 0, v{src}, vcc")
        split_aug_w(a, src, auw+4*lt, v_t+4)
    for tbl in range(2):
        a.e(f"v_cndmask_b32 v{v_t+5}, 0, v{st+2*tbl}, vcc"); a.e(f"v_sub_f32 v{v_t+5}, 0, v{v_t+5}")
        split_aug_x(a, v_t+5, aux, v_t+4)
        a.e("s_nop 1")
        for lt in range(4):
            d = acc + 16*(lt*2+tbl)
            a.e(f"{MF} {vr(d,16)}, {vr(auw+4*lt,4)}, {vr(aux,4)}, {vr(d,16)}")
        if tbl == 0: a.e("s_nop 3")
    for tbl in range(2):
        a.e(f"v_mul_f32 v{cc+2*tbl}, {fx(-LOG2E)}, v{st+2*tbl+1}"); a.e(f"v_mov_b32 v{cc+2*tbl+1}, v{st+2*tbl+1}")
    a.e(f"s_lshl_b32 s{s_hb}, s{s_rb}, 2"); a.e(f"s_lshl_b32 s{s_t1}, s{s_tbp}, 1"); a.e(f"s_add_u32 s{s_hb}, s{s_hb}, s{s_t1}")
    a.e(f"s_mul_i32 s{s_hb}, s{s_hb}, 112"); a.e(f"s_lshl_b32 s{s_t1}, s{s_cg}, 3"); a.e(f"s_add_u32 s{s_hb}, s{s_hb}, s{s_t1}")
    a.e(f"s_add_u32 s{s_hb}, s{s_hb}, s{s_t0}")
    a.e(f"s_lshl_b32 s{s_hb}, s{s_hb}, 10"); a.e(f"s_add_u32 s{s_hb}, s{s_hb}, {OFF_HH}")
    a.e("s_nop 7")
    T(5)
    for tbl in range(2):
        for lt in range(4):
            d = acc + 16*(lt*2+tbl)
            pk = P + 4*((tbl*4+lt) & 1)
            gp = [d, d+2, d+8, d+10]; up = [d+4, d+6, d+12, d+14]
            for g in gp: a.e(f"v_pk_mul_f32 {vr(g,2)}, {vr(g,2)}, {vr(cc+2*tbl,2)} op_sel_hi:[1,0]")
            for g in gp: a.e(f"v_exp_f32 v{g}, v{g}"); a.e(f"v_exp_f32 v{g+1}, v{g+1}")
            for u in up: a.e(f"v_pk_mul_f32 {vr(u,2)}, {vr(u,2)}, {vr(cc+2*tbl,2)} op_sel:[0,1]")
            for g in gp: a.e(f"v_pk_add_f32 {vr(g,2)}, {vr(g,2)}, 1.0 op_sel_hi:[1,0]")
            for g in gp: a.e(f"v_rcp_f32 v{g}, v{g}"); a.e(f"v_rcp_f32 v{g+1}, v{g+1}")
            a.e("s_nop 0")
            for g, u in zip(gp, up): a.e(f"v_pk_mul_f32 {vr(g,2)}, {vr(g,2)}, {vr(u,2)}")
            for i, g in enumerate(gp): a.e(f"v_cvt_pk_bf16_f32 v{pk+i}, v{g}, v{g+1}")
            a.e(f"s_add_u32 s{s_t1}, s{s_hb}, {lt*1024 + tbl*112*1024}")
            a.e(f"buffer_store_dwordx4 {vr(pk,4)}, v{v_l16}, {WSS}, s{s_t1} offen{SC1}")
    T(6); T.real(14); T.dump(S_WS, s_w, v_t)
    a.lab("P3_DONE")
    return max(H.hi, C.hi)

def phase4(a, dbg, opt):
    T = Stamps(a, dbg, 3)
    RB = 8192; XB = 16384; SLOT = 32768; NST = 4; NSTG = 14
    SRD_W, SRD_O = SRD_B, SRD_C
    s_rb, s_cb, s_rot = 56, 57, 58
    T.real(15); T(0)
    a.e(f"s_and_b32 s{s_t0}, s2, 7"); a.e(f"s_lshr_b32 s{s_t1}, s2, 3")
    a.e(f"s_lshl_b32 s{s_rb}, s{s_t0}, 2"); a.e(f"s_and_b32 s{s_t2}, s{s_t1}, 3"); a.e(f"s_add_u32 s{s_rb}, s{s_rb}, s{s_t2}")
    a.e(f"s_lshr_b32 s{s_cb}, s{s_t1}, 2")
    a.e(f"s_and_b32 s{s_rot}, s{s_t1}, 3"); a.e(f"s_mul_i32 s{s_rot}, s{s_rot}, 2"); a.e(f"s_add_u32 s{s_rot}, s{s_rot}, s{s_cb}")
    s_slot, s_grp = 55, 63
    a.e(f"s_and_b32 s{s_slot}, s{s_t0}, 3"); a.e(f"s_lshl_b32 s{s_slot}, s{s_slot}, 2"); a.e(f"s_and_b32 s{s_t2}, s{s_t1}, 3"); a.e(f"s_add_u32 s{s_slot}, s{s_slot}, s{s_t2}")
    a.e(f"s_lshl_b32 s{s_slot}, s{s_slot}, 4")
    a.e(f"s_lshr_b32 s{s_t2}, s{s_t0}, 2"); a.e(f"s_mul_i32 s{s_t2}, s{s_t2}, 7"); a.e(f"s_lshr_b32 s{s_t3}, s{s_t1}, 2"); a.e(f"s_add_u32 s{s_t2}, s{s_t2}, s{s_t3}")
    a.e(f"s_cmp_ge_u32 s2, 224"); a.e(f"s_cselect_b32 s{s_t2}, 15, s{s_t2}")
    a.e(f"s_add_u32 s{s_slot}, s{s_slot}, s{s_t2}")
    def producers(a, v):
        a.e(f"s_lshr_b32 s{s_t2}, s{s_rb}, 1")
        a.e(f"v_cmp_lt_u32 vcc, 6, v0"); a.e(f"v_mov_b32 v{v+1}, 0"); a.e(f"v_mov_b32 v{v+2}, 1"); a.e(f"v_cndmask_b32 v{v+1}, v{v+1}, v{v+2}, vcc")
        a.e(f"v_mul_u32_u24 v{v+2}, 7, v{v+1}"); a.e(f"v_sub_u32 v{v}, v0, v{v+2}")
        a.e(f"v_lshlrev_b32 v{v}, 2, v{v}"); a.e(f"s_and_b32 s{s_t3}, s{s_t2}, 3"); a.e(f"v_or_b32 v{v}, s{s_t3}, v{v}")
        a.e(f"v_lshlrev_b32 v{v}, 3, v{v}"); a.e(f"v_lshlrev_b32 v{v+1}, 2, v{v+1}"); a.e(f"s_lshr_b32 s{s_t3}, s{s_t2}, 2")
        a.e(f"v_or_b32 v{v}, v{v}, v{v+1}"); a.e(f"v_or_b32 v{v}, s{s_t3}, v{v}")
        a.e(f"v_min_u32 v{v}, 255, v{v}")
    a.e(f"s_cmp_ge_u32 s{s_w}, 4")
    a.e("s_cbranch_scc0 P4_CONS")
    H = VAlloc(2)
    v_l16 = H(1); v_wd = H(1); v_t = H(4)
    signal(a, 2, v_t, "3H", pub=False)
    a.e(f"v_lshlrev_b32 v{v_l16}, 4, v0")
    a.e(f"v_lshrrev_b32 v{v_t}, 3, v0"); a.e(f"v_lshlrev_b32 v{v_t}, 10, v{v_t}")
    a.e(f"v_bfe_u32 v{v_t+1}, v0, 4, 1"); a.e(f"v_lshlrev_b32 v{v_t+1}, 2, v{v_t+1}")
    a.e(f"v_and_b32 v{v_t+2}, 7, v0"); a.e(f"v_xor_b32 v{v_t+1}, v{v_t+1}, v{v_t+2}")
    a.e(f"v_lshl_add_u32 v{v_wd}, v{v_t+1}, 4, v{v_t}")
    srd(a, SRD_W, S_WD, 1792*1024)
    VM = Cnt(a, "vmcnt", 63)
    s_xb, s_wb, s_xl, s_wl, s_kx, s_kw, s_xo, s_wo = 59, 60, 61, 62, 63, 3, 27, 50
    a.e(f"s_and_b32 s{s_t0}, s{s_j}, 1"); a.e(f"s_lshr_b32 s{s_t1}, s{s_j}, 1")
    a.e(f"s_lshl_b32 s{s_xb}, s{s_rb}, 1"); a.e(f"s_add_u32 s{s_xb}, s{s_xb}, s{s_t0}")
    a.e(f"s_mul_i32 s{s_xb}, s{s_xb}, {112*1024}"); a.e(f"s_lshl_b32 s{s_t2}, s{s_t1}, 12"); a.e(f"s_add_u32 s{s_xb}, s{s_xb}, s{s_t2}")
    a.e(f"s_add_u32 s{s_xb}, s{s_xb}, {OFF_HH}")
    a.e(f"s_lshl_b32 s{s_xl}, s{s_t0}, 13"); a.e(f"s_add_u32 s{s_xl}, s{s_xl}, s{s_t2}")
    a.e(f"s_lshl_b32 s{s_wb}, s{s_j}, 15"); a.e(f"s_lshl_b32 s{s_t2}, s{s_cb}, 7"); a.e(f"s_add_u32 s{s_wb}, s{s_wb}, s{s_t2}")
    a.e(f"s_lshl_b32 s{s_wl}, s{s_j}, 12"); a.e(f"s_add_u32 s{s_wl}, s{s_wl}, {XB}")
    a.e(f"s_mov_b32 s{s_kx}, s{s_rot}"); a.e(f"s_mov_b32 s{s_kw}, s{s_rot}")
    def issue_x(st):
        slot = st % NST
        a.e(f"s_lshl_b32 s{s_xo}, s{s_kx}, 13"); a.e(f"s_add_u32 s{s_xo}, s{s_xo}, s{s_xb}")
        a.e(f"s_add_u32 m0, s{s_xl}, {RB+slot*SLOT}")
        a.e(f"s_add_u32 s{s_kx}, s{s_kx}, 1")
        for i in range(4): VM.op(f"buffer_load_dwordx4 v{v_l16}, {WSS}, s{s_xo} offen offset:{i*1024}{SC1} lds", ("st", st))
        a.e(f"s_cmp_eq_u32 s{s_kx}, {NSTG}"); a.e(f"s_cselect_b32 s{s_kx}, 0, s{s_kx}")
    def issue_w(st):
        slot = st % NST
        a.e(f"s_lshl_b32 s{s_wo}, s{s_kw}, 17"); a.e(f"s_add_u32 s{s_wo}, s{s_wo}, s{s_wb}")
        a.e(f"s_add_u32 s{s_kw}, s{s_kw}, 1"); a.e(f"s_cmp_eq_u32 s{s_kw}, {NSTG}"); a.e(f"s_cselect_b32 s{s_kw}, 0, s{s_kw}")
        for i in range(4):
            a.e(f"s_add_u32 m0, s{s_wl}, {RB+slot*SLOT+i*1024}"); a.e("s_nop 0")
            VM.op(f"buffer_load_dwordx4 v{v_wd}, {srd_s(SRD_W)}, s{s_wo} offen lds", ("st", st))
            if i < 3: a.e(f"s_add_u32 s{s_wo}, s{s_wo}, 8192")
    for st in range(NST): issue_w(st)
    wait_group(a, 2, "3H", None, 14, poller=False)
    T(1)
    for st in range(2): issue_x(st)
    nx = 2; nw = NST
    for s in range(NSTG):
        VM.need(("st", s))
        a.e("s_barrier")
        if s < 8: T(2+s)
        lim = min(NSTG - 1, s - 1 + NST, s + 2)
        while nx <= lim:
            issue_x(nx); nx += 1
            while nw < nx:
                issue_w(nw); nw += 1
    T(10); T.real(14); T.dump(S_WS, s_w, v_t)
    a.e("s_endpgm")
    a.lab("P4_CONS")
    C = VAlloc(2)
    acc = C(16, 4); fxr = C(16, 4); fw = C(16, 4)
    v_xa = C(1); v_wa = C(1); v_l16 = C(1); v_t = C(8, 4); v_h = C(8, 4)
    s_tb, s_nb, s_cn, s_oo = 59, 60, 61, 62
    signal(a, 2, v_t, "3C", slot=s_slot)
    a.e(f"s_and_b32 s{s_tb}, s{s_w}, 1"); a.e(f"s_lshr_b32 s{s_nb}, s{s_w}, 1")
    a.e(f"v_lshlrev_b32 v{v_l16}, 4, v0")
    a.e(f"s_lshl_b32 s{s_t0}, s{s_tb}, 13"); a.e(f"s_add_u32 s{s_t0}, s{s_t0}, {RB}"); a.e(f"v_add_u32 v{v_xa}, s{s_t0}, v{v_l16}")
    a.e(f"v_lshrrev_b32 v{v_t}, 5, v0"); a.e(f"v_lshlrev_b32 v{v_t}, 3, v{v_t}")
    a.e(f"v_bfe_u32 v{v_t+1}, v0, 2, 2"); a.e(f"v_add_u32 v{v_t}, v{v_t}, v{v_t+1}"); a.e(f"v_lshlrev_b32 v{v_t}, 7, v{v_t}")
    a.e(f"v_bfe_u32 v{v_t+1}, v0, 3, 1"); a.e(f"v_lshl_add_u32 v{v_t}, v{v_t+1}, 6, v{v_t}")
    a.e(f"v_bfe_u32 v{v_t+1}, v0, 4, 1"); a.e(f"v_lshl_add_u32 v{v_t}, v{v_t+1}, 5, v{v_t}")
    a.e(f"v_and_b32 v{v_t+1}, 1, v0"); a.e(f"v_lshl_add_u32 v{v_t}, v{v_t+1}, 4, v{v_t}")
    a.e(f"v_bfe_u32 v{v_t+1}, v0, 1, 1"); a.e(f"v_lshl_add_u32 v{v_t}, v{v_t+1}, 3, v{v_t}")
    a.e(f"s_lshl_b32 s{s_t0}, s{s_nb}, 6"); a.e(f"v_xor_b32 v{v_wa}, s{s_t0}, v{v_t}"); a.e(f"v_add_u32 v{v_wa}, {RB+XB}, v{v_wa}")
    for i in range(16): a.e(f"v_mov_b32 v{acc+i}, 0")
    a.e(f"s_lshl_b32 s{s_t0}, s{s_rb}, 1"); a.e(f"s_add_u32 s{s_t0}, s{s_t0}, s{s_tb}")
    a.e(f"s_lshl_b32 s{s_cn}, s{s_cb}, 1"); a.e(f"s_add_u32 s{s_cn}, s{s_cn}, s{s_nb}")
    a.e(f"s_lshl_b32 s{s_t1}, s{s_t0}, 5"); a.e(f"s_lshl_b32 s{s_t2}, s{s_cn}, 1"); a.e(f"s_add_u32 s{s_t1}, s{s_t1}, s{s_t2}")
    a.e(f"s_lshl_b32 s{s_t1}, s{s_t1}, 10"); a.e(f"s_add_u32 s{s_t1}, s{s_t1}, {OFF_H}")
    for i in range(2): a.e(f"buffer_load_dwordx4 {vr(v_h+4*i,4)}, v{v_l16}, {WSS}, s{s_t1} offen offset:{i*1024}{SC1}")
    a.e(f"s_lshl_b32 s{s_oo}, s{s_t0}, 15"); a.e(f"s_lshl_b32 s{s_t2}, s{s_cn}, 6"); a.e(f"s_add_u32 s{s_oo}, s{s_oo}, s{s_t2}")
    a.e(f"s_lshr_b32 s{s_grp}, s{s_rb}, 1")
    wait_group(a, 2, "3C", s_grp, 14)
    srd(a, SRD_O, S_OUT, 2048*1024)
    LG = Cnt(a, "lgkmcnt", 15)
    NSTEP = NSTG * 8; DEPTH = 3
    def rd(g):
        s, t = divmod(g, 8); p = g & 3
        LG.op(f"ds_read_b128 {vr(fxr+4*p,4)}, v{v_xa} offset:{t*1024}", ("f", g))
        LG.op(f"ds_read_b64_tr_b16 {vr(fw+4*p,2)}, v{v_wa} offset:{t*2048}", ("f", g))
        LG.op(f"ds_read_b64_tr_b16 {vr(fw+4*p+2,2)}, v{v_wa} offset:{t*2048+512}", ("f", g))
    def cross(s):
        LG.drain()
        a.e("s_barrier")
        delta = SLOT if s % NST != 0 else -(NST - 1) * SLOT
        a.e(f"v_add_u32 v{v_xa}, {delta & 0xffffffff:#x}, v{v_xa}"); a.e(f"v_add_u32 v{v_wa}, {delta & 0xffffffff:#x}, v{v_wa}")
    T(1)
    a.e("s_barrier")
    T(2)
    for g in range(DEPTH): rd(g)
    for g in range(NSTEP):
        n = g + DEPTH
        if n < NSTEP:
            if n % 8 == 0: cross(n // 8)
            rd(n)
        LG.need(("f", g))
        p = g & 3
        a.e(f"{MF} {vr(acc,16)}, {vr(fw+4*p,4)}, {vr(fxr+4*p,4)}, {vr(acc,16)}")
    T(3)
    a.e("s_waitcnt vmcnt(0)")
    a.e("s_nop 7"); a.e("s_nop 3")
    for i in range(8):
        a.e(f"v_lshlrev_b32 v{v_t}, 16, v{v_h+i}"); a.e(f"v_and_b32 v{v_t+1}, 0xffff0000, v{v_h+i}")
        a.e(f"v_pk_add_f32 {vr(acc+2*i,2)}, {vr(acc+2*i,2)}, {vr(v_t,2)}")
        a.e(f"v_cvt_pk_bf16_f32 v{v_h+i}, v{acc+2*i}, v{acc+2*i+1}")
    a.e(f"v_and_b32 v{v_t}, 31, v0"); a.e(f"v_lshlrev_b32 v{v_t}, 10, v{v_t}")
    a.e(f"v_lshrrev_b32 v{v_t+1}, 5, v0"); a.e(f"v_lshl_add_u32 v{v_t}, v{v_t+1}, 4, v{v_t}")
    for i in range(2): a.e(f"buffer_store_dwordx4 {vr(v_h+4*i,4)}, v{v_t}, {srd_s(SRD_O)}, s{s_oo} offen offset:{32*i}")
    a.e("s_cmp_eq_u32 s2, 0"); a.e("s_cbranch_scc0 P4_NOEP")
    a.e(f"s_cmp_eq_u32 s{s_w}, 0"); a.e("s_cbranch_scc0 P4_NOEP")
    a.e(f"v_mov_b32 v{v_t+2}, {OFF_NONCE}"); a.e(f"v_mov_b32 v{v_t+3}, s{s_ep}")
    a.e("v_cmp_eq_u32 vcc, 0, v0"); a.e(f"s_and_saveexec_b64 s[{s_c0}:{s_c0+1}], vcc")
    a.e(f"buffer_store_dword v{v_t+3}, v{v_t+2}, {WSS}, 0 offen sc1")
    a.e(f"s_mov_b64 exec, s[{s_c0}:{s_c0+1}]")
    a.lab("P4_NOEP")
    if dbg:
        T(4); a.e("s_waitcnt vmcnt(0)"); T(5); T.real(14); T.dump(S_WS, s_w, v_t+2)
    return max(H.hi, C.hi)

def gen_mega(dbg=False, opt={}):
    a = Asm()
    a.raw(HEADER.rstrip("\n"))
    a.raw("; @launch grid=(256,1,1) block=(512,1,1) lds=163840")
    a.raw('.amdgcn_target "amdgcn-amd-amdhsa--gfx950"')
    kernel_begin(a, KNAME)
    a.e("s_cmp_ge_u32 s2, 256")
    a.e("s_cbranch_scc1 ALL_EXIT")
    a.e("s_load_dwordx8 s[4:11], s[0:1], 0")
    a.e("s_load_dwordx8 s[12:19], s[0:1], 40")
    a.e("s_load_dwordx4 s[20:23], s[0:1], 72")
    a.e("v_lshrrev_b32 v1, 6, v0")
    a.e("v_and_b32 v0, 63, v0")
    a.e(f"v_readfirstlane_b32 s{s_w}, v1")
    a.e("s_nop 3")
    a.e(f"s_and_b32 s{s_j}, s{s_w}, 3")
    n1 = phase1(a, dbg, opt)
    n2, _ = phase2(a, dbg, opt)
    n3 = phase3(a, dbg, opt)
    n4 = phase4(a, dbg, opt)
    a.lab("ALL_EXIT")
    a.e("s_endpgm")
    a.lab("ALL_END")
    nv = max(n1, n2, n3, n4)
    assert nv <= 255, nv
    nv = 256
    kernel_desc(a, KNAME, nv, 102, 256)
    return a.text()

if __name__ == "__main__":
    out = sys.argv[1]; dbg = "dbg" in sys.argv
    opt = {}
    for x in sys.argv[2:]:
        if "=" in x:
            k, v = x.split("="); opt[k] = int(v)
    open(out, "w").write(gen_mega(dbg, opt))
```

```python
import sys
from glib import *

OFF_FLAG = 0x7C0000
OFF_NONCE = 0x7F0000
KNAME = NAME + "_kernel"

S_X, S_WQKV, S_WPHI, S_WO, S_WG, S_WU, S_WD, S_OUT, S_DBG, S_WS = 4, 6, 8, 10, 12, 14, 16, 18, 20, 22
s_w, s_j, s_ep = 24, 25, 26
SRD_WS, SRD_B, SRD_C, SRD_D = 28, 32, 36, 40
s_t0, s_t1, s_t2, s_t3 = 44, 45, 46, 47
s_c0 = 48
WSS = f"s[{SRD_WS}:{SRD_WS+3}]"
SC1 = " sc1"

def srd_s(d): return f"s[{d}:{d+3}]"

def signal(a, ph, vt, tag, pub=True, slot=None):
    a.e("s_waitcnt vmcnt(0)")
    a.e("s_barrier")
    if not pub:
        a.e("s_barrier")
        return
    a.e(f"s_cmp_eq_u32 s{s_w}, 0"); a.e(f"s_cbranch_scc0 SIG{tag}")
    a.e(f"s_lshl_b32 s{s_t0}, s{2 if slot is None else slot}, 7"); a.e(f"s_add_u32 s{s_t0}, s{s_t0}, {OFF_FLAG + ph*32768}")
    a.e(f"v_mov_b32 v{vt}, 0"); a.e(f"v_mov_b32 v{vt+1}, s{s_ep}")
    a.e("v_cmp_eq_u32 vcc, 0, v0"); a.e(f"s_and_saveexec_b64 s[{s_c0}:{s_c0+1}], vcc")
    a.e(f"buffer_store_dword v{vt+1}, v{vt}, {WSS}, s{s_t0} offen sc1")
    a.e(f"s_mov_b64 exec, s[{s_c0}:{s_c0+1}]")
    a.lab(f"SIG{tag}")
    a.e("s_barrier")

def waitflags(a, ph, vt, tag, lane_wg, nper=1, nlanes=64, poller=True):
    if not poller:
        a.e("s_barrier"); return
    a.e(f"s_cmp_eq_u32 s{s_w}, 0"); a.e(f"s_cbranch_scc0 WAI{tag}")
    lane_wg(a, vt)
    a.e(f"v_lshlrev_b32 v{vt}, 7, v{vt}")
    a.e(f"s_mov_b32 s{s_t0}, {OFF_FLAG + ph*32768}")
    a.e(f"s_mov_b32 s{s_t1}, 0")
    def loads(b):
        for k in range(nper):
            if k: a.e(f"s_add_u32 s{s_t2}, s{s_t0}, {k*8192}")
            a.e(f"buffer_load_dword v{b+k}, v{vt}, {WSS}, s{s_t2 if k else s_t0} offen sc1")
    def check(b):
        a.e(f"v_cmp_ne_u32 vcc, s{s_ep}, v{b}")
        for k in range(1, nper):
            a.e(f"v_cmp_ne_u32 s[{s_c0}:{s_c0+1}], s{s_ep}, v{b+k}"); a.e("s_nop 1"); a.e(f"s_or_b64 vcc, vcc, s[{s_c0}:{s_c0+1}]")
        a.e("s_nop 1")
        if nlanes < 64: a.e(f"s_and_b64 vcc, vcc, {(1 << nlanes) - 1:#x}")
        a.e("s_cmp_eq_u64 vcc, 0"); a.e(f"s_cbranch_scc1 WAD{tag}")
    A_, B_ = vt + 1, vt + 1 + nper
    loads(A_)
    a.lab(f"POL{tag}")
    loads(B_); a.e(f"s_waitcnt vmcnt({nper})"); check(A_)
    loads(A_); a.e(f"s_waitcnt vmcnt({nper})"); check(B_)
    a.e(f"s_add_u32 s{s_t1}, s{s_t1}, 1")
    a.e(f"s_cmp_lt_u32 s{s_t1}, 20000"); a.e(f"s_cbranch_scc1 POL{tag}")
    a.lab(f"WAD{tag}")
    a.lab(f"WAI{tag}")
    a.e("s_barrier")

def w_tile_map(a, tmp, colm):
    pass

def wait_group(a, ph, tag, s_grp, n, poller=True):
    if not poller:
        a.e("s_barrier"); return
    F = [32,33,34,35,36,37,38,39,40,41,42,43,50,51,52,53][:n]
    a.e(f"s_cmp_eq_u32 s{s_w}, 0"); a.e(f"s_cbranch_scc0 WAI{tag}")
    a.e(f"s_lshl_b32 s{s_t2}, s{s_grp}, 11"); a.e(f"s_add_u32 s{s_t2}, s{s_t2}, {OFF_FLAG + ph*32768}")
    a.e(f"s_add_u32 s{s_t0}, s{S_WS}, s{s_t2}"); a.e(f"s_addc_u32 s{s_t1}, s{S_WS+1}, 0")
    a.e("s_mov_b32 s54, 0")
    a.lab(f"POL{tag}")
    for k, f in enumerate(F): a.e(f"s_load_dword s{f}, s[{s_t0}:{s_t0+1}], {k*128} glc")
    a.e("s_waitcnt lgkmcnt(0)")
    a.e(f"s_xor_b32 s{s_t2}, s{F[0]}, s{s_ep}")
    for f in F[1:]:
        a.e(f"s_xor_b32 s{f}, s{f}, s{s_ep}"); a.e(f"s_or_b32 s{s_t2}, s{s_t2}, s{f}")
    a.e(f"s_cmp_eq_u32 s{s_t2}, 0"); a.e(f"s_cbranch_scc1 WAI{tag}")
    a.e("s_add_u32 s54, s54, 1")
    a.e("s_cmp_lt_u32 s54, 40000"); a.e(f"s_cbranch_scc1 POL{tag}")
    a.lab(f"WAI{tag}")
    a.e("s_barrier")

def softmax_block(a, v_wa, v_x0, v_p, v_en, v_pk, v_tmp, v_c):
    a.e("s_nop 1")
    a.e(f"{MF} {vr(v_p,16)}, {vr(v_wa,4)}, {vr(v_x0,4)}, 0")
    a.e(f"{MF} {vr(v_p,16)}, {vr(v_wa+4,4)}, {vr(v_x0+4,4)}, {vr(v_p,16)}")
    a.e("s_nop 15")
    mx, mn = v_tmp, v_tmp + 1
    a.e(f"v_max3_f32 v{mx}, v{v_p}, v{v_p+1}, v{v_p+2}"); a.e(f"v_min3_f32 v{mn}, v{v_p}, v{v_p+1}, v{v_p+2}")
    for i in range(3, 15, 2):
        a.e(f"v_max3_f32 v{mx}, v{mx}, v{v_p+i}, v{v_p+i+1}"); a.e(f"v_min3_f32 v{mn}, v{mn}, v{v_p+i}, v{v_p+i+1}")
    a.e(f"v_max_f32 v{mx}, v{mx}, v{v_p+15}"); a.e(f"v_min_f32 v{mn}, v{mn}, v{v_p+15}")
    a.e(f"v_mul_f32 v{mx}, v{v_c}, v{mx}"); a.e(f"v_mul_f32 v{mn}, v{v_c}, v{mn}")
    for i in range(16):
        a.e(f"v_fma_f32 v{v_en+i}, -v{v_p+i}, v{v_c}, v{mn}")
        a.e(f"v_fma_f32 v{v_p+i}, v{v_p+i}, v{v_c}, -v{mx}")
    for i in range(16):
        a.e(f"v_exp_f32 v{v_p+i}, v{v_p+i}"); a.e(f"v_exp_f32 v{v_en+i}, v{v_en+i}")
    sp, sn = v_tmp + 2, v_tmp + 4
    a.e(f"v_pk_add_f32 {vr(sp,2)}, {vr(v_p,2)}, {vr(v_p+2,2)}"); a.e(f"v_pk_add_f32 {vr(sn,2)}, {vr(v_en,2)}, {vr(v_en+2,2)}")
    for i in range(4, 16, 2):
        a.e(f"v_pk_add_f32 {vr(sp,2)}, {vr(sp,2)}, {vr(v_p+i,2)}"); a.e(f"v_pk_add_f32 {vr(sn,2)}, {vr(sn,2)}, {vr(v_en+i,2)}")
    a.e(f"v_add_f32 v{sp}, v{sp}, v{sp+1}"); a.e(f"v_add_f32 v{sn}, v{sn}, v{sn+1}")
    a.e(f"v_rcp_f32 v{sp}, v{sp}"); a.e(f"v_rcp_f32 v{sn}, v{sn}")
    a.e("s_nop 0")
    for i in range(0, 16, 2):
        a.e(f"v_pk_mul_f32 {vr(v_p+i,2)}, {vr(v_p+i,2)}, {vr(sp,2)} op_sel_hi:[1,0]")
        a.e(f"v_pk_mul_f32 {vr(v_en+i,2)}, {vr(v_en+i,2)}, {vr(sn,2)} op_sel_hi:[1,0]")
    for i in range(8):
        a.e(f"v_cvt_pk_bf16_f32 v{v_pk+i}, v{v_p+2*i}, v{v_p+2*i+1}"); a.e(f"v_cvt_pk_bf16_f32 v{v_pk+8+i}, v{v_en+2*i}, v{v_en+2*i+1}")

def finish_stats(a, s, q, eps=1e-5):
    a.e(f"v_mul_f32 v{s}, {fx(1/512)}, v{s}"); a.e(f"v_mul_f32 v{q}, {fx(1/512)}, v{q}")
    a.e(f"v_fma_f32 v{q}, -v{s}, v{s}, v{q}")
    a.e(f"v_max_f32 v{q}, 0, v{q}"); a.e(f"v_add_f32 v{q}, {fx(eps)}, v{q}")
    a.e(f"v_rsq_f32 v{q}, v{q}")
    a.e("s_nop 0")

def phase1(a, dbg, opt):
    T = Stamps(a, dbg, 0)
    WPHI = 0; ZERO = 2048
    XR = 8192; WR = XR + 65536; WSLOT = 24576; NST = 3; NSTG = 8
    QX = XR; PHIK = XR + 8192; VV = XR + 8192 + 16384
    SRD_X, SRD_W, SRD_P, SRD_DB = SRD_B, SRD_C, SRD_D, 52
    s_rb, s_hq, s_rot, s_role = 56, 57, 58, 59
    T.real(15); T(0)
    a.e(f"s_and_b32 s{s_t0}, s2, 7"); a.e(f"s_lshr_b32 s{s_t1}, s2, 3")
    a.e(f"s_and_b32 s{s_rb}, s{s_t0}, 3"); a.e(f"s_lshl_b32 s{s_rb}, s{s_rb}, 3"); a.e(f"s_and_b32 s{s_t2}, s{s_t1}, 7"); a.e(f"s_add_u32 s{s_rb}, s{s_rb}, s{s_t2}")
    a.e(f"s_lshr_b32 s{s_hq}, s{s_t0}, 2"); a.e(f"s_lshl_b32 s{s_hq}, s{s_hq}, 2"); a.e(f"s_lshr_b32 s{s_t3}, s{s_t1}, 3"); a.e(f"s_add_u32 s{s_hq}, s{s_hq}, s{s_t3}")
    a.e(f"s_and_b32 s{s_rot}, s{s_t2}, {opt.get('rotmask', 7)}")
    V = VAlloc(2)
    v_dum = V(2, 2); v_tmp = V(8, 2); v_c = V(1); v_wa = V(8, 4); v_x0 = V(8, 4); v_p = V(16, 4); v_en = V(16, 4); v_pk = V(16, 4)
    common_end = V.mark()
    L = VAlloc(common_end)
    v_xl0 = L(64, 4); v_xu = L(64, 4); v_s = L(2, 2); v_q = L(2, 2); v_lt = L(6, 2)
    ln_end = L.mark()
    def wphi_frags(tmp):
        a.e(f"v_lshrrev_b32 v{tmp}, 5, v0")
        a.e(f"v_bfe_u32 v{tmp+1}, v0, 2, 2"); a.e(f"v_lshlrev_b32 v{tmp+1}, 5, v{tmp+1}")
        a.e(f"v_lshl_add_u32 v{tmp+1}, v{tmp}, 9, v{tmp+1}")
        a.e(f"v_bfe_u32 v{tmp+2}, v0, 1, 1"); a.e(f"v_bfe_u32 v{tmp+3}, v0, 4, 1")
        a.e(f"v_lshl_add_u32 v{tmp+2}, v{tmp+3}, 1, v{tmp+2}")
        a.e(f"v_lshl_add_u32 v{tmp+1}, v{tmp+2}, 3, v{tmp+1}")
        a.e(f"s_lshr_b32 s{s_t2}, s{s_j}, 1"); a.e(f"s_lshl_b32 s{s_t2}, s{s_t2}, 10"); a.e(f"s_add_u32 s{s_t2}, s{s_t2}, {WPHI}")
        a.e(f"v_add_u32 v{tmp+1}, s{s_t2}, v{tmp+1}")
        a.e(f"v_and_b32 v{tmp+2}, 1, v0")
        a.e(f"v_cmp_eq_u32 vcc, v{tmp+2}, v{tmp}")
        a.e(f"v_mov_b32 v{tmp+3}, {ZERO}")
        a.e("s_nop 0")
        for k in range(4):
            off = (8*(k>>1) + 4*(k&1)) * 32
            a.e(f"v_add_u32 v{tmp+2}, {off}, v{tmp+1}")
            a.e(f"v_cndmask_b32 v{tmp+2}, v{tmp+3}, v{tmp+2}, vcc")
            a.e(f"ds_read_b64_tr_b16 {vr(v_wa+4*(k>>1)+2*(k&1),2)}, v{tmp+2}")
    s_xo = 3
    def x_loads():
        a.e(f"v_lshrrev_b32 v{v_lt}, 3, v0"); a.e(f"v_lshlrev_b32 v{v_lt}, 10, v{v_lt}")
        a.e(f"v_and_b32 v{v_lt+1}, 7, v0"); a.e(f"v_lshl_add_u32 v{v_lt}, v{v_lt+1}, 4, v{v_lt}")
        a.e(f"s_lshl_b32 s{s_xo}, s{s_rb}, 2"); a.e(f"s_add_u32 s{s_xo}, s{s_xo}, s{s_j}"); a.e(f"s_lshl_b32 s{s_xo}, s{s_xo}, 14")
        for g in range(2):
            for s in range(8): a.e(f"buffer_load_dwordx4 {vr(v_xl0+32*g+4*s,4)}, v{v_lt}, {srd_s(SRD_X)}, s{s_xo} offen offset:{s*128}")
            if g == 0: a.e(f"s_add_u32 s{s_xo}, s{s_xo}, 8192")
    def layernorm(g):
        v_xl = v_xl0 + 32*g
        for i in range(32):
            a.e(f"v_lshlrev_b32 v{v_xu+2*i}, 16, v{v_xl+i}"); a.e(f"v_and_b32 v{v_xu+2*i+1}, 0xffff0000, v{v_xl+i}")
            if i == 0:
                a.e(f"v_pk_mul_f32 {vr(v_q,2)}, {vr(v_xu,2)}, {vr(v_xu,2)}"); a.e(f"v_mov_b32 v{v_s}, v{v_xu}"); a.e(f"v_mov_b32 v{v_s+1}, v{v_xu+1}")
            else:
                a.e(f"v_pk_add_f32 {vr(v_s,2)}, {vr(v_s,2)}, {vr(v_xu+2*i,2)}"); a.e(f"v_pk_fma_f32 {vr(v_q,2)}, {vr(v_xu+2*i,2)}, {vr(v_xu+2*i,2)}, {vr(v_q,2)}")
        a.e(f"v_add_f32 v{v_s}, v{v_s}, v{v_s+1}"); a.e(f"v_add_f32 v{v_q}, v{v_q}, v{v_q+1}")
        for ctl in ("quad_perm:[1,0,3,2]", "quad_perm:[2,3,0,1]", "row_half_mirror"):
            a.e("s_nop 1")
            a.e(f"v_add_f32_dpp v{v_s}, v{v_s}, v{v_s} {ctl} row_mask:0xf bank_mask:0xf"); a.e(f"v_add_f32_dpp v{v_q}, v{v_q}, v{v_q} {ctl} row_mask:0xf bank_mask:0xf")
        finish_stats(a, v_s, v_q)
        a.e(f"v_lshrrev_b32 v{v_lt}, 4, v0"); a.e(f"v_add_u32 v{v_lt}, {4*g}, v{v_lt}")
        a.e(f"v_mul_f32 v{v_s}, v{v_s}, v{v_q}"); a.e(f"v_sub_f32 v{v_s}, 0, v{v_s}")
        a.e(f"v_xor_b32 v{v_lt}, v{v_lt}, v0"); a.e(f"v_and_b32 v{v_lt}, 7, v{v_lt}")
        a.e(f"v_lshrrev_b32 v{v_lt+1}, 3, v0"); a.e(f"v_lshlrev_b32 v{v_lt+1}, 7, v{v_lt+1}"); a.e(f"v_lshl_add_u32 v{v_lt}, v{v_lt}, 4, v{v_lt+1}")
        a.e(f"s_lshl_b32 s{s_t0}, s{s_j}, 11"); a.e(f"s_add_u32 s{s_t0}, s{s_t0}, {XR + 1024*g}"); a.e(f"v_add_u32 v{v_lt}, s{s_t0}, v{v_lt}")
        for s in range(8):
            for r in range(4):
                i = 4*s + r
                a.e(f"v_pk_fma_f32 {vr(v_xu+2*i,2)}, {vr(v_xu+2*i,2)}, {vr(v_q,2)}, {vr(v_s,2)} op_sel_hi:[1,0,0]")
                a.e(f"v_cvt_pk_bf16_f32 v{v_xl+i}, v{v_xu+2*i}, v{v_xu+2*i+1}")
            a.e(f"ds_write_b128 v{v_lt}, {vr(v_xl+4*s,4)} offset:{s*8192}")
    a.e(f"v_mov_b32 v{v_c}, {fx(LOG2E)}")
    a.e(f"s_cmp_ge_u32 s{s_w}, 4")
    a.e("s_cbranch_scc0 P1_CONS")
    H = VAlloc(common_end)
    v_wo = H(3); v_h0 = H(4); v_csl = H(16, 4); csa = H(16, 4)
    for i in range(3):
        a.e(f"v_lshrrev_b32 v{v_h0}, 3, v0"); a.e(f"v_add_u32 v{v_h0}, {8*i}, v{v_h0}")
        a.e(f"v_mul_u32_u24 v{v_h0+1}, 43, v{v_h0}"); a.e(f"v_lshrrev_b32 v{v_h0+1}, 7, v{v_h0+1}")
        a.e(f"v_mul_u32_u24 v{v_h0+2}, 3, v{v_h0+1}"); a.e(f"v_sub_u32 v{v_h0}, v{v_h0}, v{v_h0+2}")
        a.e(f"v_bfe_u32 v{v_h0+2}, v{v_h0+1}, 1, 1"); a.e(f"v_lshlrev_b32 v{v_h0+2}, 2, v{v_h0+2}")
        a.e(f"v_and_b32 v{v_h0+3}, 7, v0"); a.e(f"v_xor_b32 v{v_h0+2}, v{v_h0+2}, v{v_h0+3}")
        a.e(f"v_mul_u32_u24 v{v_h0+1}, 3072, v{v_h0+1}")
        a.e(f"v_lshl_add_u32 v{v_h0+1}, v{v_h0}, 10, v{v_h0+1}")
        a.e(f"v_lshl_add_u32 v{v_wo+i}, v{v_h0+2}, 4, v{v_h0+1}")
    s_wb, s_wl, s_kst, s_wo = 60, 61, 62, 63
    a.e(f"s_mul_i32 s{s_wb}, s{s_j}, {16*3072}"); a.e(f"s_lshl_b32 s{s_t2}, s{s_hq}, 7"); a.e(f"s_add_u32 s{s_wb}, s{s_wb}, s{s_t2}")
    a.e(f"s_mul_i32 s{s_wl}, s{s_j}, 6144"); a.e(f"s_add_u32 s{s_wl}, s{s_wl}, {WR}")
    a.e(f"s_mov_b32 s{s_kst}, s{s_rot}")
    a.e("s_waitcnt lgkmcnt(0)")
    srd(a, SRD_X, S_X, 2048*1024); srd(a, SRD_W, S_WQKV, 512*3072); srd(a, SRD_P, S_WPHI, 32*512); srd(a, SRD_WS, S_WS, WS_BYTES)
    VM = Cnt(a, "vmcnt", 63)
    def one(st, i, track=True):
        def f():
            slot = st % NST
            if i == 0:
                a.e(f"s_mul_i32 s{s_wo}, s{s_kst}, {64*3072}"); a.e(f"s_add_u32 s{s_wo}, s{s_wo}, s{s_wb}")
                a.e(f"s_add_u32 s{s_kst}, s{s_kst}, 1"); a.e(f"s_and_b32 s{s_kst}, s{s_kst}, 7")
            a.e(f"s_add_u32 m0, s{s_wl}, {slot*WSLOT+i*1024}")
            if i == 3: a.e(f"s_add_u32 s{s_wo}, s{s_wo}, {8*3072}")
            else: a.e("s_nop 0")
            VM.op(f"buffer_load_dwordx4 v{v_wo+i%3}, {srd_s(SRD_W)}, s{s_wo} offen lds", ("st", st))
        return f
    def issue(st):
        for i in range(6): one(st, i)()
    a.e("s_barrier")
    issue(0)
    a.e(f"s_and_b32 s{s_t2}, s{s_j}, 1"); a.e(f"s_lshl_b32 s{s_t2}, s{s_t2}, 10")
    a.e(f"s_add_u32 m0, s{s_t2}, {WPHI}")
    a.e(f"v_lshlrev_b32 v{v_h0}, 4, v0")
    a.e(f"s_lshl_b32 s{s_t3}, s{s_hq}, 11"); a.e(f"s_add_u32 s{s_t2}, s{s_t2}, s{s_t3}")
    VM.op(f"buffer_load_dwordx4 v{v_h0}, {srd_s(SRD_P)}, s{s_t2} offen lds", ("st", 0))
    issue(1)
    nxt = 2
    T(1)
    def prefetch_weights():
        def gu(k):
            a.e(f"v_add_u32 v{v_h0}, {64*k}, v0"); a.e(f"v_mul_u32_u24 v{v_h0+1}, 2341, v{v_h0}"); a.e(f"v_lshrrev_b32 v{v_h0+1}, 15, v{v_h0+1}")
            a.e(f"v_mul_u32_u24 v{v_h0+2}, 14, v{v_h0+1}"); a.e(f"v_sub_u32 v{v_h0}, v{v_h0}, v{v_h0+2}")
            a.e(f"v_mul_u32_u24 v{v_h0+1}, 3584, v{v_h0+1}"); a.e(f"v_lshl_add_u32 v{v_h0}, v{v_h0}, 7, v{v_h0+1}")
        a.e(f"s_lshr_b32 s{s_t3}, s2, 3")
        a.e(f"s_cmp_eq_u32 s{s_j}, 0"); a.e("s_cbranch_scc0 P1_PF1")
        srd(a, SRD_P, S_WO, 524288)
        a.e(f"v_lshlrev_b32 v{v_h0}, 7, v0")
        touch_contig(a, SRD_P, 0, 128, s_t3, v_h0, 255, s_t2)
        srd(a, SRD_P, S_WD, 1792*1024)
        a.e(f"s_mov_b32 s{s_t3}, s2")
        a.e("v_cmp_gt_u32 vcc, 56, v0"); a.e(f"s_and_saveexec_b64 s[{s_c0}:{s_c0+1}], vcc")
        touch_contig(a, SRD_P, 0, 56, s_t3, v_h0, 255, s_t2)
        a.e(f"s_mov_b64 exec, s[{s_c0}:{s_c0+1}]")
        a.e("s_branch P1_PFE")
        a.lab("P1_PF1")
        if not opt.get("pf_gu", 1):
            a.e(f"v_lshlrev_b32 v{v_h0}, 7, v0"); a.e("v_cmp_eq_u32 vcc, 0, v0"); a.e(f"s_and_saveexec_b64 s[{s_c0}:{s_c0+1}], vcc")
            srd(a, SRD_P, S_WO, 524288)
            for _ in range(3): a.e(f"buffer_load_dword v255, v{v_h0}, {srd_s(SRD_P)}, 0 offen")
            a.e(f"s_mov_b64 exec, s[{s_c0}:{s_c0+1}]")
            a.e("s_branch P1_PFE")
        a.e(f"s_mul_i32 s{s_t2}, s{s_t3}, {16*3584}"); a.e(f"s_bfe_u32 s{s_t3}, s2, 0x10002"); a.e(f"s_mul_i32 s{s_t3}, s{s_t3}, 1792"); a.e(f"s_add_u32 s{s_t2}, s{s_t2}, s{s_t3}")
        a.e(f"s_cmp_eq_u32 s{s_j}, 3"); a.e("s_cbranch_scc1 P1_PF3")
        a.e(f"s_cmp_eq_u32 s{s_j}, 1"); a.e(f"s_cselect_b32 s54, s{S_WG}, s{S_WU}"); a.e(f"s_cselect_b32 s55, s{S_WG+1}, s{S_WU+1}")
        srd(a, SRD_P, 54, 512*3584)
        for k in range(3):
            gu(k); a.e(f"buffer_load_dword v255, v{v_h0}, {srd_s(SRD_P)}, s{s_t2} offen")
        a.e("s_branch P1_PFE")
        a.lab("P1_PF3")
        gu(3)
        a.e("v_cmp_gt_u32 vcc, 32, v0"); a.e(f"s_and_saveexec_b64 s[{s_c0}:{s_c0+1}], vcc")
        srd(a, SRD_P, S_WG, 512*3584); a.e(f"buffer_load_dword v255, v{v_h0}, {srd_s(SRD_P)}, s{s_t2} offen")
        srd(a, SRD_P, S_WU, 512*3584); a.e(f"buffer_load_dword v255, v{v_h0}, {srd_s(SRD_P)}, s{s_t2} offen")
        a.e("s_and_b64 exec, exec, 1")
        a.e(f"buffer_load_dword v255, v{v_h0}, {srd_s(SRD_P)}, s{s_t2} offen")
        a.e(f"s_mov_b64 exec, s[{s_c0}:{s_c0+1}]")
        a.lab("P1_PFE")
        VM.q += ["pf"] * 3
    s_cs = 51
    def cs_loads():
        a.e(f"s_lshr_b32 s{s_t1}, s2, 3")
        a.e(f"s_cmp_ge_u32 s{s_t1}, 14"); a.e(f"s_cselect_b32 s{s_t2}, 14, 0"); a.e(f"s_cselect_b32 s{s_t0}, 1, 0")
        a.e(f"s_cselect_b32 s54, s{S_WU}, s{S_WG}"); a.e(f"s_cselect_b32 s55, s{S_WU+1}, s{S_WG+1}")
        a.e(f"s_sub_u32 s{s_t2}, s{s_t1}, s{s_t2}")
        srd(a, SRD_P, 54, 512*3584)
        a.e(f"s_bfe_u32 s{s_t3}, s2, 0x10002"); a.e(f"s_mul_i32 s{s_t3}, s{s_t3}, 14"); a.e(f"s_add_u32 s{s_t2}, s{s_t2}, s{s_t3}")
        a.e(f"s_and_b32 s{s_t3}, s2, 3"); a.e(f"s_lshl_b32 s{s_t3}, s{s_t3}, 2"); a.e(f"s_add_u32 s{s_t3}, s{s_t3}, s{s_j}")
        a.e(f"s_mul_i32 s{s_cs}, s{s_t3}, 3584"); a.e(f"s_mul_i32 s{s_t0}, s{s_t0}, 1792"); a.e(f"s_add_u32 s{s_cs}, s{s_cs}, s{s_t0}")
        a.e(f"s_lshl_b32 s{s_t0}, s{s_t2}, 6"); a.e(f"s_add_u32 s{s_cs}, s{s_cs}, s{s_t0}"); a.e(f"s_lshl_b32 s{s_cs}, s{s_cs}, 2"); a.e(f"s_add_u32 s{s_cs}, s{s_cs}, {OFF_CS}")
        a.e(f"s_mul_i32 s{s_t3}, s{s_t3}, {32*3584}"); a.e(f"s_lshl_b32 s{s_t2}, s{s_t2}, 7"); a.e(f"s_add_u32 s{s_t3}, s{s_t3}, s{s_t2}")
        a.e(f"v_lshrrev_b32 v{v_h0}, 3, v0"); a.e(f"v_mul_u32_u24 v{v_h0}, 3584, v{v_h0}"); a.e(f"v_and_b32 v{v_h0+1}, 7, v0"); a.e(f"v_lshl_add_u32 v{v_h0}, v{v_h0+1}, 4, v{v_h0}")
        a.e(f"s_cmp_ge_u32 s{s_t1}, 28"); a.e(f"s_cselect_b32 s{s_t3}, 0x7f000000, s{s_t3}"); a.e(f"s_cselect_b32 s{s_cs}, 0x7f000000, s{s_cs}")
        for k in range(4):
            VM.op(f"buffer_load_dwordx4 {vr(v_csl+4*k,4)}, v{v_h0}, {srd_s(SRD_P)}, s{s_t3} offen", "cs")
            if k < 3: a.e(f"s_add_u32 s{s_t3}, s{s_t3}, {8*3584}")
    def cs_process():
        VM.need("cs")
        cs = csa; t = csa + 8
        for k in range(4):
            for r in range(4):
                x = v_csl + 4*k + r
                a.e(f"v_lshlrev_b32 v{t}, 16, v{x}"); a.e(f"v_and_b32 v{t+1}, 0xffff0000, v{x}")
                if k == 0: a.e(f"v_mov_b32 v{cs+2*r}, v{t}"); a.e(f"v_mov_b32 v{cs+2*r+1}, v{t+1}")
                else: a.e(f"v_pk_add_f32 {vr(cs+2*r,2)}, {vr(cs+2*r,2)}, {vr(t,2)}")
        a.e("s_nop 1")
        for j in range(8): a.e(f"v_add_f32_dpp v{cs+j}, v{cs+j}, v{cs+j} row_ror:8 row_mask:0xf bank_mask:0xf")
        for op in ("v_permlane16_swap_b32", "v_permlane32_swap_b32"):
            for j in range(8): a.e(f"v_mov_b32 v{t+j}, v{cs+j}")
            a.e("s_nop 1")
            for j in range(8): a.e(f"{op} v{cs+j}, v{t+j}")
            a.e("s_nop 1")
            for j in range(8): a.e(f"v_add_f32 v{cs+j}, v{cs+j}, v{t+j}")
        a.e(f"v_lshlrev_b32 v{t}, 5, v0")
        a.e("v_cmp_gt_u32 vcc, 8, v0"); a.e(f"s_and_saveexec_b64 s[{s_c0}:{s_c0+1}], vcc")
        for q in range(2): VM.op(f"buffer_store_dwordx4 {vr(cs+4*q,4)}, v{t}, {WSS}, s{s_cs} offen offset:{16*q}{SC1}", "csst")
        a.e(f"s_mov_b64 exec, s[{s_c0}:{s_c0+1}]")
    for s in range(NSTG):
        VM.need(("st", s))
        if s == 0: a.e("s_waitcnt lgkmcnt(0)")
        a.e("s_barrier")
        if s % 2 == 0: T(4 + s // 2)
        lim = min(NSTG - 1, s - 1 + NST)
        while nxt <= lim:
            issue(nxt); nxt += 1
        if s == 0: wphi_frags(v_tmp)
        if s == opt.get("cs_stage", 5): cs_loads()
        if s == NSTG - 1:
            if opt.get("prefetch", True): prefetch_weights()
    a.e(f"s_lshl_b32 s{s_t2}, s{s_j}, 11")
    a.e(f"v_lshlrev_b32 v{v_h0}, 4, v0"); a.e(f"v_add_u32 v{v_h0}, s{s_t2}, v{v_h0}")
    a.e(f"s_mov_b32 s{s_role}, 1")
    T(8)
    a.e("s_barrier")
    a.e("s_barrier")
    T(9)
    a.e(f"ds_read_b128 {vr(v_x0,4)}, v{v_h0} offset:{QX}")
    a.e(f"ds_read_b128 {vr(v_x0+4,4)}, v{v_h0} offset:{QX+1024}")
    a.e("s_waitcnt lgkmcnt(0)")
    a.e("s_branch P1_SOFTMAX")
    a.lab("P1_CONS")
    Cp = VAlloc(ln_end)
    v_t = Cp(8, 4)
    s_tb, s_hp, s_blk, s_zf = 60, 61, 50, 51
    a.e(f"s_and_b32 s{s_tb}, s{s_w}, 1"); a.e(f"s_lshr_b32 s{s_hp}, s{s_w}, 1")
    for i in range(4): a.e(f"v_mov_b32 v{v_t+i}, 0")
    a.e(f"v_mov_b32 v{v_t+4}, {ZERO}")
    a.e(f"ds_write_b128 v{v_t+4}, {vr(v_t,4)}")
    a.e(f"ds_write_b32 v{v_t+4}, v{v_t} offset:16")
    a.e("s_waitcnt lgkmcnt(0)")
    srd(a, SRD_X, S_X, 2048*1024); srd(a, SRD_WS, S_WS, WS_BYTES); srd(a, SRD_DB, S_DBG, 256)
    x_loads()
    a.e("s_barrier")
    if opt.get("codepf", True):
        a.e(f"s_cmp_eq_u32 s{s_w}, 1"); a.e("s_cbranch_scc0 P1_NOCPF")
        a.e("s_getpc_b64 s[62:63]")
        a.lab("P1_PC")
        a.e(f"s_sub_u32 s62, s62, P1_PC-{KNAME}"); a.e("s_subb_u32 s63, s63, 0")
        a.e(f"s_lshr_b32 s{s_t2}, s2, 3"); a.e(f"s_mul_i32 s{s_t2}, s{s_t2}, 12"); a.e(f"v_add_u32 v{v_dum+1}, s{s_t2}, v0"); a.e(f"v_lshlrev_b32 v{v_dum+1}, 7, v{v_dum+1}")
        a.e(f"v_cmp_gt_u32 vcc, 12, v0"); a.e(f"s_and_saveexec_b64 s[{s_c0}:{s_c0+1}], vcc")
        a.e(f"s_mov_b32 s{s_t2}, ALL_END-{KNAME}")
        a.e(f"v_cmp_gt_u32 vcc, s{s_t2}, v{v_dum+1}"); a.e("s_and_b64 exec, exec, vcc")
        a.e("s_cbranch_execz P1_CPFX")
        a.e(f"global_load_dword v255, v{v_dum+1}, s[62:63]")
        a.lab("P1_CPFX")
        a.e(f"s_mov_b64 exec, s[{s_c0}:{s_c0+1}]")
        a.lab("P1_NOCPF")
    a.e(f"s_cmp_eq_u32 s{s_w}, 0")
    a.e("s_cbranch_scc0 P1_NOTK")
    a.e(f"v_mov_b32 v{v_t+6}, {OFF_NONCE}")
    a.e(f"buffer_load_dword v{v_t+7}, v{v_t+6}, {WSS}, 0 offen sc1")
    a.e(f"s_lshl_b32 s{s_t2}, s{s_hq}, 2")
    a.e(f"v_mov_b32 v{v_t+4}, s{s_t2}"); a.e(f"v_mov_b32 v{v_t+5}, 1")
    a.e("v_cmp_eq_u32 vcc, 0, v0")
    a.e(f"s_and_saveexec_b64 s[{s_c0}:{s_c0+1}], vcc")
    a.e(f"buffer_atomic_add v{v_t+5}, v{v_t+4}, {srd_s(SRD_DB)}, 0 offen sc0")
    a.e(f"s_mov_b64 exec, s[{s_c0}:{s_c0+1}]")
    a.lab("P1_NOTK")
    T(1)
    a.e("s_waitcnt vmcnt(8)")
    T(2)
    layernorm(0)
    a.e(f"s_cmp_eq_u32 s{s_w}, 0"); a.e("s_cbranch_scc1 P1_W0")
    a.e(f"s_cmp_eq_u32 s{s_w}, 1"); a.e("s_cbranch_scc1 P1_W1")
    a.e("s_waitcnt vmcnt(0)"); a.e("s_branch P1_W2")
    a.lab("P1_W0"); a.e("s_waitcnt vmcnt(2)"); a.e("s_branch P1_W2")
    a.lab("P1_W1"); a.e("s_waitcnt vmcnt(0)")
    a.lab("P1_W2")
    layernorm(1)
    T(3)
    a.e(f"s_cmp_eq_u32 s{s_w}, 0")
    a.e("s_cbranch_scc0 P1_NOZERO")
    a.e("s_waitcnt vmcnt(0)")
    a.e(f"v_readfirstlane_b32 s{s_ep}, v{v_t+7}")
    a.e(f"v_readfirstlane_b32 s{s_t2}, v{v_t+5}")
    a.e("s_nop 3")
    a.e(f"s_add_u32 s{s_ep}, s{s_ep}, 1")
    a.e(f"s_cmp_eq_u32 s{s_t2}, 0")
    a.e("s_cbranch_scc0 P1_NOZERO")
    a.e(f"s_mul_i32 s{s_t2}, s{s_hq}, 8704"); a.e(f"s_add_u32 s{s_t2}, s{s_t2}, {OFF_KV}")
    a.e(f"v_lshlrev_b32 v{v_t+4}, 4, v0")
    for i in range(8):
        if i == 4: a.e(f"s_add_u32 s{s_t2}, s{s_t2}, 4096")
        a.e(f"buffer_store_dwordx4 {vr(v_t,4)}, v{v_t+4}, {WSS}, s{s_t2} offen offset:{(i%4)*1024} sc1")
    a.e("v_cmp_gt_u32 vcc, 32, v0")
    a.e(f"s_and_saveexec_b64 s[{s_c0}:{s_c0+1}], vcc")
    a.e(f"s_add_u32 s{s_t2}, s{s_t2}, 4096")
    a.e(f"buffer_store_dwordx4 {vr(v_t,4)}, v{v_t+4}, {WSS}, s{s_t2} offen sc1")
    a.e(f"s_mov_b64 exec, s[{s_c0}:{s_c0+1}]")
    a.e(f"s_mov_b32 s{s_zf}, 1")
    a.e("s_branch P1_ZD")
    a.lab("P1_NOZERO")
    a.e(f"s_mov_b32 s{s_zf}, 0")
    a.lab("P1_ZD")
    C = VAlloc(common_end)
    acc = C(48, 4); v_xa = C(4); v_xb = C(4); v_wad = C(1); fx_ = C(8, 4); fw = C(24, 4); v_t = C(8, 4)
    a.e(f"v_and_b32 v{v_t}, 31, v0"); a.e(f"v_lshrrev_b32 v{v_t+1}, 5, v0")
    a.e(f"v_lshrrev_b32 v{v_t+2}, 1, v{v_t}"); a.e(f"v_and_b32 v{v_t+2}, 7, v{v_t+2}"); a.e(f"v_xor_b32 v{v_t+1}, v{v_t+1}, v{v_t+2}")
    a.e(f"v_lshlrev_b32 v{v_t}, 7, v{v_t}"); a.e(f"v_lshl_add_u32 v{v_xb}, v{v_t+1}, 4, v{v_t}")
    a.e(f"s_lshl_b32 s{s_t2}, s{s_tb}, 12"); a.e(f"s_add_u32 s{s_t2}, s{s_t2}, {XR}"); a.e(f"v_add_u32 v{v_xb}, s{s_t2}, v{v_xb}")
    for t in range(1, 4): a.e(f"v_xor_b32 v{v_xb+t}, {t<<5}, v{v_xb}")
    a.e(f"s_mov_b32 s{s_blk}, s{s_rot}")
    def set_xblk():
        a.e(f"s_lshl_b32 s{s_t2}, s{s_blk}, 13")
        for t in range(4): a.e(f"v_add_u32 v{v_xa+t}, s{s_t2}, v{v_xb+t}")
        a.e(f"s_add_u32 s{s_blk}, s{s_blk}, 1"); a.e(f"s_and_b32 s{s_blk}, s{s_blk}, 7")
    set_xblk()
    a.e(f"v_lshrrev_b32 v{v_t}, 5, v0"); a.e(f"v_lshlrev_b32 v{v_t}, 3, v{v_t}")
    a.e(f"v_bfe_u32 v{v_t+1}, v0, 2, 2"); a.e(f"v_add_u32 v{v_t}, v{v_t}, v{v_t+1}"); a.e(f"v_mul_u32_u24 v{v_t}, 384, v{v_t}")
    a.e(f"v_bfe_u32 v{v_t+1}, v0, 3, 1"); a.e(f"v_xor_b32 v{v_t+1}, s{s_hp}, v{v_t+1}"); a.e(f"v_lshl_add_u32 v{v_t}, v{v_t+1}, 6, v{v_t}")
    a.e(f"v_and_b32 v{v_t+1}, 1, v0"); a.e(f"v_lshl_add_u32 v{v_t}, v{v_t+1}, 5, v{v_t}")
    a.e(f"v_bfe_u32 v{v_t+1}, v0, 1, 1"); a.e(f"v_bfe_u32 v{v_t+2}, v0, 4, 1"); a.e(f"v_lshl_add_u32 v{v_t+1}, v{v_t+2}, 1, v{v_t+1}")
    a.e(f"v_lshl_add_u32 v{v_wad}, v{v_t+1}, 3, v{v_t}"); a.e(f"v_add_u32 v{v_wad}, {WR}, v{v_wad}")
    for i in range(48): a.e(f"v_mov_b32 v{acc+i}, 0")
    LG = Cnt(a, "lgkmcnt", 15)
    def reads(s, t):
        p = t & 1; o = []
        o.append(lambda: LG.op(f"ds_read_b128 {vr(fx_+4*p,4)}, v{v_xa+t}", ("x", s, t)))
        for cb in range(3):
            for k in range(2):
                o.append(lambda cb=cb, k=k: LG.op(f"ds_read_b64_tr_b16 {vr(fw+12*p+4*cb+2*k,2)}, v{v_wad} offset:{t*6144+cb*128+k*1536}", ("w", s, t, cb)))
        return o
    def step(s, t, nxt_):
        p = t & 1
        def m(cb):
            LG.need(("x", s, t), ("w", s, t, cb))
            a.e(f"{MF} {vr(acc+16*cb,16)}, {vr(fw+12*p+4*cb,4)}, {vr(fx_+4*p,4)}, {vr(acc+16*cb,16)}")
        if t < 3:
            f = nxt_
            m(0); f[0](); f[1](); f[2](); m(1); f[3](); f[4](); m(2); f[5](); f[6]()
        else:
            m(0)
            if nxt_ is not None:
                LG.drain()
                a.e("s_barrier")
                delta = WSLOT if (s + 1) % NST != 0 else -(NST - 1) * WSLOT
                a.e(f"v_add_u32 v{v_wad}, {delta & 0xffffffff:#x}, v{v_wad}")
                set_xblk()
                f = nxt_
                f[0](); f[1](); f[2](); m(1); f[3](); f[4](); m(2); f[5](); f[6]()
            else:
                m(1); m(2)
    a.e("s_waitcnt lgkmcnt(0)")
    a.e("s_barrier")
    T(4)
    for f in reads(0, 0): f()
    wphi_frags(v_tmp)
    LG.q += [("wa", k) for k in range(4)]
    v_zf = C(2, 2)
    for s in range(NSTG):
        for t in range(4):
            nx = reads(s, t + 1) if t < 3 else (reads(s + 1, 0) if s + 1 < NSTG else None)
            step(s, t, nx)
        if s == 1:
            a.e(f"s_cmp_eq_u32 s{s_zf}, 1"); a.e("s_cbranch_scc0 P1_NOPUB")
            a.e("s_waitcnt vmcnt(0)")
            a.e(f"s_lshl_b32 s{s_t2}, s{s_hq}, 2"); a.e(f"v_mov_b32 v{v_zf}, s{s_t2}"); a.e(f"v_mov_b32 v{v_zf+1}, 1")
            a.e("v_cmp_eq_u32 vcc, 0, v0"); a.e(f"s_and_saveexec_b64 s[{s_c0}:{s_c0+1}], vcc")
            a.e(f"buffer_store_dword v{v_zf+1}, v{v_zf}, {srd_s(SRD_DB)}, 0 offen offset:64 sc1")
            a.e(f"s_mov_b64 exec, s[{s_c0}:{s_c0+1}]")
            a.lab("P1_NOPUB")
        if s == 5:
            a.e(f"s_lshl_b32 s{s_t2}, s{s_hq}, 2"); a.e(f"v_mov_b32 v{v_zf}, s{s_t2}")
            a.e(f"buffer_load_dword v{v_zf+1}, v{v_zf}, {srd_s(SRD_DB)}, 0 offen offset:64 sc1")
    T(5)
    a.e("s_barrier")
    a.e(f"s_lshl_b32 s{s_t2}, s{s_j}, 11")
    a.e(f"v_lshlrev_b32 v{v_t}, 4, v0"); a.e(f"v_add_u32 v{v_t}, s{s_t2}, v{v_t}")
    a.e("s_nop 7")
    for i in range(8): a.e(f"v_cvt_pk_bf16_f32 v{v_x0+i}, v{acc+2*i}, v{acc+2*i+1}")
    a.e(f"ds_write_b128 v{v_t}, {vr(v_x0,4)} offset:{QX}")
    a.e(f"ds_write_b128 v{v_t}, {vr(v_x0+4,4)} offset:{QX+1024}")
    a.e("s_waitcnt lgkmcnt(0)")
    a.e("s_barrier")
    T(6)
    for i in range(8): a.e(f"v_cvt_pk_bf16_f32 v{v_x0+i}, v{acc+16+2*i}, v{acc+16+2*i+1}")
    for i in range(8): a.e(f"v_cvt_pk_bf16_f32 v{acc+32+i}, v{acc+32+2*i}, v{acc+32+2*i+1}")
    a.e(f"v_and_b32 v{v_t}, 31, v0"); a.e(f"s_lshl_b32 s{s_t2}, s{s_tb}, 5"); a.e(f"v_add_u32 v{v_t}, s{s_t2}, v{v_t}")
    a.e(f"v_mul_u32_u24 v{v_t}, 160, v{v_t}")
    a.e(f"v_lshrrev_b32 v{v_t+1}, 5, v0"); a.e(f"s_lshl_b32 s{s_t2}, s{s_hp}, 6")
    a.e(f"v_lshl_add_u32 v{v_t+2}, v{v_t+1}, 5, v{v_t}"); a.e(f"v_add_u32 v{v_t+2}, s{s_t2}, v{v_t+2}")
    a.e(f"ds_write_b128 v{v_t+2}, {vr(acc+32,4)} offset:{VV}")
    a.e(f"ds_write_b128 v{v_t+2}, {vr(acc+36,4)} offset:{VV+16}")
    a.e(f"v_lshl_add_u32 v{v_t+2}, v{v_t+1}, 4, v{v_t}")
    for i in range(4): a.e(f"v_mov_b32 v{acc+40+i}, 0x3f803f80")
    a.e(f"ds_write_b128 v{v_t+2}, {vr(acc+40,4)} offset:{VV+128}")
    a.e(f"s_mov_b32 s{s_role}, 0")
    a.lab("P1_SOFTMAX")
    softmax_block(a, v_wa, v_x0, v_p, v_en, v_pk, v_tmp, v_c)
    a.e(f"s_cmp_eq_u32 s{s_role}, 0")
    a.e("s_cbranch_scc1 P1_CONS2")
    a.e(f"s_lshl_b32 s{s_t0}, s{s_rb}, 1"); a.e(f"s_and_b32 s{s_t1}, s{s_j}, 1"); a.e(f"s_add_u32 s{s_t0}, s{s_t0}, s{s_t1}")
    a.e(f"s_lshl_b32 s{s_t0}, s{s_t0}, 5"); a.e(f"s_lshl_b32 s{s_t1}, s{s_hq}, 2"); a.e(f"s_add_u32 s{s_t0}, s{s_t0}, s{s_t1}")
    a.e(f"s_lshr_b32 s{s_t1}, s{s_j}, 1"); a.e(f"s_lshl_b32 s{s_t1}, s{s_t1}, 1"); a.e(f"s_add_u32 s{s_t0}, s{s_t0}, s{s_t1}")
    a.e(f"s_lshl_b32 s{s_t0}, s{s_t0}, 11"); a.e(f"s_add_u32 s{s_t0}, s{s_t0}, {OFF_PHIQ}")
    a.e(f"v_and_b32 v{v_tmp}, 31, v0"); a.e(f"v_lshrrev_b32 v{v_tmp+1}, 5, v0")
    a.e(f"v_lshlrev_b32 v{v_tmp}, 4, v{v_tmp}"); a.e(f"v_lshl_add_u32 v{v_tmp}, v{v_tmp+1}, 11, v{v_tmp}")
    for i in range(4):
        VM.op(f"buffer_store_dwordx4 {vr(v_pk+4*i,4)}, v{v_tmp}, {WSS}, s{s_t0} offen offset:{(i>>1)*1024+(i&1)*512}{SC1}", "phst")
    T(10)
    cs_process()
    T(11); T.real(14); T.dump(S_WS, s_w, v_tmp)
    a.e("s_branch P1_DONE")
    a.lab("P1_CONS2")
    t0 = v_tmp
    a.e(f"v_and_b32 v{t0}, 3, v0"); a.e(f"v_lshlrev_b32 v{t0}, 2, v{t0}")
    a.e(f"v_and_b32 v{t0+1}, 2, v0"); a.e(f"v_or_b32 v{t0}, v{t0}, v{t0+1}")
    a.e(f"v_bfe_u32 v{t0+1}, v0, 2, 1"); a.e(f"v_or_b32 v{t0}, v{t0}, v{t0+1}")
    a.e(f"v_lshrrev_b32 v{t0+1}, 5, v0"); a.e(f"s_lshl_b32 s{s_t2}, s{s_hp}, 1"); a.e(f"v_add_u32 v{t0+1}, s{s_t2}, v{t0+1}")
    a.e(f"v_lshlrev_b32 v{t0+1}, 2, v{t0+1}"); a.e(f"v_xor_b32 v{t0}, v{t0}, v{t0+1}")
    a.e(f"v_and_b32 v{t0+1}, 31, v0"); a.e(f"s_lshl_b32 s{s_t2}, s{s_tb}, 5"); a.e(f"v_add_u32 v{t0+1}, s{s_t2}, v{t0+1}")
    a.e(f"v_lshlrev_b32 v{t0+1}, 8, v{t0+1}"); a.e(f"v_lshl_add_u32 v{t0}, v{t0}, 4, v{t0+1}")
    for i in range(4):
        if i: a.e(f"v_xor_b32 v{t0+1}, {i<<4}, v{t0}")
        a.e(f"ds_write_b128 v{t0 if i == 0 else t0+1}, {vr(v_pk+4*i,4)} offset:{PHIK}")
    a.e("s_waitcnt lgkmcnt(0)")
    T(7)
    a.e(f"v_mov_b32 v{t0+6}, {ZERO+16}"); a.e(f"v_mov_b32 v{t0+7}, 1")
    a.e("v_cmp_eq_u32 vcc, 0, v0"); a.e(f"s_and_saveexec_b64 s[{s_c0}:{s_c0+1}], vcc")
    a.e(f"ds_add_u32 v{t0+6}, v{t0+7}")
    a.e(f"s_mov_b64 exec, s[{s_c0}:{s_c0+1}]")
    a.lab("P1_RDV")
    a.e(f"ds_read_b32 v{t0+7}, v{t0+6}")
    a.e("s_waitcnt lgkmcnt(0)")
    a.e(f"v_readfirstlane_b32 s{s_t2}, v{t0+7}")
    a.e("s_nop 3")
    a.e(f"s_cmp_lt_u32 s{s_t2}, 4")
    a.e("s_cbranch_scc1 P1_RDV")
    T(8)
    kvacc = v_p; fa = v_en; fb = v_en + 8
    a.e(f"v_lshrrev_b32 v{t0}, 5, v0"); a.e(f"v_lshlrev_b32 v{t0}, 3, v{t0}")
    a.e(f"v_bfe_u32 v{t0+1}, v0, 2, 2"); a.e(f"v_add_u32 v{t0}, v{t0}, v{t0+1}")
    a.e(f"v_and_b32 v{t0+2}, 3, v0")
    a.e(f"v_mul_u32_u24 v{t0+3}, 160, v{t0}"); a.e(f"v_lshl_add_u32 v{t0+3}, v{t0+2}, 3, v{t0+3}")
    a.e(f"s_lshl_b32 s{s_t2}, s{s_w}, 5"); a.e(f"v_mov_b32 v{t0+4}, s{s_t2}")
    a.e(f"v_bfe_u32 v{t0+5}, v0, 4, 1"); a.e(f"v_cmp_eq_u32 vcc, 1, v{t0+5}")
    a.e(f"v_mov_b32 v{t0+6}, 128")
    a.e("s_nop 0")
    a.e(f"v_cndmask_b32 v{t0+4}, v{t0+4}, v{t0+6}, vcc"); a.e(f"v_add_u32 v{t0+3}, v{t0+3}, v{t0+4}")
    a.e(f"v_lshrrev_b32 v{t0+4}, 1, v{t0+2}"); a.e(f"v_lshl_add_u32 v{t0+4}, v{t0+5}, 1, v{t0+4}")
    a.e(f"s_lshl_b32 s{s_t2}, s{s_w}, 2"); a.e(f"v_add_u32 v{t0+4}, s{s_t2}, v{t0+4}")
    a.e(f"v_lshlrev_b32 v{t0+5}, 2, v{t0+1}"); a.e(f"v_and_b32 v{t0+6}, 2, v{t0+1}"); a.e(f"v_or_b32 v{t0+5}, v{t0+5}, v{t0+6}")
    a.e(f"v_xor_b32 v{t0+4}, v{t0+4}, v{t0+5}")
    a.e(f"v_lshlrev_b32 v{t0+4}, 4, v{t0+4}"); a.e(f"v_lshl_add_u32 v{t0+4}, v{t0}, 8, v{t0+4}")
    a.e(f"v_and_b32 v{t0+5}, 1, v{t0+2}"); a.e(f"v_lshl_add_u32 v{t0+4}, v{t0+5}, 3, v{t0+4}")
    a.e(f"v_xor_b32 v{t0+5}, 16, v{t0+4}")
    def kv_rd(u, buf):
        a.e(f"ds_read_b64_tr_b16 {vr(fa+4*buf,2)}, v{t0+3} offset:{VV+u*2560}")
        a.e(f"ds_read_b64_tr_b16 {vr(fa+4*buf+2,2)}, v{t0+3} offset:{VV+u*2560+640}")
        a.e(f"ds_read_b64_tr_b16 {vr(fb+4*buf,2)}, v{t0+4} offset:{PHIK+u*4096}")
        a.e(f"ds_read_b64_tr_b16 {vr(fb+4*buf+2,2)}, v{t0+5} offset:{PHIK+u*4096+1024}")
    kv_rd(0, 0)
    for u in range(4):
        if u < 3: kv_rd(u + 1, (u + 1) & 1); a.e("s_waitcnt lgkmcnt(4)")
        else: a.e("s_waitcnt lgkmcnt(0)")
        a.e(f"{MF} {vr(kvacc,16)}, {vr(fa+4*(u&1),4)}, {vr(fb+4*(u&1),4)}, {'0' if u == 0 else vr(kvacc,16)}")
    T(9)
    a.e("s_waitcnt vmcnt(0)")
    a.e(f"s_mov_b32 s{s_t3}, 0")
    a.lab("P1_POLL")
    a.e(f"v_readfirstlane_b32 s{s_t2}, v{v_zf+1}")
    a.e(f"s_add_u32 s{s_t3}, s{s_t3}, 1")
    a.e("s_nop 2")
    a.e(f"s_cmp_lg_u32 s{s_t2}, 0")
    a.e("s_cbranch_scc1 P1_GO")
    a.e(f"s_cmp_ge_u32 s{s_t3}, 40000"); a.e("s_cbranch_scc1 P1_GO")
    a.e(f"buffer_load_dword v{v_zf+1}, v{v_zf}, {srd_s(SRD_DB)}, 0 offen offset:64 sc1")
    a.e("s_waitcnt vmcnt(0)")
    a.e("s_branch P1_POLL")
    a.lab("P1_GO")
    a.e(f"s_lshl_b32 s{s_t2}, s{s_hq}, 2"); a.e(f"s_add_u32 s{s_t2}, s{s_t2}, s{s_w}")
    a.e(f"s_mul_i32 s{s_t2}, s{s_t2}, {17*128}"); a.e(f"s_add_u32 s{s_t2}, s{s_t2}, {OFF_KV}")
    a.e(f"v_and_b32 v{t0}, 31, v0"); a.e(f"v_lshlrev_b32 v{t0}, 2, v{t0}")
    a.e(f"v_lshrrev_b32 v{t0+1}, 5, v0"); a.e(f"v_lshl_add_u32 v{t0+2}, v{t0+1}, 9, v{t0}")
    a.e("s_nop 7")
    for r in range(8):
        a.e(f"buffer_atomic_add_f32 v{kvacc+r}, v{t0+2}, {WSS}, s{s_t2} offen offset:{((r&3)+8*(r>>2))*128}")
    a.e("v_cmp_gt_u32 vcc, 32, v0")
    a.e(f"s_and_saveexec_b64 s[{s_c0}:{s_c0+1}], vcc")
    a.e(f"buffer_atomic_add_f32 v{kvacc+8}, v{t0}, {WSS}, s{s_t2} offen offset:{16*128}")
    a.e(f"s_mov_b64 exec, s[{s_c0}:{s_c0+1}]")
    T(10); T.real(14); T.dump(S_WS, s_w, v_tmp)
    a.lab("P1_DONE")
    return max(H.hi, C.hi, Cp.hi, L.hi)

def phase2(a, dbg, opt):
    T = Stamps(a, dbg, 1)
    WO = 73728; KVB = 8192; RED = 73728
    SRD_X, SRD_WO = SRD_B, SRD_C
    s_rb, s_cb = 56, 57
    s_pb, s_wb, s_m, s_ph, s_a, s_b = 58, 59, 60, 61, 62, 63
    T.real(15); T(0)
    a.e(f"s_and_b32 s{s_t0}, s2, 7"); a.e(f"s_lshr_b32 s{s_t1}, s2, 3")
    a.e(f"s_lshl_b32 s{s_rb}, s{s_t0}, 2"); a.e(f"s_and_b32 s{s_t2}, s{s_t1}, 3"); a.e(f"s_add_u32 s{s_rb}, s{s_rb}, s{s_t2}")
    a.e(f"s_lshr_b32 s{s_cb}, s{s_t1}, 2")
    def all_wgs(a, v): a.e(f"v_mov_b32 v{v}, v0")
    a.e(f"s_cmp_ge_u32 s{s_w}, 4")
    a.e("s_cbranch_scc0 P2_CONS")
    H = VAlloc(2)
    v_dma = H(1); v_l16 = H(1); v_kw = H(1); v_t = H(4); v_kv = H(68, 4)
    a.e(f"v_lshrrev_b32 v{v_t}, 3, v0"); a.e(f"v_lshlrev_b32 v{v_t}, 10, v{v_t}")
    a.e(f"v_bfe_u32 v{v_t+1}, v0, 4, 1"); a.e(f"v_lshlrev_b32 v{v_t+1}, 2, v{v_t+1}")
    a.e(f"v_and_b32 v{v_t+2}, 7, v0"); a.e(f"v_xor_b32 v{v_t+1}, v{v_t+1}, v{v_t+2}")
    a.e(f"v_lshl_add_u32 v{v_dma}, v{v_t+1}, 4, v{v_t}")
    a.e(f"v_lshlrev_b32 v{v_l16}, 4, v0")
    srd(a, SRD_WO, S_WO, 512*1024)
    VM = Cnt(a, "vmcnt", 63)
    def wo_dma():
        a.e(f"s_lshl_b32 s{s_wb}, s{s_j}, 17"); a.e(f"s_lshl_b32 s{s_t2}, s{s_cb}, 7"); a.e(f"s_add_u32 s{s_wb}, s{s_wb}, s{s_t2}")
        a.e(f"s_lshl_b32 s{s_m}, s{s_j}, 14")
        for hd in range(8):
            a.e(f"s_add_u32 s{s_ph}, s{s_cb}, {hd}"); a.e(f"s_and_b32 s{s_ph}, s{s_ph}, 7")
            a.e(f"s_lshl_b32 s{s_a}, s{s_ph}, 14"); a.e(f"s_add_u32 s{s_a}, s{s_a}, s{s_wb}")
            for i in range(2):
                a.e(f"s_add_u32 m0, s{s_m}, {WO + (hd*2+i)*1024}")
                if i: a.e(f"s_add_u32 s{s_a}, s{s_a}, 8192")
                else: a.e("s_nop 0")
                VM.op(f"buffer_load_dwordx4 v{v_dma}, {srd_s(SRD_WO)}, s{s_a} offen lds", "wo")
    signal(a, 0, v_t, "1H", pub=False)
    wo_dma()
    waitflags(a, 0, v_t, "1H", all_wgs, nper=4, poller=False)
    T(1)
    s_kc = s_ph
    a.e(f"s_mul_i32 s{s_t0}, s{s_j}, 17408"); a.e(f"s_add_u32 s{s_t0}, s{s_t0}, {OFF_KV}")
    a.e(f"s_lshr_b32 s{s_t3}, s2, 3"); a.e(f"s_cmp_ge_u32 s{s_t3}, 17"); a.e(f"s_cselect_b32 s{s_t2}, 17, 0"); a.e(f"s_sub_u32 s{s_t3}, s{s_t3}, s{s_t2}")
    a.e(f"s_mov_b32 s{s_kc}, s{s_t3}")
    for i in range(17):
        a.e(f"s_lshl_b32 s{s_t1}, s{s_kc}, 10"); a.e(f"s_add_u32 s{s_t1}, s{s_t1}, s{s_t0}")
        VM.op(f"buffer_load_dwordx4 {vr(v_kv+4*i,4)}, v{v_l16}, {WSS}, s{s_t1} offen{SC1}", "kv")
        a.e(f"s_add_u32 s{s_kc}, s{s_kc}, 1"); a.e(f"s_cmp_eq_u32 s{s_kc}, 17"); a.e(f"s_cselect_b32 s{s_kc}, 0, s{s_kc}")
    a.e(f"s_mul_i32 s{s_t0}, s{s_j}, 8704"); a.e(f"s_add_u32 s{s_t0}, s{s_t0}, {KVB}")
    a.e(f"v_lshlrev_b32 v{v_kw}, 3, v0"); a.e(f"v_add_u32 v{v_kw}, s{s_t0}, v{v_kw}")
    a.e(f"s_mov_b32 s{s_kc}, s{s_t3}")
    for i in range(17):
        if i % 4 == 0 or i == 16: a.e(f"s_waitcnt vmcnt({17 - min(i + 4, 17)})")
        b = v_kv + 4*i
        a.e(f"s_lshl_b32 s{s_t1}, s{s_kc}, 9"); a.e(f"v_add_u32 v{v_t}, s{s_t1}, v{v_kw}")
        a.e(f"v_cvt_pk_bf16_f32 v{b}, v{b}, v{b+1}"); a.e(f"v_cvt_pk_bf16_f32 v{b+1}, v{b+2}, v{b+3}")
        a.e(f"ds_write_b64 v{v_t}, {vr(b,2)}")
        a.e(f"s_add_u32 s{s_kc}, s{s_kc}, 1"); a.e(f"s_cmp_eq_u32 s{s_kc}, 17"); a.e(f"s_cselect_b32 s{s_kc}, 0, s{s_kc}")
    a.e("s_waitcnt vmcnt(0) lgkmcnt(0)")
    T(2)
    a.e("s_barrier")
    a.e("s_barrier")
    if opt.get("pf3", False): pass
    a.e("s_barrier")
    T(3); T.real(14); T.dump(S_WS, s_w, v_t)
    a.e("s_branch P2_DONE")
    a.lab("P2_CONS")
    V = VAlloc(2)
    v_l16 = V(1); v_ka = V(1); v_wa0 = V(1); v_wa1 = V(1); v_t = V(8, 2)
    v_xr = V(8, 4); acc = V(64, 4); D = V(64, 4); kA = V(8, 4); wA = V(16, 4); oF = V(8, 4)
    AH = opt.get("ah", 3); NPH = AH + 1
    PHI = V(16 * NPH, 4)
    a.e(f"v_lshlrev_b32 v{v_l16}, 4, v0")
    srd(a, SRD_X, S_X, 2048*1024)
    VM = Cnt(a, "vmcnt", 63); LG = Cnt(a, "lgkmcnt", 15)
    signal(a, 0, v_t, "1C")
    s_tbg, s_cn = 50, 51
    a.e(f"v_and_b32 v{v_t}, 31, v0"); a.e(f"v_lshlrev_b32 v{v_t}, 10, v{v_t}")
    a.e(f"v_lshrrev_b32 v{v_t+1}, 5, v0"); a.e(f"v_lshl_add_u32 v{v_t}, v{v_t+1}, 4, v{v_t}")
    a.e(f"s_and_b32 s{s_t0}, s{s_w}, 1"); a.e(f"s_lshl_b32 s{s_tbg}, s{s_rb}, 1"); a.e(f"s_add_u32 s{s_tbg}, s{s_tbg}, s{s_t0}")
    a.e(f"s_lshl_b32 s{s_t1}, s{s_tbg}, 15")
    a.e(f"s_lshr_b32 s{s_t2}, s{s_w}, 1"); a.e(f"s_lshl_b32 s{s_cn}, s{s_cb}, 1"); a.e(f"s_add_u32 s{s_cn}, s{s_cn}, s{s_t2}")
    a.e(f"s_lshl_b32 s{s_t2}, s{s_cn}, 6"); a.e(f"s_add_u32 s{s_t1}, s{s_t1}, s{s_t2}")
    for i in range(2): a.e(f"buffer_load_dwordx4 {vr(v_xr+4*i,4)}, v{v_t}, {srd_s(SRD_X)}, s{s_t1} offen offset:{32*i}")
    a.e(f"s_mul_i32 s{s_t0}, s{s_w}, 8704"); a.e(f"s_add_u32 s{s_t0}, s{s_t0}, {KVB}")
    a.e(f"v_and_b32 v{v_t+2}, 31, v0"); a.e(f"v_min_u32 v{v_t+2}, 16, v{v_t+2}"); a.e(f"v_lshlrev_b32 v{v_t+2}, 6, v{v_t+2}")
    a.e(f"v_lshrrev_b32 v{v_t+3}, 5, v0"); a.e(f"v_lshl_add_u32 v{v_t+2}, v{v_t+3}, 4, v{v_t+2}")
    a.e(f"v_add_u32 v{v_ka}, s{s_t0}, v{v_t+2}")
    a.e(f"v_lshrrev_b32 v{v_t+2}, 5, v0"); a.e(f"v_lshlrev_b32 v{v_t+2}, 2, v{v_t+2}")
    a.e(f"v_bfe_u32 v{v_t+3}, v0, 2, 2"); a.e(f"v_add_u32 v{v_t+2}, v{v_t+2}, v{v_t+3}")
    a.e(f"v_lshlrev_b32 v{v_t+2}, 7, v{v_t+2}")
    a.e(f"v_bfe_u32 v{v_t+3}, v0, 3, 1"); a.e(f"v_lshl_add_u32 v{v_t+2}, v{v_t+3}, 6, v{v_t+2}")
    a.e(f"v_bfe_u32 v{v_t+3}, v0, 4, 1"); a.e(f"v_lshl_add_u32 v{v_t+2}, v{v_t+3}, 5, v{v_t+2}")
    a.e(f"v_and_b32 v{v_t+3}, 1, v0"); a.e(f"v_lshl_add_u32 v{v_t+2}, v{v_t+3}, 4, v{v_t+2}")
    a.e(f"v_bfe_u32 v{v_t+3}, v0, 1, 1"); a.e(f"v_lshl_add_u32 v{v_t+2}, v{v_t+3}, 3, v{v_t+2}")
    a.e(f"s_lshl_b32 s{s_t0}, s{s_w}, 14"); a.e(f"s_add_u32 s{s_t0}, s{s_t0}, {WO}")
    a.e(f"v_add_u32 v{v_wa0}, s{s_t0}, v{v_t+2}"); a.e(f"v_xor_b32 v{v_wa1}, 64, v{v_wa0}")
    for i in range(64): a.e(f"v_mov_b32 v{acc+i}, 0")
    a.e(f"s_lshl_b32 s{s_pb}, s{s_rb}, 6"); a.e(f"s_lshl_b32 s{s_t0}, s{s_w}, 3"); a.e(f"s_add_u32 s{s_pb}, s{s_pb}, s{s_t0}")
    a.e(f"s_lshl_b32 s{s_pb}, s{s_pb}, 11"); a.e(f"s_add_u32 s{s_pb}, s{s_pb}, {OFF_PHIQ}")
    waitflags(a, 0, D, "1C", all_wgs, nper=4)
    T(1)
    def issue_head(hd):
        a.e(f"s_add_u32 s{s_ph}, s{s_cb}, {hd}"); a.e(f"s_and_b32 s{s_ph}, s{s_ph}, 7")
        a.e(f"s_lshl_b32 s{s_a}, s{s_ph}, 11"); a.e(f"s_add_u32 s{s_a}, s{s_a}, s{s_pb}")
        a.e(f"s_add_u32 s{s_b}, s{s_a}, {32*2048}")
        for tb in range(2):
            for s in range(2):
                sp = s_a if tb == 0 else s_b
                VM.op(f"buffer_load_dwordx4 {vr(PHI+16*(hd%NPH)+(tb*2+s)*4,4)}, v{v_l16}, {WSS}, s{sp} offen offset:{s*1024}{SC1}", ("phi", hd))
    for hd in range(AH): issue_head(hd)
    a.e("s_barrier")
    T(2)
    def rd_k(hd):
        p = hd & 1
        a.e(f"s_add_u32 s{s_ph}, s{s_cb}, {hd}"); a.e(f"s_and_b32 s{s_ph}, s{s_ph}, 7"); a.e(f"s_mul_i32 s{s_ph}, s{s_ph}, 1088")
        a.e(f"v_add_u32 v{v_t+6}, s{s_ph}, v{v_ka}")
        for s in range(2): LG.op(f"ds_read_b128 {vr(kA+4*s,4)}, v{v_t+6} offset:{s*32}", ("k", hd))
    def rd_w(hd):
        p = hd & 1
        for nb in range(2):
            va = v_wa0 if nb == 0 else v_wa1
            LG.op(f"ds_read_b64_tr_b16 {vr(wA+8*p+4*nb,2)}, v{va} offset:{hd*2048}", ("w", hd))
            LG.op(f"ds_read_b64_tr_b16 {vr(wA+8*p+4*nb+2,2)}, v{va} offset:{hd*2048+1024}", ("w", hd))
    def num(hd):
        p = hd & 1
        VM.need(("phi", hd)); LG.need(("k", hd))
        for s in range(2):
            for tb in range(2):
                d = D + 32*p + 16*tb
                a.e(f"{MF} {vr(d,16)}, {vr(kA+4*s,4)}, {vr(PHI+16*(hd%NPH)+(tb*2+s)*4,4)}, {'0' if s == 0 else vr(d,16)}")
    def fin(hd):
        p = hd & 1
        for tb in range(2):
            d = D + 32*p + 16*tb
            a.e(f"v_add_f32 v{d+8}, {fx(1e-6)}, v{d+8}"); a.e(f"v_rcp_f32 v{d+8}, v{d+8}")
        a.e("s_nop 0")
        for tb in range(2):
            d = D + 32*p + 16*tb
            for i in range(0, 8, 2): a.e(f"v_pk_mul_f32 {vr(d+i,2)}, {vr(d+i,2)}, {vr(d+8,2)} op_sel_hi:[1,0]")
        for tb in range(2):
            d = D + 32*p + 16*tb
            for i in range(4): a.e(f"v_cvt_pk_bf16_f32 v{oF+4*tb+i}, v{d+2*i}, v{d+2*i+1}")
        LG.need(("w", hd))
        a.e("s_nop 1")
        for nb in range(2):
            for tb in range(2):
                ti = tb + 2*nb
                a.e(f"{MF} {vr(acc+16*ti,16)}, {vr(wA+8*p+4*nb,4)}, {vr(oF+4*tb,4)}, {vr(acc+16*ti,16)}")
    rd_k(0)
    for hd in range(8):
        num(hd)
        if hd + AH < 8: issue_head(hd + AH)
        if hd < 7: rd_k(hd + 1)
        rd_w(hd)
        if hd >= 1: fin(hd - 1)
    a.e("s_nop 7"); a.e("s_nop 3")
    fin(7)
    T(3)
    a.e("s_barrier")
    a.e(f"s_lshl_b32 s{s_t0}, s{s_w}, 12"); a.e(f"s_add_u32 s{s_t0}, s{s_t0}, {RED}")
    a.e(f"v_add_u32 v{v_t}, s{s_t0}, v{v_l16}")
    a.e("s_nop 7"); a.e("s_nop 3")
    for ti in range(4):
        for q in range(4): a.e(f"ds_write_b128 v{v_t}, {vr(acc+16*ti+4*q,4)} offset:{ti*16384+q*1024}")
    a.e("s_waitcnt lgkmcnt(0)")
    a.e("s_barrier")
    T(4)
    a.e(f"s_lshl_b32 s{s_t0}, s{s_w}, 14"); a.e(f"s_add_u32 s{s_t0}, s{s_t0}, {RED}")
    a.e(f"v_add_u32 v{v_t}, s{s_t0}, v{v_l16}")
    for sw in range(4):
        for q in range(4): a.e(f"ds_read_b128 {vr(acc+16*sw+4*q,4)}, v{v_t} offset:{sw*4096+q*1024}")
    a.e("s_waitcnt vmcnt(0) lgkmcnt(0)")
    for i in range(0, 16, 2):
        a.e(f"v_pk_add_f32 {vr(acc+i,2)}, {vr(acc+i,2)}, {vr(acc+16+i,2)}"); a.e(f"v_pk_add_f32 {vr(acc+32+i,2)}, {vr(acc+32+i,2)}, {vr(acc+48+i,2)}")
    for i in range(0, 16, 2): a.e(f"v_pk_add_f32 {vr(acc+i,2)}, {vr(acc+i,2)}, {vr(acc+32+i,2)}")
    for i in range(8):
        a.e(f"v_lshlrev_b32 v{v_t+2}, 16, v{v_xr+i}"); a.e(f"v_and_b32 v{v_t+3}, 0xffff0000, v{v_xr+i}")
        a.e(f"v_pk_add_f32 {vr(acc+2*i,2)}, {vr(acc+2*i,2)}, {vr(v_t+2,2)}")
        a.e(f"v_cvt_pk_bf16_f32 v{v_xr+i}, v{acc+2*i}, v{acc+2*i+1}")
    a.e(f"s_lshl_b32 s{s_t0}, s{s_tbg}, 5"); a.e(f"s_lshl_b32 s{s_t1}, s{s_cn}, 1"); a.e(f"s_add_u32 s{s_t0}, s{s_t0}, s{s_t1}")
    a.e(f"s_lshl_b32 s{s_t0}, s{s_t0}, 10"); a.e(f"s_add_u32 s{s_t0}, s{s_t0}, {OFF_H}")
    for i in range(2): a.e(f"buffer_store_dwordx4 {vr(v_xr+4*i,4)}, v{v_l16}, {WSS}, s{s_t0} offen offset:{i*1024}{SC1}")
    for i in range(8):
        a.e(f"v_lshlrev_b32 v{v_t+2}, 16, v{v_xr+i}"); a.e(f"v_and_b32 v{v_t+3}, 0xffff0000, v{v_xr+i}")
        if i == 0:
            a.e(f"v_mov_b32 v{v_t+4}, v{v_t+2}"); a.e(f"v_mov_b32 v{v_t+5}, v{v_t+3}"); a.e(f"v_pk_mul_f32 {vr(v_t+6,2)}, {vr(v_t+2,2)}, {vr(v_t+2,2)}")
        else:
            a.e(f"v_pk_add_f32 {vr(v_t+4,2)}, {vr(v_t+4,2)}, {vr(v_t+2,2)}"); a.e(f"v_pk_fma_f32 {vr(v_t+6,2)}, {vr(v_t+2,2)}, {vr(v_t+2,2)}, {vr(v_t+6,2)}")
    a.e(f"v_add_f32 v{v_t}, v{v_t+4}, v{v_t+5}"); a.e(f"v_add_f32 v{v_t+1}, v{v_t+6}, v{v_t+7}")
    xhalf_sum(a, v_t, v_t+3); xhalf_sum(a, v_t+1, v_t+4)
    a.e(f"s_lshl_b32 s{s_t0}, s{s_tbg}, 8"); a.e(f"s_lshl_b32 s{s_t1}, s{s_cn}, 14"); a.e(f"s_add_u32 s{s_t0}, s{s_t0}, s{s_t1}")
    a.e(f"s_add_u32 s{s_t0}, s{s_t0}, {OFF_ST2}")
    a.e(f"v_and_b32 v{v_t+2}, 31, v0"); a.e(f"v_lshlrev_b32 v{v_t+2}, 3, v{v_t+2}")
    a.e("v_cmp_gt_u32 vcc, 32, v0")
    a.e(f"s_and_saveexec_b64 s[{s_c0}:{s_c0+1}], vcc")
    a.e(f"buffer_store_dwordx2 {vr(v_t,2)}, v{v_t+2}, {WSS}, s{s_t0} offen{SC1}")
    a.e(f"s_mov_b64 exec, s[{s_c0}:{s_c0+1}]")
    T(5); T.real(14); T.dump(S_WS, s_w, v_t+4)
    a.lab("P2_DONE")
    return max(H.hi, V.hi), v_xr

def phase3(a, dbg, opt):
    T = Stamps(a, dbg, 2)
    NWG = 224
    STAT = 0; CSX = 1024
    RB = 8192; XB = 16384; SLOT = 49152; NST = 3; NSTG = 8
    SRD_G, SRD_U = SRD_B, SRD_C
    s_rb, s_cg, s_rot = 56, 57, 58
    T.real(15); T(0)
    a.e(f"s_and_b32 s{s_t0}, s2, 7"); a.e(f"s_lshr_b32 s{s_t1}, s2, 3")
    a.e(f"s_and_b32 s{s_rb}, s{s_t0}, 3"); a.e(f"s_lshl_b32 s{s_rb}, s{s_rb}, 2"); a.e(f"s_and_b32 s{s_t2}, s{s_t1}, 3"); a.e(f"s_add_u32 s{s_rb}, s{s_rb}, s{s_t2}")
    a.e(f"s_lshr_b32 s{s_cg}, s{s_t0}, 2"); a.e(f"s_mul_i32 s{s_cg}, s{s_cg}, 7"); a.e(f"s_lshr_b32 s{s_t2}, s{s_t1}, 2"); a.e(f"s_add_u32 s{s_cg}, s{s_cg}, s{s_t2}")
    a.e(f"s_and_b32 s{s_rot}, s{s_t1}, 3"); a.e(f"s_lshl_b32 s{s_rot}, s{s_rot}, 1"); a.e(f"s_add_u32 s{s_rot}, s{s_rot}, s{s_t2}"); a.e(f"s_and_b32 s{s_rot}, s{s_rot}, {opt.get('rot3', 7)}")
    s_slot = 55
    a.e(f"s_lshl_b32 s{s_slot}, s{s_t0}, 2"); a.e(f"s_and_b32 s{s_t2}, s{s_t1}, 3"); a.e(f"s_add_u32 s{s_slot}, s{s_slot}, s{s_t2}")
    a.e(f"s_and_b32 s{s_t2}, s{s_slot}, 1"); a.e(f"s_lshr_b32 s{s_slot}, s{s_slot}, 1"); a.e(f"s_lshl_b32 s{s_slot}, s{s_slot}, 4"); a.e(f"s_add_u32 s{s_slot}, s{s_slot}, s{s_t2}")
    a.e(f"s_lshr_b32 s{s_t2}, s{s_t1}, 2"); a.e(f"s_lshl_b32 s{s_t2}, s{s_t2}, 1"); a.e(f"s_add_u32 s{s_slot}, s{s_slot}, s{s_t2}")
    def producers(a, v):
        a.e(f"v_and_b32 v{v+1}, 1, v0"); a.e(f"s_lshl_b32 s{s_t2}, s{s_rb}, 1"); a.e(f"v_add_u32 v{v+1}, s{s_t2}, v{v+1}")
        a.e(f"v_bfe_u32 v{v}, v0, 1, 3"); a.e(f"v_lshlrev_b32 v{v}, 2, v{v}"); a.e(f"v_and_b32 v{v+2}, 3, v{v+1}"); a.e(f"v_or_b32 v{v}, v{v}, v{v+2}")
        a.e(f"v_lshlrev_b32 v{v}, 3, v{v}"); a.e(f"v_lshrrev_b32 v{v+1}, 2, v{v+1}"); a.e(f"v_or_b32 v{v}, v{v}, v{v+1}")
    a.e(f"s_cmp_ge_u32 s{s_w}, 4")
    a.e("s_cbranch_scc0 P3_CONS")
    H = VAlloc(2)
    v_dum = H(1); v_l16 = H(1); v_g = H(1); v_u = H(1); v_st = H(16, 4); v_t = H(8, 2); v_cp = H(16, 4)
    signal(a, 1, v_t, "2H", pub=False)
    a.e(f"s_cmp_ge_u32 s2, {NWG}"); a.e("s_cbranch_scc1 P3_DONE")
    a.e(f"v_lshlrev_b32 v{v_l16}, 4, v0")
    a.e(f"v_lshrrev_b32 v{v_t}, 4, v0"); a.e(f"v_bfe_u32 v{v_t+1}, v0, 1, 3"); a.e(f"v_xor_b32 v{v_t+1}, v{v_t+1}, v{v_t}")
    a.e(f"v_mul_u32_u24 v{v_t+2}, 3584, v{v_t}"); a.e(f"v_and_b32 v{v_t+3}, 1, v0"); a.e(f"v_lshl_add_u32 v{v_t+2}, v{v_t+3}, 4, v{v_t+2}")
    a.e(f"v_lshl_add_u32 v{v_g}, v{v_t+1}, 5, v{v_t+2}"); a.e(f"v_xor_b32 v{v_t+1}, 4, v{v_t+1}"); a.e(f"v_lshl_add_u32 v{v_u}, v{v_t+1}, 5, v{v_t+2}")
    srd(a, SRD_G, S_WG, 512*3584); srd(a, SRD_U, S_WU, 512*3584)
    VM = Cnt(a, "vmcnt", 63)
    s_xb, s_wb, s_xl, s_wl, s_kx, s_kw, s_xo, s_wo = 59, 60, 61, 62, 63, 3, 27, 50
    a.e(f"s_lshl_b32 s{s_xb}, s{s_rb}, 2"); a.e(f"s_add_u32 s{s_xb}, s{s_xb}, s{s_j}")
    a.e(f"s_lshl_b32 s{s_xb}, s{s_xb}, 15"); a.e(f"s_add_u32 s{s_xb}, s{s_xb}, {OFF_H}")
    a.e(f"s_mul_i32 s{s_wb}, s{s_j}, {16*3584}"); a.e(f"s_lshl_b32 s{s_t2}, s{s_cg}, 8"); a.e(f"s_add_u32 s{s_wb}, s{s_wb}, s{s_t2}")
    a.e(f"s_lshl_b32 s{s_xl}, s{s_j}, 12")
    a.e(f"s_lshl_b32 s{s_wl}, s{s_j}, 12"); a.e(f"s_add_u32 s{s_wl}, s{s_wl}, {XB}")
    a.e(f"s_mov_b32 s{s_kx}, s{s_rot}"); a.e(f"s_mov_b32 s{s_kw}, s{s_rot}")
    def issue_x(st):
        slot = st % NST
        a.e(f"s_lshl_b32 s{s_xo}, s{s_kx}, 12"); a.e(f"s_add_u32 s{s_xo}, s{s_xo}, s{s_xb}")
        a.e(f"s_add_u32 m0, s{s_xl}, {RB+slot*SLOT}")
        a.e(f"s_add_u32 s{s_kx}, s{s_kx}, 1")
        for i in range(4):
            VM.op(f"buffer_load_dwordx4 v{v_l16}, {WSS}, s{s_xo} offen offset:{i*1024}{SC1} lds", ("st", st))
        a.e(f"s_and_b32 s{s_kx}, s{s_kx}, 7")
    def issue_w(st):
        slot = st % NST
        a.e(f"s_mul_i32 s{s_wo}, s{s_kw}, {64*3584}"); a.e(f"s_add_u32 s{s_wo}, s{s_wo}, s{s_wb}")
        a.e(f"s_add_u32 s{s_kw}, s{s_kw}, 1"); a.e(f"s_and_b32 s{s_kw}, s{s_kw}, 7")
        for i in range(4):
            a.e(f"s_add_u32 m0, s{s_wl}, {RB+slot*SLOT+i*1024}"); a.e("s_nop 0")
            VM.op(f"buffer_load_dwordx4 v{v_g}, {srd_s(SRD_G)}, s{s_wo} offen lds", ("st", st))
            a.e(f"s_add_u32 m0, s{s_wl}, {RB+slot*SLOT+16384+i*1024}"); a.e("s_nop 0")
            VM.op(f"buffer_load_dwordx4 v{v_u}, {srd_s(SRD_U)}, s{s_wo} offen lds", ("st", st))
            if i < 3: a.e(f"s_add_u32 s{s_wo}, s{s_wo}, {4*3584}")
    for st in range(NST): issue_w(st)
    wait_group(a, 1, "2H", s_rb, 16, poller=False)
    T(1)
    for st in range(2): issue_x(st)
    nx = 2; nw = NST
    def load_stats():
        a.e(f"v_and_b32 v{v_t}, 15, v0"); a.e(f"v_lshlrev_b32 v{v_t}, 4, v{v_t}")
        a.e(f"v_lshrrev_b32 v{v_t+1}, 4, v0"); a.e(f"v_lshl_add_u32 v{v_t}, v{v_t+1}, 16, v{v_t}")
        a.e(f"s_lshl_b32 s{s_t0}, s{s_rb}, 2"); a.e(f"s_add_u32 s{s_t0}, s{s_t0}, s{s_j}"); a.e(f"s_lshl_b32 s{s_t0}, s{s_t0}, 8"); a.e(f"s_add_u32 s{s_t0}, s{s_t0}, {OFF_ST2}")
        for i in range(4):
            VM.op(f"buffer_load_dwordx4 {vr(v_st+4*i,4)}, v{v_t}, {WSS}, s{s_t0} offen{SC1}", "stat")
            if i < 3: a.e(f"s_add_u32 s{s_t0}, s{s_t0}, 16384")
        a.e(f"v_and_b32 v{v_t+2}, 31, v0"); a.e(f"v_lshlrev_b32 v{v_t+2}, 4, v{v_t+2}")
        a.e(f"v_lshrrev_b32 v{v_t+3}, 5, v0"); a.e(f"v_mul_u32_u24 v{v_t+3}, {1792*4}, v{v_t+3}"); a.e(f"v_add_u32 v{v_t+2}, v{v_t+2}, v{v_t+3}")
        a.e(f"s_mul_i32 s{s_t1}, s{s_j}, {4*3584*4}"); a.e(f"s_lshl_b32 s{s_t2}, s{s_cg}, 9"); a.e(f"s_add_u32 s{s_t1}, s{s_t1}, s{s_t2}"); a.e(f"s_add_u32 s{s_t1}, s{s_t1}, {OFF_CS}")
        for i in range(4):
            VM.op(f"buffer_load_dwordx4 {vr(v_cp+4*i,4)}, v{v_t+2}, {WSS}, s{s_t1} offen{SC1}", "stat")
            if i < 3: a.e(f"s_add_u32 s{s_t1}, s{s_t1}, {3584*4}")
    def process_stats():
        VM.need("stat")
        for i in range(1, 4):
            a.e(f"v_pk_add_f32 {vr(v_cp,2)}, {vr(v_cp,2)}, {vr(v_cp+4*i,2)}"); a.e(f"v_pk_add_f32 {vr(v_cp+2,2)}, {vr(v_cp+2,2)}, {vr(v_cp+4*i+2,2)}")
            a.e(f"v_pk_add_f32 {vr(v_st,2)}, {vr(v_st,2)}, {vr(v_st+4*i,2)}"); a.e(f"v_pk_add_f32 {vr(v_st+2,2)}, {vr(v_st+2,2)}, {vr(v_st+4*i+2,2)}")
        a.e(f"v_lshlrev_b32 v{v_t+2}, 4, v0"); a.e(f"s_lshl_b32 s{s_t1}, s{s_j}, 10"); a.e(f"v_add_u32 v{v_t+2}, s{s_t1}, v{v_t+2}")
        a.e(f"ds_write_b128 v{v_t+2}, {vr(v_cp,4)} offset:{CSX}")
        for op in ("v_permlane16_swap_b32", "v_permlane32_swap_b32"):
            for e in range(4): a.e(f"v_mov_b32 v{v_st+4+e}, v{v_st+e}")
            a.e("s_nop 1")
            for e in range(4): a.e(f"{op} v{v_st+e}, v{v_st+4+e}")
            a.e("s_nop 1")
            for e in range(4): a.e(f"v_add_f32 v{v_st+e}, v{v_st+e}, v{v_st+4+e}")
        for e in (0, 2): finish_stats(a, v_st+e, v_st+e+1)
        a.e(f"v_and_b32 v{v_t}, 15, v0"); a.e(f"v_lshlrev_b32 v{v_t}, 4, v{v_t}")
        a.e(f"s_lshl_b32 s{s_t2}, s{s_j}, 8"); a.e(f"v_add_u32 v{v_t}, s{s_t2}, v{v_t}")
        a.e(f"ds_write_b128 v{v_t}, {vr(v_st,4)} offset:{STAT}")
    for s in range(NSTG):
        VM.need(("st", s))
        a.e("s_barrier")
        T(2+s)
        if s == 4:
            process_stats(); a.e("s_waitcnt lgkmcnt(0)")
        lim = min(NSTG - 1, s - 1 + NST)
        while nx <= lim:
            issue_x(nx); nx += 1
            while nw < nx:
                issue_w(nw); nw += 1
        if s == 1: load_stats()
        if s == NSTG - NST and opt.get("pfwd", True):
            srd(a, 52, S_WD, 1792*1024)
            a.e(f"v_lshlrev_b32 v{v_t+4}, 7, v0")
            a.e(f"s_lshr_b32 s{s_t1}, s2, 3"); a.e(f"s_lshl_b32 s{s_t1}, s{s_t1}, 2"); a.e(f"s_add_u32 s{s_t1}, s{s_t1}, s{s_j}")
            touch_contig(a, 52, 0, 128, s_t1, v_t+4, 255, s_t2, VM)
    T(10); T.real(14); T.dump(S_WS, s_w, v_t)
    a.e("s_branch P3_DONE")
    a.lab("P3_CONS")
    C = VAlloc(2)
    acc = C(128, 4); fxr = C(16, 4); fw = C(32, 4)
    v_xa = C(1); v_wa = C(4); v_l16 = C(1)
    v_t = C(8, 4); aux = C(8, 4); auw = C(16, 4); st = C(4, 2); P = C(8, 4); csr = C(16, 4); cc = C(4, 2)
    s_tbp, s_fh, s_hb = 59, 60, 61
    signal(a, 1, v_t, "2C", slot=s_slot)
    a.e(f"s_cmp_ge_u32 s2, {NWG}"); a.e("s_cbranch_scc1 P3_DONE")
    a.e(f"s_and_b32 s{s_tbp}, s{s_w}, 1"); a.e(f"s_lshr_b32 s{s_fh}, s{s_w}, 1")
    a.e(f"v_lshlrev_b32 v{v_l16}, 4, v0")
    a.e(f"s_lshl_b32 s{s_t0}, s{s_tbp}, 13"); a.e(f"s_add_u32 s{s_t0}, s{s_t0}, {RB}")
    a.e(f"v_add_u32 v{v_xa}, s{s_t0}, v{v_l16}")
    a.e(f"v_bfe_u32 v{v_t}, v0, 2, 2"); a.e(f"v_lshrrev_b32 v{v_t+1}, 5, v0"); a.e(f"v_lshl_add_u32 v{v_t+1}, v{v_t+1}, 3, v{v_t}")
    a.e(f"v_lshlrev_b32 v{v_t+1}, 8, v{v_t+1}"); a.e(f"v_bfe_u32 v{v_t+2}, v0, 1, 1"); a.e(f"v_lshl_add_u32 v{v_t+1}, v{v_t+2}, 14, v{v_t+1}")
    a.e(f"v_lshl_or_b32 v{v_t+2}, v{v_t+2}, 2, v{v_t}"); a.e(f"v_lshl_add_u32 v{v_t+1}, v{v_t+2}, 5, v{v_t+1}")
    a.e(f"v_and_b32 v{v_t+2}, 1, v0"); a.e(f"v_lshl_add_u32 v{v_t+1}, v{v_t+2}, 4, v{v_t+1}")
    a.e(f"v_bfe_u32 v{v_t+2}, v0, 4, 1"); a.e(f"v_lshl_add_u32 v{v_t+1}, v{v_t+2}, 3, v{v_t+1}")
    a.e(f"s_lshl_b32 s{s_t0}, s{s_fh}, 2")
    for lt in range(4):
        a.e(f"s_add_u32 s{s_t1}, s{s_t0}, {lt}"); a.e(f"s_lshl_b32 s{s_t1}, s{s_t1}, 5")
        a.e(f"v_xor_b32 v{v_wa+lt}, s{s_t1}, v{v_t+1}"); a.e(f"v_add_u32 v{v_wa+lt}, {RB+XB}, v{v_wa+lt}")
    for i in range(128): a.e(f"v_mov_b32 v{acc+i}, 0")
    wait_group(a, 1, "2C", s_rb, 16)
    LG = Cnt(a, "lgkmcnt", 15)
    def reads(s, t):
        p = t & 1; out = []
        for tbl in range(2):
            out.append(lambda tbl=tbl: LG.op(f"ds_read_b128 {vr(fxr+8*p+4*tbl,4)}, v{v_xa} offset:{tbl*4096+t*1024}", ("x", s, t, tbl)))
        for lt in range(4):
            for k in range(2):
                out.append(lambda lt=lt, k=k: LG.op(f"ds_read_b64_tr_b16 {vr(fw+16*p+4*lt+2*k,2)}, v{v_wa+lt} offset:{t*4096+k*1024}", ("w", s, t, lt)))
        return [out[0], out[2], out[3], out[1]] + out[4:]
    def step(s, t, nxt):
        p = t & 1
        mf = []
        for lt in range(4):
            for tbl in range(2):
                def m(lt=lt, tbl=tbl):
                    LG.need(("x", s, t, tbl), ("w", s, t, lt))
                    d = acc + 16*(lt*2+tbl)
                    a.e(f"{MF} {vr(d,16)}, {vr(fw+16*p+4*lt,4)}, {vr(fxr+8*p+4*tbl,4)}, {vr(d,16)}")
                mf.append(m)
        if t < 3:
            fill = nxt; k = 0
            for i, m in enumerate(mf):
                m()
                upto = (len(fill) * (i + 1) + 7) // 8
                while k < upto: fill[k](); k += 1
                if s >= 6: drip(2)
        else:
            for i in range(3): mf[i]()
            if nxt is not None:
                LG.drain()
                a.e("s_barrier")
                delta = SLOT if (s + 1) % NST != 0 else -(NST - 1) * SLOT
                a.e(f"v_add_u32 v{v_xa}, {delta & 0xffffffff:#x}, v{v_xa}")
                for lt in range(4): a.e(f"v_add_u32 v{v_wa+lt}, {delta & 0xffffffff:#x}, v{v_wa+lt}")
            k = 0; fill = nxt or []
            for i in range(3, 8):
                mf[i]()
                upto = (len(fill) * (i - 2) + 4) // 5
                while k < upto: fill[k](); k += 1
                if s >= 6: drip(2)
    prep = []
    E = lambda t: prep.append(lambda t=t: a.e(t))
    E(f"v_bfe_u32 v{v_t}, v0, 3, 1"); E(f"v_lshlrev_b32 v{v_t}, 7, v{v_t}")
    E(f"v_bfe_u32 v{v_t+1}, v0, 2, 1"); E(f"v_lshl_add_u32 v{v_t}, v{v_t+1}, 3, v{v_t}")
    E(f"v_bfe_u32 v{v_t+1}, v0, 4, 1"); E(f"v_lshl_add_u32 v{v_t}, v{v_t+1}, 2, v{v_t}")
    E(f"v_and_b32 v{v_t+1}, 3, v0"); E(f"v_add_u32 v{v_t}, v{v_t}, v{v_t+1}"); E(f"v_lshlrev_b32 v{v_t}, 2, v{v_t}")
    E(f"s_lshl_b32 s{s_t0}, s{s_fh}, 2")
    for lt in range(4):
        E(f"s_add_u32 s{s_t1}, s{s_t0}, {lt}"); E(f"s_lshl_b32 s{s_t1}, s{s_t1}, 6"); E(f"v_add_u32 v{v_t+1}, s{s_t1}, v{v_t}")
        for jj in range(4): prep.append(lambda lt=lt, jj=jj: LG.op(f"ds_read_b32 v{csr+4*lt+jj}, v{v_t+1} offset:{CSX+jj*1024}", "cs"))
    E(f"v_and_b32 v{v_t}, 31, v0"); E(f"v_lshlrev_b32 v{v_t}, 3, v{v_t}"); E(f"s_lshl_b32 s{s_t1}, s{s_tbp}, 9"); E(f"v_add_u32 v{v_t}, s{s_t1}, v{v_t}")
    prep.append(lambda: LG.op(f"ds_read_b64 {vr(st,2)}, v{v_t} offset:{STAT}", "cs"))
    prep.append(lambda: LG.op(f"ds_read_b64 {vr(st+2,2)}, v{v_t} offset:{STAT+256}", "cs"))
    E("v_cmp_gt_u32 vcc, 32, v0")
    for lt in range(4): E(f"v_mov_b32 v{auw+4*lt+2}, 0"); E(f"v_mov_b32 v{auw+4*lt+3}, 0")
    for tbl in range(2): E(f"v_mov_b32 v{aux+4*tbl+2}, 0"); E(f"v_mov_b32 v{aux+4*tbl+3}, 0")
    prep.append(lambda: LG.need("cs"))
    for lt in range(4):
        src = csr + 4*lt; d = auw + 4*lt
        E(f"v_add_f32 v{src}, v{src}, v{src+1}"); E(f"v_add_f32 v{src+2}, v{src+2}, v{src+3}"); E(f"v_add_f32 v{src}, v{src}, v{src+2}")
        E(f"v_cndmask_b32 v{src}, 0, v{src}, vcc")
        E(f"v_cvt_pk_bf16_f32 v{d+1}, v{src}, 0"); E(f"v_lshlrev_b32 v{v_t+4}, 16, v{d+1}"); E(f"v_sub_f32 v{v_t+4}, v{src}, v{v_t+4}"); E(f"v_cvt_pk_bf16_f32 v{d}, v{src}, v{v_t+4}")
    for tbl in range(2):
        d = aux + 4*tbl
        E(f"v_cndmask_b32 v{v_t+5}, 0, v{st+2*tbl}, vcc"); E(f"v_sub_f32 v{v_t+5}, 0, v{v_t+5}")
        E(f"v_cvt_pk_bf16_f32 v{d}, v{v_t+5}, v{v_t+5}"); E(f"v_lshlrev_b32 v{v_t+4}, 16, v{d}"); E(f"v_sub_f32 v{v_t+4}, v{v_t+5}, v{v_t+4}"); E(f"v_cvt_pk_bf16_f32 v{d+1}, v{v_t+4}, 0")
        E(f"v_mul_f32 v{cc+2*tbl}, {fx(-LOG2E)}, v{st+2*tbl+1}"); E(f"v_mov_b32 v{cc+2*tbl+1}, v{st+2*tbl+1}")
    def drip(n):
        for _ in range(n):
            if prep: prep.pop(0)()
    T(1)
    a.e("s_barrier")
    T(2)
    for f in reads(0, 0): f()
    for s in range(NSTG):
        for t in range(4):
            nx_ = reads(s, t + 1) if t < 3 else (reads(s + 1, 0) if s + 1 < NSTG else None)
            step(s, t, nx_)
    drip(1000)
    a.e("s_nop 1")
    T(3)
    for tbl in range(2):
        for lt in range(4):
            d = acc + 16*(lt*2+tbl)
            a.e(f"{MF} {vr(d,16)}, {vr(auw+4*lt,4)}, {vr(aux+4*tbl,4)}, {vr(d,16)}")
    T(4)
    a.e(f"s_lshl_b32 s{s_hb}, s{s_rb}, 2"); a.e(f"s_lshl_b32 s{s_t1}, s{s_tbp}, 1"); a.e(f"s_add_u32 s{s_hb}, s{s_hb}, s{s_t1}")
    a.e(f"s_mul_i32 s{s_hb}, s{s_hb}, 112"); a.e(f"s_lshl_b32 s{s_t1}, s{s_cg}, 3"); a.e(f"s_add_u32 s{s_hb}, s{s_hb}, s{s_t1}")
    a.e(f"s_add_u32 s{s_hb}, s{s_hb}, s{s_t0}")
    a.e(f"s_lshl_b32 s{s_hb}, s{s_hb}, 10"); a.e(f"s_add_u32 s{s_hb}, s{s_hb}, {OFF_HH}")
    a.e("s_nop 7")
    T(5)
    for tbl in range(2):
        for lt in range(4):
            d = acc + 16*(lt*2+tbl)
            pk = P + 4*((tbl*4+lt) & 1)
            gp = [d, d+2, d+8, d+10]; up = [d+4, d+6, d+12, d+14]
            for g in gp: a.e(f"v_pk_mul_f32 {vr(g,2)}, {vr(g,2)}, {vr(cc+2*tbl,2)} op_sel_hi:[1,0]")
            for g in gp: a.e(f"v_exp_f32 v{g}, v{g}"); a.e(f"v_exp_f32 v{g+1}, v{g+1}")
            for u in up: a.e(f"v_pk_mul_f32 {vr(u,2)}, {vr(u,2)}, {vr(cc+2*tbl,2)} op_sel:[0,1]")
            for g in gp: a.e(f"v_pk_add_f32 {vr(g,2)}, {vr(g,2)}, 1.0 op_sel_hi:[1,0]")
            for g in gp: a.e(f"v_rcp_f32 v{g}, v{g}"); a.e(f"v_rcp_f32 v{g+1}, v{g+1}")
            a.e("s_nop 0")
            for g, u in zip(gp, up): a.e(f"v_pk_mul_f32 {vr(g,2)}, {vr(g,2)}, {vr(u,2)}")
            for i, g in enumerate(gp): a.e(f"v_cvt_pk_bf16_f32 v{pk+i}, v{g}, v{g+1}")
            a.e(f"s_add_u32 s{s_t1}, s{s_hb}, {lt*1024 + tbl*112*1024}")
            a.e(f"buffer_store_dwordx4 {vr(pk,4)}, v{v_l16}, {WSS}, s{s_t1} offen{SC1}")
    T(6); T.real(14); T.dump(S_WS, s_w, v_t)
    a.lab("P3_DONE")
    return max(H.hi, C.hi)

def phase4(a, dbg, opt):
    T = Stamps(a, dbg, 3)
    XR = 8192; NX = 3; WR = XR + NX*16384; NW = opt.get('p4nw', 6); NSTG = 14
    SRD_W, SRD_O = SRD_B, SRD_C
    s_rb, s_cb, s_rot = 56, 57, 58
    T.real(15); T(0)
    a.e(f"s_and_b32 s{s_t0}, s2, 7"); a.e(f"s_lshr_b32 s{s_t1}, s2, 3")
    a.e(f"s_lshl_b32 s{s_rb}, s{s_t0}, 2"); a.e(f"s_and_b32 s{s_t2}, s{s_t1}, 3"); a.e(f"s_add_u32 s{s_rb}, s{s_rb}, s{s_t2}")
    a.e(f"s_lshr_b32 s{s_cb}, s{s_t1}, 2")
    a.e(f"s_and_b32 s{s_rot}, s{s_t1}, 3"); a.e(f"s_mul_i32 s{s_rot}, s{s_rot}, 2"); a.e(f"s_add_u32 s{s_rot}, s{s_rot}, s{s_cb}")
    s_slot, s_grp = 55, 63
    a.e(f"s_and_b32 s{s_slot}, s{s_t0}, 3"); a.e(f"s_lshl_b32 s{s_slot}, s{s_slot}, 2"); a.e(f"s_and_b32 s{s_t2}, s{s_t1}, 3"); a.e(f"s_add_u32 s{s_slot}, s{s_slot}, s{s_t2}")
    a.e(f"s_lshl_b32 s{s_slot}, s{s_slot}, 4")
    a.e(f"s_lshr_b32 s{s_t2}, s{s_t0}, 2"); a.e(f"s_mul_i32 s{s_t2}, s{s_t2}, 7"); a.e(f"s_lshr_b32 s{s_t3}, s{s_t1}, 2"); a.e(f"s_add_u32 s{s_t2}, s{s_t2}, s{s_t3}")
    a.e(f"s_cmp_ge_u32 s2, 224"); a.e(f"s_cselect_b32 s{s_t2}, 15, s{s_t2}")
    a.e(f"s_add_u32 s{s_slot}, s{s_slot}, s{s_t2}")
    def producers(a, v):
        a.e(f"s_lshr_b32 s{s_t2}, s{s_rb}, 1")
        a.e(f"v_cmp_lt_u32 vcc, 6, v0"); a.e(f"v_mov_b32 v{v+1}, 0"); a.e(f"v_mov_b32 v{v+2}, 1"); a.e(f"v_cndmask_b32 v{v+1}, v{v+1}, v{v+2}, vcc")
        a.e(f"v_mul_u32_u24 v{v+2}, 7, v{v+1}"); a.e(f"v_sub_u32 v{v}, v0, v{v+2}")
        a.e(f"v_lshlrev_b32 v{v}, 2, v{v}"); a.e(f"s_and_b32 s{s_t3}, s{s_t2}, 3"); a.e(f"v_or_b32 v{v}, s{s_t3}, v{v}")
        a.e(f"v_lshlrev_b32 v{v}, 3, v{v}"); a.e(f"v_lshlrev_b32 v{v+1}, 2, v{v+1}"); a.e(f"s_lshr_b32 s{s_t3}, s{s_t2}, 2")
        a.e(f"v_or_b32 v{v}, v{v}, v{v+1}"); a.e(f"v_or_b32 v{v}, s{s_t3}, v{v}")
        a.e(f"v_min_u32 v{v}, 255, v{v}")
    a.e(f"s_cmp_ge_u32 s{s_w}, 4")
    a.e("s_cbranch_scc0 P4_CONS")
    H = VAlloc(2)
    v_l16 = H(1); v_wd = H(1); v_t = H(4)
    signal(a, 2, v_t, "3H", pub=False)
    a.e(f"v_lshlrev_b32 v{v_l16}, 4, v0")
    a.e(f"v_lshrrev_b32 v{v_t}, 3, v0"); a.e(f"v_lshlrev_b32 v{v_t}, 10, v{v_t}")
    a.e(f"v_bfe_u32 v{v_t+1}, v0, 4, 1"); a.e(f"v_lshlrev_b32 v{v_t+1}, 2, v{v_t+1}")
    a.e(f"v_and_b32 v{v_t+2}, 7, v0"); a.e(f"v_xor_b32 v{v_t+1}, v{v_t+1}, v{v_t+2}")
    a.e(f"v_lshl_add_u32 v{v_wd}, v{v_t+1}, 4, v{v_t}")
    srd(a, SRD_W, S_WD, 1792*1024)
    VM = Cnt(a, "vmcnt", 63)
    s_xb, s_wb, s_xl, s_wl, s_kx, s_kw, s_xo, s_wo = 59, 60, 61, 62, 63, 3, 27, 50
    a.e(f"s_and_b32 s{s_t0}, s{s_j}, 1"); a.e(f"s_lshr_b32 s{s_t1}, s{s_j}, 1")
    a.e(f"s_lshl_b32 s{s_xb}, s{s_rb}, 1"); a.e(f"s_add_u32 s{s_xb}, s{s_xb}, s{s_t0}")
    a.e(f"s_mul_i32 s{s_xb}, s{s_xb}, {112*1024}"); a.e(f"s_lshl_b32 s{s_t2}, s{s_t1}, 12"); a.e(f"s_add_u32 s{s_xb}, s{s_xb}, s{s_t2}")
    a.e(f"s_add_u32 s{s_xb}, s{s_xb}, {OFF_HH}")
    a.e(f"s_lshl_b32 s{s_xl}, s{s_t0}, 13"); a.e(f"s_add_u32 s{s_xl}, s{s_xl}, s{s_t2}")
    a.e(f"s_lshl_b32 s{s_wb}, s{s_j}, 15"); a.e(f"s_lshl_b32 s{s_t2}, s{s_cb}, 7"); a.e(f"s_add_u32 s{s_wb}, s{s_wb}, s{s_t2}")
    a.e(f"s_lshl_b32 s{s_wl}, s{s_j}, 12")
    a.e(f"s_mov_b32 s{s_kx}, s{s_rot}"); a.e(f"s_mov_b32 s{s_kw}, s{s_rot}")
    def issue_x(st):
        a.e(f"s_lshl_b32 s{s_xo}, s{s_kx}, 13"); a.e(f"s_add_u32 s{s_xo}, s{s_xo}, s{s_xb}")
        a.e(f"s_add_u32 m0, s{s_xl}, {XR+(st % NX)*16384}")
        a.e(f"s_add_u32 s{s_kx}, s{s_kx}, 1")
        for i in range(4): VM.op(f"buffer_load_dwordx4 v{v_l16}, {WSS}, s{s_xo} offen offset:{i*1024}{SC1} lds", ("st", st))
        a.e(f"s_cmp_eq_u32 s{s_kx}, {NSTG}"); a.e(f"s_cselect_b32 s{s_kx}, 0, s{s_kx}")
    def issue_w(st):
        a.e(f"s_lshl_b32 s{s_wo}, s{s_kw}, 17"); a.e(f"s_add_u32 s{s_wo}, s{s_wo}, s{s_wb}")
        a.e(f"s_add_u32 s{s_kw}, s{s_kw}, 1"); a.e(f"s_cmp_eq_u32 s{s_kw}, {NSTG}"); a.e(f"s_cselect_b32 s{s_kw}, 0, s{s_kw}")
        for i in range(4):
            a.e(f"s_add_u32 m0, s{s_wl}, {WR+(st % NW)*16384+i*1024}"); a.e("s_nop 0")
            VM.op(f"buffer_load_dwordx4 v{v_wd}, {srd_s(SRD_W)}, s{s_wo} offen lds", ("st", st))
            if i < 3: a.e(f"s_add_u32 s{s_wo}, s{s_wo}, 8192")
    for st in range(NW): issue_w(st)
    wait_group(a, 2, "3H", None, 14, poller=False)
    T(1)
    for st in range(2): issue_x(st)
    nx = 2; nw = NW
    for s in range(NSTG):
        VM.need(("st", s))
        a.e("s_barrier")
        if s < 8: T(2+s)
        while nx <= min(NSTG - 1, s - 1 + NX):
            issue_x(nx); nx += 1
        while nw <= min(NSTG - 1, s - 1 + NW):
            issue_w(nw); nw += 1
    T(10); T.real(14); T.dump(S_WS, s_w, v_t)
    a.e("s_endpgm")
    a.lab("P4_CONS")
    C = VAlloc(2)
    acc = C(16, 4); fxr = C(16, 4); fw = C(16, 4)
    v_xa = C(1); v_wa = C(1); v_l16 = C(1); v_t = C(8, 4); v_h = C(8, 4)
    s_tb, s_nb, s_cn, s_oo = 59, 60, 61, 62
    signal(a, 2, v_t, "3C", slot=s_slot)
    a.e(f"s_and_b32 s{s_tb}, s{s_w}, 1"); a.e(f"s_lshr_b32 s{s_nb}, s{s_w}, 1")
    a.e(f"v_lshlrev_b32 v{v_l16}, 4, v0")
    a.e(f"s_lshl_b32 s{s_t0}, s{s_tb}, 13"); a.e(f"s_add_u32 s{s_t0}, s{s_t0}, {XR}"); a.e(f"v_add_u32 v{v_xa}, s{s_t0}, v{v_l16}")
    a.e(f"v_lshrrev_b32 v{v_t}, 5, v0"); a.e(f"v_lshlrev_b32 v{v_t}, 3, v{v_t}")
    a.e(f"v_bfe_u32 v{v_t+1}, v0, 2, 2"); a.e(f"v_add_u32 v{v_t}, v{v_t}, v{v_t+1}"); a.e(f"v_lshlrev_b32 v{v_t}, 7, v{v_t}")
    a.e(f"v_bfe_u32 v{v_t+1}, v0, 3, 1"); a.e(f"v_lshl_add_u32 v{v_t}, v{v_t+1}, 6, v{v_t}")
    a.e(f"v_bfe_u32 v{v_t+1}, v0, 4, 1"); a.e(f"v_lshl_add_u32 v{v_t}, v{v_t+1}, 5, v{v_t}")
    a.e(f"v_and_b32 v{v_t+1}, 1, v0"); a.e(f"v_lshl_add_u32 v{v_t}, v{v_t+1}, 4, v{v_t}")
    a.e(f"v_bfe_u32 v{v_t+1}, v0, 1, 1"); a.e(f"v_lshl_add_u32 v{v_t}, v{v_t+1}, 3, v{v_t}")
    a.e(f"s_lshl_b32 s{s_t0}, s{s_nb}, 6"); a.e(f"v_xor_b32 v{v_wa}, s{s_t0}, v{v_t}"); a.e(f"v_add_u32 v{v_wa}, {WR}, v{v_wa}")
    for i in range(16): a.e(f"v_mov_b32 v{acc+i}, 0")
    a.e(f"s_lshl_b32 s{s_t0}, s{s_rb}, 1"); a.e(f"s_add_u32 s{s_t0}, s{s_t0}, s{s_tb}")
    a.e(f"s_lshl_b32 s{s_cn}, s{s_cb}, 1"); a.e(f"s_add_u32 s{s_cn}, s{s_cn}, s{s_nb}")
    a.e(f"s_lshl_b32 s{s_t1}, s{s_t0}, 5"); a.e(f"s_lshl_b32 s{s_t2}, s{s_cn}, 1"); a.e(f"s_add_u32 s{s_t1}, s{s_t1}, s{s_t2}")
    a.e(f"s_lshl_b32 s{s_t1}, s{s_t1}, 10"); a.e(f"s_add_u32 s{s_t1}, s{s_t1}, {OFF_H}")
    for i in range(2): a.e(f"buffer_load_dwordx4 {vr(v_h+4*i,4)}, v{v_l16}, {WSS}, s{s_t1} offen offset:{i*1024}{SC1}")
    a.e(f"s_lshl_b32 s{s_oo}, s{s_t0}, 15"); a.e(f"s_lshl_b32 s{s_t2}, s{s_cn}, 6"); a.e(f"s_add_u32 s{s_oo}, s{s_oo}, s{s_t2}")
    a.e(f"s_lshr_b32 s{s_grp}, s{s_rb}, 1")
    wait_group(a, 2, "3C", s_grp, 14)
    srd(a, SRD_O, S_OUT, 2048*1024)
    LG = Cnt(a, "lgkmcnt", 15)
    NSTEP = NSTG * 8; DEPTH = 3
    def rd(g):
        s, t = divmod(g, 8); p = g & 3
        LG.op(f"ds_read_b128 {vr(fxr+4*p,4)}, v{v_xa} offset:{t*1024}", ("f", g))
        LG.op(f"ds_read_b64_tr_b16 {vr(fw+4*p,2)}, v{v_wa} offset:{t*2048}", ("f", g))
        LG.op(f"ds_read_b64_tr_b16 {vr(fw+4*p+2,2)}, v{v_wa} offset:{t*2048+512}", ("f", g))
    def cross(s):
        LG.drain()
        a.e("s_barrier")
        dx = 16384 if s % NX != 0 else -(NX - 1) * 16384
        dw = 16384 if s % NW != 0 else -(NW - 1) * 16384
        a.e(f"v_add_u32 v{v_xa}, {dx & 0xffffffff:#x}, v{v_xa}"); a.e(f"v_add_u32 v{v_wa}, {dw & 0xffffffff:#x}, v{v_wa}")
    T(1)
    a.e("s_barrier")
    T(2)
    for g in range(DEPTH): rd(g)
    for g in range(NSTEP):
        n = g + DEPTH
        if n < NSTEP:
            if n % 8 == 0: cross(n // 8)
            rd(n)
        LG.need(("f", g))
        p = g & 3
        a.e(f"{MF} {vr(acc,16)}, {vr(fw+4*p,4)}, {vr(fxr+4*p,4)}, {vr(acc,16)}")
    T(3)
    a.e("s_waitcnt vmcnt(0)")
    a.e("s_nop 7"); a.e("s_nop 3")
    for i in range(8):
        a.e(f"v_lshlrev_b32 v{v_t}, 16, v{v_h+i}"); a.e(f"v_and_b32 v{v_t+1}, 0xffff0000, v{v_h+i}")
        a.e(f"v_pk_add_f32 {vr(acc+2*i,2)}, {vr(acc+2*i,2)}, {vr(v_t,2)}")
        a.e(f"v_cvt_pk_bf16_f32 v{v_h+i}, v{acc+2*i}, v{acc+2*i+1}")
    a.e(f"v_and_b32 v{v_t}, 31, v0"); a.e(f"v_lshlrev_b32 v{v_t}, 10, v{v_t}")
    a.e(f"v_lshrrev_b32 v{v_t+1}, 5, v0"); a.e(f"v_lshl_add_u32 v{v_t}, v{v_t+1}, 4, v{v_t}")
    for i in range(2): a.e(f"buffer_store_dwordx4 {vr(v_h+4*i,4)}, v{v_t}, {srd_s(SRD_O)}, s{s_oo} offen offset:{32*i}")
    a.e("s_cmp_eq_u32 s2, 0"); a.e("s_cbranch_scc0 P4_NOEP")
    a.e(f"s_cmp_eq_u32 s{s_w}, 0"); a.e("s_cbranch_scc0 P4_NOEP")
    a.e(f"v_mov_b32 v{v_t+2}, {OFF_NONCE}"); a.e(f"v_mov_b32 v{v_t+3}, s{s_ep}")
    a.e("v_cmp_eq_u32 vcc, 0, v0"); a.e(f"s_and_saveexec_b64 s[{s_c0}:{s_c0+1}], vcc")
    a.e(f"buffer_store_dword v{v_t+3}, v{v_t+2}, {WSS}, 0 offen sc1")
    a.e(f"s_mov_b64 exec, s[{s_c0}:{s_c0+1}]")
    a.lab("P4_NOEP")
    if dbg:
        T(4); a.e("s_waitcnt vmcnt(0)"); T(5); T.real(14); T.dump(S_WS, s_w, v_t+2)
    return max(H.hi, C.hi)

def gen_mega(dbg=False, opt={}):
    a = Asm()
    a.raw(HEADER.rstrip("\n"))
    a.raw("; @launch grid=(256,1,1) block=(512,1,1) lds=163840")
    a.raw('.amdgcn_target "amdgcn-amd-amdhsa--gfx950"')
    kernel_begin(a, KNAME)
    a.e("s_cmp_ge_u32 s2, 256")
    a.e("s_cbranch_scc1 ALL_EXIT")
    a.e("s_load_dwordx8 s[4:11], s[0:1], 0")
    a.e("s_load_dwordx8 s[12:19], s[0:1], 40")
    a.e("s_load_dwordx4 s[20:23], s[0:1], 72")
    a.e("v_lshrrev_b32 v1, 6, v0")
    a.e("v_and_b32 v0, 63, v0")
    a.e(f"v_readfirstlane_b32 s{s_w}, v1")
    a.e("s_nop 3")
    a.e(f"s_and_b32 s{s_j}, s{s_w}, 3")
    n1 = phase1(a, dbg, opt)
    n2, _ = phase2(a, dbg, opt)
    n3 = phase3(a, dbg, opt)
    n4 = phase4(a, dbg, opt)
    a.lab("ALL_EXIT")
    a.e("s_endpgm")
    a.lab("ALL_END")
    nv = max(n1, n2, n3, n4)
    assert nv <= 255, nv
    nv = 256
    kernel_desc(a, KNAME, nv, 102, 256)
    return a.text()

if __name__ == "__main__":
    out = sys.argv[1]; dbg = "dbg" in sys.argv
    opt = {}
    for x in sys.argv[2:]:
        if "=" in x:
            k, v = x.split("="); opt[k] = int(v)
    open(out, "w").write(gen_mega(dbg, opt))
```
